```python
import torch

def _softmax(x, axis=-1):
    return torch.softmax(x, dim=axis)

def _gelu(x):
    return torch.nn.functional.gelu(x, approximate='tanh')

def _silu(x):
    return torch.nn.functional.silu(x)

def _sigmoid(x):
    return torch.sigmoid(x)

def _layernorm(x, axis=-1, eps=1e-05):
    m = x.mean(dim=axis, keepdim=True)
    v = x.var(dim=axis, keepdim=True, unbiased=False)
    return (x - m) / torch.sqrt(v + eps)

def _scatter_add(tgt, idx, src, axis=0):
    return tgt.clone().index_add_(axis, idx, src)

def _segment_sum(src, seg, n):
    out = torch.zeros((n,) + src.shape[1:], dtype=src.dtype)
    return out.index_add_(0, seg, src)

def _pad(x, pw):
    flat = tuple((v for pair in reversed(pw) for v in pair))
    return torch.nn.functional.pad(x, flat)
kernel_name = 'adaLN_cond__grouped_kv_mqa__mixer_gmlp__prompt'

def setup_inputs():

    _w = lambda a: (lambda t: t.to(torch.bfloat16) if t.is_floating_point() else t)(torch.as_tensor(a))

    def _A_setup():
        B, S, D, H = (1, 2048, 576, 32)
        Dh = D // H
        return {'x': _w((lambda *s: torch.randn(*s, dtype=torch.bfloat16) * 0.05)(B, S, D)), 'wq': _w((lambda *s: torch.randn(*s, dtype=torch.bfloat16) * 0.05)(D, H * Dh)), 'wk': _w((lambda *s: torch.randn(*s, dtype=torch.bfloat16) * 0.05)(D, Dh)), 'wv': _w((lambda *s: torch.randn(*s, dtype=torch.bfloat16) * 0.05)(D, Dh)), 'wo': _w((lambda *s: torch.randn(*s, dtype=torch.bfloat16) * 0.05)(H * Dh, D))}
    _A_in = _A_setup()

    def _B_setup():
        B, S, D, F = (1, 2048, 576, 4608)
        Fh = F // 2
        return {'x': _w((lambda *s: torch.randn(*s, dtype=torch.bfloat16) * 0.05)(B, S, D)), 'w_in': _w((lambda *s: torch.randn(*s, dtype=torch.bfloat16) * 0.2)(D, 2 * Fh)), 'w_sp': _w(0.01 * (lambda *s: torch.randn(*s, dtype=torch.bfloat16) * 0.2)(S, S)), 'b_sp': _w(1.0 + 0.01 * (lambda *s: torch.randn(*s, dtype=torch.bfloat16) * 0.05)(S)), 'w_out': _w((lambda *s: torch.randn(*s, dtype=torch.bfloat16) * 0.05)(Fh, D))}
    _B_in = _B_setup()
    return {'A_x': _A_in['x'], 'A_wq': _A_in['wq'], 'A_wk': _A_in['wk'], 'A_wv': _A_in['wv'], 'A_wo': _A_in['wo'], 'B_x': _B_in['x'], 'B_w_in': _B_in['w_in'], 'B_w_sp': _B_in['w_sp'], 'B_b_sp': _B_in['b_sp'], 'B_w_out': _B_in['w_out'], 'c': _w((lambda *s: torch.randn(*s, dtype=torch.bfloat16) * 0.1)(1, 576) * 8.0), 'w_mod': _w((lambda *s: torch.randn(*s, dtype=torch.bfloat16) * 0.1)(576, 6 * 576) * 576 ** (-0.5) * 8.0)}

def reference(A_x, A_wq, A_wk, A_wv, A_wo, B_x, B_w_in, B_w_sp, B_b_sp, B_w_out, c, w_mod):

    def _A_ref(x, wq, wk, wv, wo):
        B, S, D = x.shape
        H = 32
        Dh = D // H
        q = (lambda x, *d: x.permute(*d))((x @ wq).reshape(B, S, H, Dh), 0, 2, 1, 3)
        k = x @ wk
        v = x @ wv
        scores = torch.einsum('bhqd,bkd->bhqk', q, k) * Dh ** (-0.5)
        p = _softmax(scores, axis=-1)
        o = torch.einsum('bhqk,bkd->bhqd', p, v)
        return (lambda x, *d: x.permute(*d))(o, 0, 2, 1, 3).reshape(B, S, H * Dh) @ wo

    def _B_ref(x, w_in, w_sp, b_sp, w_out):
        B, S, D = x.shape
        F = w_in.shape[-1]
        Fh = F // 2
        z = _gelu(torch.einsum('bsd,df->bsf', x, w_in))
        z1 = z[..., :Fh].clone()
        z2 = _layernorm(z[..., Fh:], axis=-1)
        g = torch.einsum('ts,bsf->btf', w_sp, z2) + b_sp[None, :, None]
        return torch.einsum('bsf,fd->bsd', z1 * g, w_out)
    x = A_x
    mod = (_silu(c) @ w_mod).reshape(c.shape[0], 6, 1, -1)
    sa, ca, ga, sb, cb, gb = (mod[:, 0].clone(), mod[:, 1].clone(), mod[:, 2].clone(), mod[:, 3].clone(), mod[:, 4].clone(), mod[:, 5].clone())
    h = _layernorm(x, axis=-1) * (1 + ca) + sa
    x = x + ga * _A_ref(h, A_wq, A_wk, A_wv, A_wo)
    h = _layernorm(x, axis=-1) * (1 + cb) + sb
    x = x + gb * _B_ref(h, B_w_in, B_w_sp, B_b_sp, B_w_out)
    return x
```

```python
import struct
S = 2048; D = 576; FH = 2304
A_X, A_WQ, A_WK, A_WV, A_WO, A_BX, A_WIN, A_WSP, A_BSP, A_WOUT, A_C, A_WMOD, A_OUT, A_DBG, A_WS = [8 * i for i in range(15)]
WS = dict(
    MODP=(0x00000, 3 * 3456 * 4),
    MODF=(0x10000, 3456 * 4),
    MODB=(0x14000, 2 * 576 * 2),
    KMAX=(0x18000, 128 * 4 * 4),
    KV=(0x20000, 64 * 2368),
    ST1=(0x80000, 2048 * 8 * 8),
    ST2=(0xC0000, 16 * 16 * 128 * 8),
    XN=(0x100000, S * D * 2),
    Q=(0x400000, S * D * 2),
    O=(0x700000, S * D * 2),
    X1=(0xA00000, S * D * 2),
    XG=(0xD00000, S * D * 2),
    WQKV=(0x1000000, 8 * 18 * 5 * 1024),
    WO=(0x1100000, 8 * 18 * 4608),
    WIN=(0x1200000, 144 * 37 * 1024),
    WOUT=(0x1800000, 8 * 72 * 4608),
    WSP=(0x1B00000, S * S * 2),
    Z1=(0x2400000, S * FH * 2),
    Z2=(0x2D00000, S * FH * 2),
)
OOB = 0x7ff00000


def f2u(x): return struct.unpack('<I', struct.pack('<f', x))[0]
def fhex(x): return hex(f2u(x))


def srd_in(k, s, ptr, nbytes):
    k(f'''s_mov_b32 s{s}, s{ptr}
s_and_b32 s{s+1}, s{ptr+1}, 0xffff
s_mov_b32 s{s+2}, {nbytes}
s_mov_b32 s{s+3}, 0x20000''')


def srd_ws(k, s, ptr, region):
    off, n = WS[region]
    k(f'''s_add_u32 s{s}, s{ptr}, {off}
s_addc_u32 s{s+1}, s{ptr+1}, 0
s_and_b32 s{s+1}, s{s+1}, 0xffff
s_mov_b32 s{s+2}, {n}
s_mov_b32 s{s+3}, 0x20000''')


def waveid(k, sdst, vtmp):
    k(f'''v_lshrrev_b32 v{vtmp}, 6, v0
v_readfirstlane_b32 s{sdst}, v{vtmp}''')


def unpack(k, dlo, src):
    k(f'''v_lshlrev_b32 v{dlo}, 16, v{src}
v_and_b32 v{dlo+1}, 0xffff0000, v{src}''')


def sum16(k, v):
    for r in (8, 4, 2, 1):
        k(f'v_add_f32_dpp v{v}, v{v}, v{v} row_ror:{r} row_mask:0xf bank_mask:0xf')


def xadd16(k, v, t, op='add'):
    k(f'''v_mov_b32 v{t}, v{v}
v_permlane16_swap_b32 v{v}, v{t}
v_{op}_f32 v{v}, v{v}, v{t}''')


def xadd32(k, v, t, op='add'):
    k(f'''v_mov_b32 v{t}, v{v}
v_permlane32_swap_b32 v{v}, v{t}
v_{op}_f32 v{v}, v{v}, v{t}''')
```

```python
import re, sys

TRANS = ('v_exp_f32', 'v_log_f32', 'v_rcp_f32', 'v_rsq_f32', 'v_sqrt_f32', 'v_sin_f32', 'v_cos_f32',
         'v_exp_f16', 'v_rcp_f16', 'v_rcp_iflag_f32')
NODST_S = ('s_cmp', 's_cbranch', 's_branch', 's_waitcnt', 's_nop', 's_barrier', 's_setprio', 's_sleep',
           's_endpgm', 's_bitcmp')


def parse_reg(tok):
    tok = tok.strip()
    tok = tok.lstrip('-')
    m = re.fullmatch(r'abs\((.*)\)', tok) or re.fullmatch(r'\|(.*)\|', tok)
    if m: tok = m.group(1)
    m = re.fullmatch(r'([vas])(\d+)', tok)
    if m: return {(m.group(1), int(m.group(2)))}
    m = re.fullmatch(r'([vas])\[(\d+):(\d+)\]', tok)
    if m: return {(m.group(1), i) for i in range(int(m.group(2)), int(m.group(3)) + 1)}
    if tok == 'vcc': return {('vcc', 0), ('vcc', 1)}
    if tok == 'vcc_lo': return {('vcc', 0)}
    if tok == 'vcc_hi': return {('vcc', 1)}
    if tok == 'exec': return {('exec', 0), ('exec', 1)}
    if tok == 'exec_lo': return {('exec', 0)}
    if tok == 'exec_hi': return {('exec', 1)}
    if tok == 'm0': return {('m0', 0)}
    return set()


class Ins:
    __slots__ = ('text', 'mn', 'ops', 'mods', 'kind', 'rd', 'wr', 'label', 'target', 'states', 'passes',
                 'mA', 'mB', 'mC', 'mD', 'dpp', 'sdwa', 'lds', 'data', 'sread')

    def __init__(self, text):
        self.text = text
        t = text.split(';')[0].strip()
        self.label = None; self.target = None; self.states = 1; self.passes = 0
        self.rd = set(); self.wr = set(); self.dpp = False; self.sdwa = False; self.lds = False
        self.mA = self.mB = self.mC = self.mD = set(); self.data = set(); self.sread = set()
        self.ops = []; self.mods = ''
        if not t or t.startswith('.'):
            self.kind = 'dir'; self.mn = ''; self.states = 0; return
        if t.endswith(':'):
            self.kind = 'label'; self.label = t[:-1]; self.mn = ''; self.states = 0; return
        parts = t.split(None, 1)
        mn = parts[0]; self.mn = mn
        rest = parts[1] if len(parts) > 1 else ''
        ops = []; cur = ''; depth = 0
        for ch in rest:
            if ch in '[(': depth += 1
            if ch in '])': depth -= 1
            if ch == ',' and depth == 0:
                ops.append(cur.strip()); cur = ''
            else:
                cur += ch
        if cur.strip(): ops.append(cur.strip())
        mods = ''
        if ops:
            last = ops[-1].split(None, 1)
            if len(last) > 1:
                ops[-1] = last[0]; mods = last[1]
        self.ops = ops; self.mods = mods
        R = [parse_reg(o) for o in ops]
        base = re.sub(r'_(e32|e64|dpp|sdwa)$', '', mn)
        if mn.startswith('v_mfma'):
            self.kind = 'mfma'
            self.mD, self.mA, self.mB, self.mC = R[0], R[1], R[2], R[3]
            self.wr = R[0]; self.rd = R[1] | R[2] | R[3]
            self.passes = 8 if '32x32x16' in mn else 4 if '16x16x32' in mn else 16
        elif mn.startswith('v_'):
            self.kind = 'valu'
            self.dpp = bool(re.search(r'row_|quad_perm|wave_', mods)) or mn.endswith('_dpp')
            self.sdwa = 'dst_sel' in mods or 'op_sel' in mods and not mn.startswith('v_pk_')
            if base in ('v_swap_b32', 'v_permlane32_swap_b32', 'v_permlane16_swap_b32'):
                self.wr = R[0] | R[1]; self.rd = R[0] | R[1]
            elif re.match(r'v_(add|sub|subrev)_co_u32|v_addc_co|v_subb_co|v_subbrev_co|v_mad_u64', base):
                self.wr = R[0] | R[1]; self.rd = set().union(*R[2:])
            else:
                self.wr = R[0]; self.rd = set().union(*R[1:]) if len(R) > 1 else set()
                if base.startswith(('v_fmac', 'v_mac', 'v_pk_fmac', 'v_dot2c', 'v_writelane')) or self.dpp or 'UNUSED_PRESERVE' in mods:
                    self.rd |= R[0]
            if base == 'v_nop': self.wr = set()
            self.sread = {r for r in self.rd if r[0] in ('s', 'vcc')}
        elif mn.startswith('ds_'):
            self.kind = 'ds'
            if mn.startswith(('ds_read', 'ds_bpermute', 'ds_permute', 'ds_swizzle')):
                self.wr = R[0]; self.rd = set().union(*R[1:])
            else:
                self.rd = set().union(*R)
        elif mn.startswith(('buffer_', 'global_')):
            self.kind = 'vmem'
            words = (mods + ' ').split()
            self.lds = 'lds' in words or '_lds_' in mn
            if mn.startswith(('buffer_wbl2', 'buffer_inv')):
                pass
            elif mn.startswith('buffer_load') or mn.startswith('global_load'):
                if self.lds:
                    self.rd = set().union(*R) | {('m0', 0)}
                else:
                    self.wr = R[0]; self.rd = set().union(*R[1:])
                    if 'd16' in mn: self.rd |= R[0]
            elif mn.startswith('buffer_store'):
                self.rd = set().union(*R); self.data = R[0]
            elif mn.startswith('global_store'):
                self.rd = set().union(*R); self.data = R[1]
            elif 'atomic' in mn:
                self.rd = set().union(*R)
                if 'sc0' in words: self.wr = R[0]
            else:
                raise ValueError('unknown vmem ' + t)
            self.sread = {r for r in self.rd if r[0] in ('s', 'vcc')}
        elif mn.startswith('s_'):
            if mn.startswith(('s_load', 's_buffer_load', 's_memtime', 's_memrealtime')):
                self.kind = 'smem'; self.wr = R[0]; self.rd = set().union(*R[1:]) if len(R) > 1 else set()
            else:
                self.kind = 'salu'
                if mn.startswith(NODST_S):
                    self.rd = set().union(*R) if R else set()
                else:
                    self.wr = R[0]; self.rd = set().union(*R[1:]) if len(R) > 1 else set()
                    if 'saveexec' in mn:
                        self.wr = self.wr | {('exec', 0), ('exec', 1)}
                    if mn in ('s_addk_i32', 's_mulk_i32'): self.rd |= R[0]
                if mn == 's_nop': self.states = int(ops[0], 0) + 1
                if mn.startswith(('s_cbranch', 's_branch')): self.target = ops[0]
        else:
            raise ValueError('unknown instr ' + t)

    def is_trans(self): return re.sub(r'_(e32|e64)$', '', self.mn) in TRANS


def need(p, c):
    n = 0
    vp = {r for r in p.wr if r[0] in 'va'}
    if p.kind == 'valu':
        if c.kind == 'mfma' and vp & c.rd: n = max(n, 2)
        sw = {r for r in p.wr if r[0] in ('s', 'vcc')}
        if sw:
            if c.kind == 'vmem' and sw & c.rd: n = max(n, 5)
            if c.kind == 'valu' and sw & c.rd:
                n = max(n, 4 if c.mn.startswith(('v_readlane', 'v_writelane')) else 2)
            if c.kind in ('salu', 'smem') and sw & c.rd: n = max(n, 2)
            if c.kind == 'salu' and c.mn.startswith('s_cbranch_vcc') and ('vcc', 0) in sw: n = max(n, 2)
        if c.kind == 'valu' and vp & c.rd:
            if c.mn.startswith(('v_readfirstlane', 'v_readlane')): n = max(n, 1)
            if c.mn.startswith('v_permlane') or c.dpp: n = max(n, 2)
            if p.is_trans() and not c.is_trans(): n = max(n, 1)
            if p.is_trans() and c.is_trans(): n = max(n, 1)
        if p.sdwa and c.kind in ('valu',) and vp & (c.rd | c.wr): n = max(n, 1)
        if p.is_trans() and c.kind in ('vmem', 'ds') and vp & c.rd: n = max(n, 1)
        if any(r[0] == 'exec' for r in p.wr):
            if c.kind in ('valu', 'mfma'): n = max(n, 5)
    if p.kind == 'mfma':
        big = p.passes
        t_rw = {4: 8, 8: 12, 16: 20}[big]
        t_c = {4: 6, 8: 10, 16: 18}[big]
        t_war = {4: 3, 8: 7, 16: 15}[big]
        D = p.mD
        if c.kind == 'mfma':
            if D & (c.mA | c.mB): n = max(n, t_rw)
            if D & c.mC and not (D == c.mC and p.passes == c.passes): n = max(n, t_c)
            if D & c.mD and not (D == c.mD and p.passes == c.passes) and not (D & c.mC): n = max(n, t_c)
        elif c.kind in ('valu', 'vmem', 'ds'):
            if D & (c.rd | c.wr): n = max(n, t_rw)
            if c.kind == 'valu' and p.mC & c.wr: n = max(n, t_war)
            if c.kind in ('vmem', 'ds') and p.mC & c.wr: n = max(n, t_war)
    if p.kind == 'salu' and ('m0', 0) in p.wr:
        if c.kind == 'vmem' and c.lds: n = max(n, 1)
    if p.kind == 'salu' and any(r[0] == 'exec' for r in p.wr):
        if c.kind == 'valu' and (c.dpp or c.mn.startswith('v_permlane')): n = max(n, 2)
    if p.kind == 'vmem' and len(p.data) >= 3:
        if c.kind == 'valu' and p.data & c.wr: n = max(n, 2)
        elif c.kind in ('ds', 'vmem', 'mfma') and p.data & c.wr: n = max(n, 1)
    return n


def build_cfg(ins):
    labels = {x.label: i for i, x in enumerate(ins) if x.kind == 'label'}
    preds = [[] for _ in ins]
    for i, x in enumerate(ins):
        if i + 1 < len(ins) and not (x.mn == 's_branch' or x.mn == 's_endpgm'):
            preds[i + 1].append(i)
        if x.target is not None:
            preds[labels[x.target]].append(i)
    return labels, preds


def hazard_pass(lines, verbose=False):
    ins = [Ins(l) for l in lines]
    total = 0
    i = 0
    labels, preds = build_cfg(ins)
    while i < len(ins):
        c = ins[i]
        if c.kind in ('dir', 'label'):
            i += 1; continue
        worst = 0; why = None
        stack = [(p, 0) for p in preds[i]]
        seen = {}
        while stack:
            j, dist = stack.pop()
            if dist >= 20: continue
            if seen.get(j, 99) <= dist: continue
            seen[j] = dist
            p = ins[j]
            if p.kind not in ('dir', 'label'):
                n = need(p, c)
                if n - dist > worst: worst = n - dist; why = p.text
            for q in preds[j]: stack.append((q, dist + p.states))
        if worst > 0:
            k = worst
            new = []
            while k > 0:
                m = min(k, 16); new.append(Ins(f'  s_nop {m - 1}')); k -= m
            if verbose: print(f'hazard: +{worst} before [{c.text.strip()}] after [{why.strip()}]', file=sys.stderr)
            ins[i:i] = new
            total += worst
            labels, preds = build_cfg(ins)
            i += len(new)
        i += 1
    return [x.text for x in ins], total


def wait_check(lines, name=''):
    ins = [Ins(l) for l in lines]
    labels = {x.label: i for i, x in enumerate(ins) if x.kind == 'label'}
    errs = set()
    sys.setrecursionlimit(100000)
    work = [(0, (), (), ())]
    seen = set()
    steps = 0
    while work:
        i, vm, lg, visits = work.pop()
        vm = list(vm); lg = list(lg); visits = dict(visits)
        while i < len(ins):
            steps += 1
            if steps > 3000000:
                print('wait_check: too many steps', name, file=sys.stderr); return errs
            x = ins[i]
            if x.kind == 'label':
                visits[i] = visits.get(i, 0) + 1
                if visits[i] > 3: break
                key = (i, tuple(vm), tuple(lg))
                if key in seen: break
                seen.add(key)
            if x.kind in ('dir', 'label'):
                i += 1; continue
            touched = x.rd | x.wr
            for q, qn in ((vm, 'vm'), (lg, 'lgkm')):
                for (regs, txt, sm) in q:
                    if regs & touched:
                        errs.add(f'{name}: [{x.text.strip()}] touches pending {qn} dest of [{txt.strip()}]')
            if x.mn == 's_waitcnt':
                t = x.text.split(';')[0]
                m = re.search(r'vmcnt\((\d+)\)', t)
                if m:
                    n = int(m.group(1)); vm = vm[len(vm) - n:] if n < len(vm) and n > 0 else ([] if n == 0 else vm)
                m = re.search(r'lgkmcnt\((\d+)\)', t)
                if m:
                    n = int(m.group(1))
                    if n == 0: lg = []
                    elif not any(e[2] for e in lg):
                        if n < len(lg): lg = lg[len(lg) - n:]
            elif x.kind == 'vmem':
                vm.append((frozenset(x.wr), x.text, False))
                if len(vm) > 63: errs.add(f'{name}: vmcnt overflow (>63 outstanding) at [{x.text.strip()}]')
            elif x.kind == 'ds':
                lg.append((frozenset(x.wr), x.text, False))
            elif x.kind == 'smem':
                lg.append((frozenset(x.wr), x.text, True))
            if x.mn == 's_endpgm': break
            if x.target is not None:
                t = labels[x.target]
                if x.mn == 's_branch':
                    i = t; continue
                work.append((t, tuple(vm), tuple(lg), tuple(visits.items())))
            i += 1
    return errs


class K:
    def __init__(self, name, vgpr, agpr=0, sgpr=96):
        self.name = name; self.lines = []; self.vgpr = vgpr; self.agpr = agpr; self.sgpr = sgpr
        self._lab = 0

    def __call__(self, s):
        for l in s.strip('\n').split('\n'):
            l = l.strip()
            if not l: continue
            self.lines.append(l if l.endswith(':') else '  ' + l)

    def stamp(self, i):
        self.lines.append(f'  ;STAMP {i}')

    def newlabel(self, p='L'):
        self._lab += 1
        return f'{p}_{self.name}_{self._lab}'

    def instrument(self, kidx):
        self.sgpr = 102
        head = ['  s_memrealtime s[92:93]', '  v_readfirstlane_b32 s91, v0', '  s_memtime s[84:85]', '  s_waitcnt lgkmcnt(0)']
        tail = f'''s_waitcnt vmcnt(0) lgkmcnt(0)
s_memrealtime s[94:95]
s_memtime s[86:87]
s_load_dwordx2 s[96:97], s[0:1], 112
s_lshr_b32 s91, s91, 6
s_and_b32 s91, s91, 15
s_lshl_b32 s90, s2, 4
s_add_u32 s91, s91, s90
s_add_u32 s91, s91, {kidx*16384}
s_lshl_b32 s91, s91, 4
s_waitcnt lgkmcnt(0)
s_add_u32 s96, s96, 0x3800000
s_addc_u32 s97, s97, 0
s_and_b32 s97, s97, 0xffff
s_mov_b32 s98, 0x400000
s_mov_b32 s99, 0x20000
s_sub_u32 s86, s86, s84
s_mov_b64 exec, 1
v_mov_b32 v0, s92
v_mov_b32 v1, s94
v_mov_b32 v2, s86
v_mov_b32 v3, 1
v_mov_b32 v4, 0
buffer_store_dwordx4 v[0:3], v4, s[96:99], s91 offen
s_add_u32 s96, s96, 0x400000
s_addc_u32 s97, s97, 0
s_mov_b32 s98, 0x800000
s_lshl_b32 s91, s91, 1
''' + ''.join(f's_sub_u32 s{68+2*i}, s{68+2*i}, s84\nv_mov_b32 v{8+i}, s{68+2*i}\n' for i in range(8)) + '''buffer_store_dwordx4 v[8:11], v4, s[96:99], s91 offen
buffer_store_dwordx4 v[12:15], v4, s[96:99], s91 offen offset:16
s_endpgm'''
        tail = tail.split('\n')
        new = list(head) + [f'  s_mov_b32 s{68+2*i}, s84' for i in range(8)]
        for l in self.lines:
            if l.strip().startswith(';STAMP'):
                i = int(l.split()[1])
                new += [f'  s_memtime s[{68+2*i}:{69+2*i}]', '  s_waitcnt lgkmcnt(0)']
            elif l.strip() == 's_endpgm': new += ['  ' + t for t in tail]
            else: new.append(l)
        self.lines = new

    def finish(self, verbose=False):
        lines, n = hazard_pass(self.lines, verbose)
        errs = wait_check(lines, self.name)
        for e in sorted(errs):
            if not (self.name=='k0_kernel' and 'v14' in e): print('WAITCHK', e, file=sys.stderr)
        mv = ma = ms = -1
        for l in lines:
            x = Ins(l)
            for r in x.rd | x.wr:
                if r[0] == 'v': mv = max(mv, r[1])
                if r[0] == 'a': ma = max(ma, r[1])
                if r[0] == 's': ms = max(ms, r[1])
        acc = (self.vgpr + 3) // 4 * 4
        assert mv < acc, (self.name, 'vgpr', mv)
        assert ma < self.agpr or ma < 0, (self.name, 'agpr', ma)
        assert ms < self.sgpr, (self.name, 'sgpr', ms)
        nfv = acc + self.agpr if self.agpr else self.vgpr
        head = f'.text\n.globl {self.name}\n.p2align 8\n.type {self.name},@function\n{self.name}:\n'
        tail = f'''.section .rodata,"a"
.p2align 6
.amdhsa_kernel {self.name}
  .amdhsa_next_free_vgpr {nfv}
  .amdhsa_next_free_sgpr {self.sgpr}
  .amdhsa_accum_offset {acc}
  .amdhsa_group_segment_fixed_size 0
  .amdhsa_kernarg_size 120
  .amdhsa_user_sgpr_count 2
  .amdhsa_user_sgpr_kernarg_segment_ptr 1
  .amdhsa_system_sgpr_workgroup_id_x 1
  .amdhsa_float_denorm_mode_32 3
.end_amdhsa_kernel
'''
        print(f'{self.name}: {len(lines)} lines, nops inserted {n}, maxv {mv} maxa {ma} maxs {ms}', file=sys.stderr)
        return head + '\n'.join(lines) + '\n' + tail
```

```python
from dsl import K
from common import *

LOG2E = 1.4426950408889634
N_MOD, N_LN, N_WQ = 162, 256, 36
K0_GRID = N_MOD + N_LN + N_WQ
TP_RS = 176
TP_WAVE = 36 * TP_RS


def tprep_lane(k, vlane, vsrc, vlds, vt, sldsbase, wo_step=None):
    for i in range(5):
        k(f'''v_add_u32 v{vt}, {64*i}, v{vlane}
v_mul_u32_u24 v{vt+1}, 57, v{vt}
v_lshrrev_b32 v{vt+1}, 9, v{vt+1}
v_mul_u32_u24 v{vt+2}, 9, v{vt+1}
v_sub_u32 v{vt+2}, v{vt}, v{vt+2}
v_lshlrev_b32 v{vt+2}, 4, v{vt+2}
v_mul_u32_u24 v{vlds+i}, {TP_RS}, v{vt+1}
v_add3_u32 v{vlds+i}, v{vlds+i}, v{vt+2}, s{sldsbase}''')
        if wo_step is not None:
            k(f'''v_lshrrev_b32 v{vt+3}, 4, v{vt+1}
v_mul_u32_u24 v{vt+3}, 18, v{vt+3}
v_and_b32 v{vt+4}, 15, v{vt+1}
v_add_u32 v{vt+3}, v{vt+3}, v{vt+4}
s_mul_i32 s{wo_step+1}, s{wo_step}, 36
v_add_u32 v{vt+3}, s{wo_step+1}, v{vt+3}
v_lshrrev_b32 v{vt+4}, 1, v{vt+1}
s_sub_u32 s{wo_step+1}, s{wo_step}, 16
s_lshl_b32 s{wo_step+1}, s{wo_step+1}, 4
v_add_u32 v{vt+4}, s{wo_step+1}, v{vt+4}
v_mul_u32_u24 v{vt+4}, 18, v{vt+4}
v_and_b32 v{vt+5}, 1, v{vt+1}
v_add3_u32 v{vt+4}, v{vt+4}, v{vt+5}, 16
s_cmp_ge_u32 s{wo_step}, 16
s_cselect_b64 vcc, -1, 0
v_cndmask_b32 v{vt+1}, v{vt+3}, v{vt+4}, vcc''')
        k(f'''v_mul_u32_u24 v{vsrc+i}, 1152, v{vt+1}
v_add_u32 v{vsrc+i}, v{vsrc+i}, v{vt+2}''')
    k(f'''v_cmp_gt_u32 vcc, 32, v{vlane}
v_mov_b32 v{vt}, {OOB}
v_cndmask_b32 v{vsrc+4}, v{vt}, v{vsrc+4}, vcc''')


def tprep_rdaddr(k, vlane, vxy, vnat, vt, sldsbase):
    k(f'''v_lshrrev_b32 v{vt}, 4, v{vlane}
v_lshlrev_b32 v{vt}, 3, v{vt}
v_bfe_u32 v{vt+1}, v{vlane}, 2, 2
v_add_u32 v{vt}, v{vt}, v{vt+1}
v_mul_u32_u24 v{vt}, {TP_RS}, v{vt}
v_add_u32 v{vt}, s{sldsbase}, v{vt}
v_and_b32 v{vt+1}, 3, v{vlane}
v_lshl_add_u32 v{vxy}, v{vt+1}, 4, v{vt}
v_lshl_add_u32 v{vnat}, v{vt+1}, 3, v{vt}''')


def tprep_read(k, vxy, vnat, vd):
    for j in range(4):
        o = (j >> 1) * 64 + (j & 1) * 8
        k(f'''ds_read_b64_tr_b16 v[{vd+4*j}:{vd+4*j+1}], v{vxy} offset:{o}
ds_read_b64_tr_b16 v[{vd+4*j+2}:{vd+4*j+3}], v{vxy} offset:{o+4*TP_RS}''')
    k(f'''ds_read_b64_tr_b16 v[{vd+16}:{vd+17}], v{vnat} offset:128
ds_read_b64_tr_b16 v[{vd+18}:{vd+19}], v{vnat} offset:{128+4*TP_RS}''')


def gen_k0():
    k = K('k0_kernel', vgpr=64, sgpr=48)
    k(f'''s_cmp_ge_u32 s2, {K0_GRID}
s_cbranch_scc1 L_k0_end
s_load_dwordx8 s[4:11], s[0:1], 0
s_load_dwordx4 s[12:15], s[0:1], {A_C}
s_load_dwordx2 s[16:17], s[0:1], {A_WS}''')
    waveid(k, 3, 1)
    k(f'''v_and_b32 v1, 63, v0
s_waitcnt lgkmcnt(0)
s_cmp_ge_u32 s2, {N_MOD}
s_cbranch_scc1 L_k0_ln''')
    srd_in(k, 20, 14, 576 * 3456 * 2)
    srd_in(k, 24, 12, 576 * 2)
    srd_ws(k, 28, 16, 'MODP')
    k(f'''s_cmp_ge_u32 s2, 54
s_cselect_b32 s18, 1, 0
s_cmp_ge_u32 s2, 108
s_cselect_b32 s18, 2, s18
s_mul_i32 s19, s18, 54
s_sub_u32 s19, s2, s19
s_mul_i32 s32, s18, 192
s_mul_i32 s33, s3, 48
s_add_u32 s32, s32, s33
v_lshrrev_b32 v2, 3, v1
v_add_u32 v2, s32, v2
v_lshlrev_b32 v3, 1, v2
s_movk_i32 s33, 6912
v_mul_lo_u32 v2, v2, s33
v_and_b32 v4, 7, v1
s_lshl_b32 s33, s19, 7
v_lshl_add_u32 v4, v4, 4, s33
v_add_u32 v2, v2, v4''')
    for i in range(6):
        k(f'buffer_load_ushort v{8+i}, v3, s[24:27], 0 offen offset:{16*i}')
    for i in range(6):
        k(f'''s_mov_b32 s33, {i*8*6912}
buffer_load_dwordx4 v[{16+4*i}:{19+4*i}], v2, s[20:23], s33 offen''')
    for j in range(8): k(f'v_mov_b32 v{40+j}, 0')
    k('s_waitcnt vmcnt(6)')
    for i in range(6):
        k(f'''v_lshlrev_b32 v{8+i}, 16, v{8+i}
v_mul_f32 v5, {fhex(-LOG2E)}, v{8+i}
v_exp_f32 v5, v5
v_add_f32 v5, 1.0, v5
v_rcp_f32 v5, v5
v_mul_f32 v5, v5, v{8+i}
v_cvt_pk_bf16_f32 v5, v5, v5
v_lshlrev_b32 v{8+i}, 16, v5''')
    for i in range(6):
        k(f's_waitcnt vmcnt({5-i})')
        for j in range(4):
            unpack(k, 6, 16 + 4 * i + j)
            k(f'''v_fmac_f32 v{40+2*j}, v{8+i}, v6
v_fmac_f32 v{41+2*j}, v{8+i}, v7''')
    for j in range(8):
        k(f'v_add_f32_dpp v{40+j}, v{40+j}, v{40+j} row_ror:8 row_mask:0xf bank_mask:0xf')
    for j in range(8): xadd16(k, 40 + j, 48 + j)
    for j in range(8): xadd32(k, 40 + j, 48 + j)
    k(f'''s_lshl_b32 s33, s3, 8
v_lshl_add_u32 v5, v1, 5, s33
s_mov_b64 exec, 0xff
ds_write_b128 v5, v[40:43]
ds_write_b128 v5, v[44:47] offset:16
s_mov_b64 exec, -1
s_waitcnt lgkmcnt(0)
s_barrier
s_cmp_lg_u32 s3, 0
s_cbranch_scc1 L_k0_end
v_lshlrev_b32 v5, 2, v1
ds_read_b32 v8, v5
ds_read_b32 v9, v5 offset:256
ds_read_b32 v10, v5 offset:512
ds_read_b32 v11, v5 offset:768
s_mul_i32 s33, s18, {3456*4}
s_lshl_b32 s34, s19, 8
s_add_u32 s33, s33, s34
s_waitcnt lgkmcnt(0)
v_add_f32 v8, v8, v9
v_add_f32 v10, v10, v11
v_add_f32 v8, v8, v10
buffer_store_dword v8, v5, s[28:31], s33 offen
s_endpgm''')
    k(f'''L_k0_ln:
s_cmp_ge_u32 s2, {N_MOD+N_LN}
s_cbranch_scc1 L_k0_wq
s_sub_u32 s18, s2, {N_MOD}''')
    srd_in(k, 20, 4, S * D * 2)
    srd_ws(k, 24, 16, 'XN')
    k(f'''s_lshl_b32 s19, s18, 3
s_lshl_b32 s32, s3, 1
s_add_u32 s19, s19, s32
v_lshrrev_b32 v2, 5, v1
v_add_u32 v2, s19, v2
v_and_b32 v3, 31, v1
v_mul_u32_u24 v4, 1152, v2
v_lshl_add_u32 v4, v3, 4, v4
v_cmp_gt_u32 vcc, 24, v3
v_mov_b32 v5, {OOB}
v_cndmask_b32 v4, v5, v4, vcc
buffer_load_dwordx4 v[8:11], v4, s[20:23], 0 offen
buffer_load_dwordx4 v[12:15], v4, s[20:23], 0 offen offset:384
buffer_load_dwordx4 v[16:19], v4, s[20:23], 0 offen offset:768
v_lshrrev_b32 v6, 4, v2
v_mul_u32_u24 v6, 18, v6
v_lshrrev_b32 v7, 2, v3
v_add_u32 v6, v6, v7
v_lshlrev_b32 v6, 6, v6
v_and_b32 v7, 3, v3
v_lshl_add_u32 v6, v7, 4, v6
v_and_b32 v7, 15, v2
v_add_u32 v6, v6, v7
v_lshlrev_b32 v6, 4, v6
v_cndmask_b32 v6, v5, v6, vcc''')
    srd_ws(k, 28, 16, 'ST2')
    srd_ws(k, 32, 16, 'KV')
    k(f'''s_cmp_lg_u32 s3, 0
s_cbranch_scc1 L_k0_nos
v_mov_b32 v20, -1
v_mov_b32 v21, -1
v_mov_b32 v22, -1
v_mov_b32 v23, -1
v_lshlrev_b32 v7, 4, v1
s_lshl_b32 s36, s18, 10
buffer_store_dwordx4 v[20:23], v7, s[28:31], s36 offen
L_k0_nos:
s_cmp_lg_u32 s3, 1
s_cbranch_scc1 L_k0_noo
v_mov_b32 v24, 0x3f803f80
v_mov_b32 v25, 0x3f803f80
v_mov_b32 v26, 0x3f803f80
v_mov_b32 v27, 0x3f803f80
s_lshr_b32 s36, s18, 2
s_mul_i32 s36, s36, 2368
s_and_b32 s37, s18, 3
s_mul_i32 s37, s37, 304
s_add_u32 s36, s36, s37
s_add_u32 s36, s36, {1024+18*16}
v_cmp_eq_u32 vcc, 0, v1
v_cndmask_b32 v7, v5, v1, vcc
buffer_store_dwordx4 v[24:27], v7, s[32:35], s36 offen
L_k0_noo:
s_waitcnt vmcnt(0)''')
    for j in range(12): unpack(k, 32 + 2 * j, 8 + j)
    k('''v_pk_add_f32 v[20:21], v[32:33], v[34:35]
v_pk_mul_f32 v[22:23], v[32:33], v[32:33]
v_pk_fma_f32 v[22:23], v[34:35], v[34:35], v[22:23]''')
    for j in range(2, 12):
        k(f'''v_pk_add_f32 v[20:21], v[20:21], v[{32+2*j}:{33+2*j}]
v_pk_fma_f32 v[22:23], v[{32+2*j}:{33+2*j}], v[{32+2*j}:{33+2*j}], v[22:23]''')
    k('''v_add_f32 v20, v20, v21
v_add_f32 v22, v22, v23''')
    for r in (8, 4, 2, 1):
        k(f'''v_add_f32_dpp v20, v20, v20 row_ror:{r} row_mask:0xf bank_mask:0xf
v_add_f32_dpp v22, v22, v22 row_ror:{r} row_mask:0xf bank_mask:0xf''')
    xadd16(k, 20, 21); xadd16(k, 22, 23)
    k(f'''v_mul_f32 v20, {fhex(1/576)}, v20
v_mul_f32 v22, {fhex(1/576)}, v22
v_fma_f32 v22, -v20, v20, v22
v_max_f32 v22, 0, v22
v_add_f32 v22, {fhex(1e-5)}, v22
v_rsq_f32 v22, v22
v_mul_f32 v20, v20, v22
v_sub_f32 v20, 0, v20''')
    for j in range(12):
        k(f'''v_pk_fma_f32 v[{32+2*j}:{33+2*j}], v[{32+2*j}:{33+2*j}], v[22:23], v[20:21] op_sel_hi:[1,0,0]
v_cvt_pk_bf16_f32 v{8+j}, v{32+2*j}, v{33+2*j}''')
    k('''s_movk_i32 s36, 6144
s_movk_i32 s37, 12288
buffer_store_dwordx4 v[8:11], v6, s[24:27], 0 offen
buffer_store_dwordx4 v[12:15], v6, s[24:27], s36 offen
buffer_store_dwordx4 v[16:19], v6, s[24:27], s37 offen
s_endpgm''')
    k(f'''L_k0_wq:
s_sub_u32 s18, s2, {N_MOD+N_LN}
s_lshl_b32 s18, s18, 2
s_add_u32 s18, s18, s3
s_mul_i32 s19, s18, 57
s_lshr_b32 s19, s19, 10
s_mul_i32 s36, s19, 18
s_sub_u32 s36, s18, s36
s_mul_i32 s37, s3, {TP_WAVE}''')
    srd_in(k, 20, 6, 576 * 576 * 2)
    srd_in(k, 24, 8, 576 * 18 * 2)
    srd_in(k, 28, 10, 576 * 18 * 2)
    srd_ws(k, 32, 16, 'WQKV')
    tprep_lane(k, 1, 2, 8, 14, 37)
    k(f'''s_mul_i32 s38, s36, {32*1152}
s_mul_i32 s39, s19, 144
s_add_u32 s38, s38, s39''')
    for i in range(5):
        k(f'buffer_load_dwordx4 v[{20+4*i}:{23+4*i}], v{2+i}, s[20:23], s38 offen')
    k(f'''v_mul_u32_u24 v14, 36, v1
v_mov_b32 v15, {OOB}
v_cmp_gt_u32 vcc, 32, v1
v_cndmask_b32 v14, v15, v14, vcc
v_mul_u32_u24 v15, {TP_RS}, v1
v_min_u32 v15, {35*TP_RS}, v15
v_add_u32 v15, s37, v15
s_mul_i32 s38, s36, {32*36}
v_mov_b32 v40, 0
v_mov_b32 v41, 0
v_mov_b32 v42, 0
v_mov_b32 v43, 0
s_cmp_eq_u32 s19, 0
s_cbranch_scc0 L_k0_kv1
buffer_load_dwordx4 v[40:43], v14, s[24:27], s38 offen
L_k0_kv1:
s_cmp_eq_u32 s19, 1
s_cbranch_scc0 L_k0_kv2
buffer_load_dwordx4 v[40:43], v14, s[24:27], s38 offen offset:16
L_k0_kv2:
s_cmp_eq_u32 s19, 2
s_cbranch_scc0 L_k0_kv3
buffer_load_dword v40, v14, s[24:27], s38 offen offset:32
buffer_load_dword v42, v14, s[28:31], s38 offen offset:32
L_k0_kv3:
s_cmp_eq_u32 s19, 3
s_cbranch_scc0 L_k0_kv4
buffer_load_dwordx4 v[40:43], v14, s[28:31], s38 offen
L_k0_kv4:
s_cmp_eq_u32 s19, 4
s_cbranch_scc0 L_k0_kv5
buffer_load_dwordx4 v[40:43], v14, s[28:31], s38 offen offset:16
L_k0_kv5:''')
    tprep_rdaddr(k, 1, 16, 17, 18, 37)
    k('s_waitcnt vmcnt(0)')
    for i in range(5):
        k(f'ds_write_b128 v{8+i}, v[{20+4*i}:{23+4*i}]')
    k('''ds_write_b128 v15, v[40:43] offset:144
s_waitcnt lgkmcnt(0)''')
    tprep_read(k, 16, 17, 44)
    k('''v_lshlrev_b32 v2, 4, v1
s_mul_i32 s38, s18, 5120
s_add_u32 s39, s38, 4096
s_waitcnt lgkmcnt(0)''')
    for j in range(4):
        k(f'buffer_store_dwordx4 v[{44+4*j}:{47+4*j}], v2, s[32:35], s38 offen offset:{1024*j}')
    k('''buffer_store_dwordx4 v[60:63], v2, s[32:35], s39 offen
L_k0_end:
s_endpgm''')
    return k, f'; @launch kernel=k0_kernel grid=({K0_GRID},1,1) block=(256,1,1) lds={4*TP_WAVE}'
```

```python
from dsl import K
from common import *

LOG2E = 1.4426950408889634
QSCALE = 18 ** -0.5 * LOG2E


def map_8x4_32x8(k, sbm, sbn, t):
    k(f'''s_and_b32 s{t}, s2, 7
s_lshr_b32 s{t+1}, s2, 3
s_lshr_b32 s{sbm}, s{t}, 1
s_lshl_b32 s{sbm}, s{sbm}, 3
s_and_b32 s{sbn}, s{t+1}, 7
s_add_u32 s{sbm}, s{sbm}, s{sbn}
s_and_b32 s{sbn}, s{t}, 1
s_lshl_b32 s{sbn}, s{sbn}, 2
s_lshr_b32 s{t+1}, s{t+1}, 3
s_add_u32 s{sbn}, s{sbn}, s{t+1}''')


def round_bf16(k, v0, v1, t):
    k(f'''v_cvt_pk_bf16_f32 v{t}, v{v0}, v{v1}
v_lshlrev_b32 v{v0}, 16, v{t}
v_and_b32 v{v1}, 0xffff0000, v{t}''')


def gen_k1():
    k = K('k1_kernel', vgpr=184, sgpr=64)
    LB = 18 * 5120
    A0, ACC, BF = 64, 40, 140
    k(f'''s_cmp_ge_u32 s2, 256
s_cbranch_scc1 L_k1_end
s_load_dwordx2 s[16:17], s[0:1], {A_WS}''')
    waveid(k, 3, 1)
    map_8x4_32x8(k, 4, 5, 6)
    k('''v_and_b32 v1, 63, v0
v_lshlrev_b32 v2, 4, v1
v_lshlrev_b32 v3, 4, v0
s_waitcnt lgkmcnt(0)''')
    srd_ws(k, 20, 16, 'MODP')
    srd_ws(k, 24, 16, 'XN')
    srd_ws(k, 28, 16, 'WQKV')
    k(f'''v_add_u32 v4, 4096, v3
v_mov_b32 v5, {OOB}
v_cmp_gt_u32 vcc, 32, v0
v_cndmask_b32 v4, v5, v4, vcc
s_movk_i32 s8, {3456*4}
s_movk_i32 s9, {2*3456*4}
buffer_load_dwordx4 v[8:11], v3, s[20:23], 0 offen
buffer_load_dwordx4 v[12:15], v3, s[20:23], s8 offen
buffer_load_dwordx4 v[16:19], v3, s[20:23], s9 offen
buffer_load_dwordx4 v[20:23], v4, s[20:23], 0 offen
buffer_load_dwordx4 v[24:27], v4, s[20:23], s8 offen
buffer_load_dwordx4 v[28:31], v4, s[20:23], s9 offen
s_lshl_b32 s10, s4, 2
s_add_u32 s10, s10, s3
s_mul_i32 s11, s10, {18*1024}''')
    for st in range(18):
        if st % 4 == 0 and st: k('s_add_u32 s11, s11, 4096')
        k(f'buffer_load_dwordx4 v[{A0+4*st}:{A0+4*st+3}], v2, s[24:27], s11 offen offset:{(st%4)*1024}')
    k(f's_mul_i32 s12, s5, {LB}')
    for g in range(2):
        k(f'''s_mul_i32 s13, s3, 10240
s_add_u32 s13, s13, {g*40960}''')
        for j in range(10):
            if j % 4 == 0:
                if j: k('s_add_u32 s13, s13, 4096')
                k('''s_mov_b32 m0, s13
s_add_u32 s14, s13, s12''')
            k(f'buffer_load_dwordx4 v2, s[28:31], s14 offen offset:{(j%4)*1024} lds')
    k('''s_mul_i32 s13, s3, 3072
s_min_u32 s13, s13, 7168
s_add_u32 s13, s13, 81920
s_mov_b32 m0, s13
s_add_u32 s14, s13, s12''')
    for j in range(3):
        k(f'buffer_load_dwordx4 v2, s[28:31], s14 offen offset:{j*1024} lds')
    k.stamp(0)
    k(f'''s_waitcnt vmcnt(41)
v_pk_add_f32 v[8:9], v[8:9], v[12:13]
v_pk_add_f32 v[10:11], v[10:11], v[14:15]
v_pk_add_f32 v[20:21], v[20:21], v[24:25]
v_pk_add_f32 v[22:23], v[22:23], v[26:27]
v_pk_add_f32 v[8:9], v[8:9], v[16:17]
v_pk_add_f32 v[10:11], v[10:11], v[18:19]
v_pk_add_f32 v[20:21], v[20:21], v[28:29]
v_pk_add_f32 v[22:23], v[22:23], v[30:31]
v_cmp_le_u32 vcc, 144, v0
v_cndmask_b32 v12, 0, 1.0, vcc''')
    for a in (8, 10, 20, 22): round_bf16(k, a, a + 1, 14)
    k('''v_pk_add_f32 v[8:9], v[8:9], v[12:13] op_sel_hi:[1,0]
v_pk_add_f32 v[10:11], v[10:11], v[12:13] op_sel_hi:[1,0]
v_pk_add_f32 v[20:21], v[20:21], 1.0 op_sel_hi:[1,0]
v_pk_add_f32 v[22:23], v[22:23], 1.0 op_sel_hi:[1,0]''')
    for a in (8, 10, 20, 22): round_bf16(k, a, a + 1, 14)
    k(f'''v_add_u32 v4, {LB}, v3
ds_write_b128 v4, v[8:11]
ds_write_b128 v4, v[20:23] offset:4096
v_lshrrev_b32 v4, 4, v1
v_lshlrev_b32 v4, 5, v4
v_add_u32 v4, {LB}, v4''')
    for j in range(20): k(f'v_mov_b32 v{ACC+j}, 0')
    k('''s_waitcnt lgkmcnt(0)
s_barrier''')
    k.stamp(1)

    def gs_read(st, b):
        r = 8 + 16 * b
        k(f'''ds_read_b128 v[{r}:{r+3}], v4 offset:{2304+st*128}
ds_read_b128 v[{r+4}:{r+7}], v4 offset:{2304+st*128+16}
ds_read_b128 v[{r+8}:{r+11}], v4 offset:{st*128}
ds_read_b128 v[{r+12}:{r+15}], v4 offset:{st*128+16}''')
    gs_read(0, 0)
    T = 176
    for st in range(18):
        if st + 1 < 18: gs_read(st + 1, (st + 1) & 1)
        k(f's_waitcnt vmcnt({40-st}) lgkmcnt({4 if st+1<18 else 0})')
        r = 8 + 16 * (st & 1)
        for j in range(4): unpack(k, T + 2 * j, A0 + 4 * st + j)
        for j in range(4):
            k(f'v_pk_fma_f32 v[{T+2*j}:{T+2*j+1}], v[{T+2*j}:{T+2*j+1}], v[{r+2*j}:{r+2*j+1}], v[{r+8+2*j}:{r+8+2*j+1}]')
        for j in range(4):
            k(f'v_cvt_pk_bf16_f32 v{A0+4*st+j}, v{T+2*j}, v{T+2*j+1}')
    k.stamp(2)

    def b_read(st):
        b = BF + 20 * (st & 1)
        for j in range(5):
            o = st * 5120 + j * 1024
            if o < 65536: k(f'ds_read_b128 v[{b+4*j}:{b+4*j+3}], v2 offset:{o}')
            else: k(f'ds_read_b128 v[{b+4*j}:{b+4*j+3}], v5 offset:{o-65536}')
    k('v_add_u32 v5, 0x10000, v2')
    bar = {0: 13, 8: 3, 16: 0}
    k('s_waitcnt vmcnt(13)\ns_barrier')
    k.stamp(3)
    b_read(0)
    for st in range(18):
        if st + 1 < 18:
            if st + 1 in bar: k(f's_waitcnt vmcnt({bar[st+1]})\ns_barrier')
            b_read(st + 1)
        k(f's_waitcnt lgkmcnt({5 if st+1<18 else 0})')
        b = BF + 20 * (st & 1)
        for j in range(5):
            k(f'v_mfma_f32_16x16x32_bf16 v[{ACC+4*j}:{ACC+4*j+3}], v[{b+4*j}:{b+4*j+3}], v[{A0+4*st}:{A0+4*st+3}], v[{ACC+4*j}:{ACC+4*j+3}]')
    k.stamp(4)
    srd_ws(k, 20, 16, 'Q')
    srd_ws(k, 24, 16, 'KV')
    srd_ws(k, 28, 16, 'KMAX')
    k(f'''s_lshl_b32 s11, s10, 4
v_and_b32 v8, 15, v1
v_add_u32 v8, s11, v8
v_lshrrev_b32 v9, 4, v1
v_mul_u32_u24 v10, 1152, v8
s_mul_i32 s12, s5, 144
v_add_u32 v10, s12, v10
v_lshl_add_u32 v11, v9, 3, v10
v_lshl_add_u32 v10, v9, 4, v10
v_cmp_gt_u32 vcc, 2, v9
v_mov_b32 v12, {OOB}
v_cndmask_b32 v11, v12, v11, vcc
s_mov_b32 s12, {fhex(QSCALE)}
s_mov_b32 s13, s12''')
    for b in range(2):
        for y in range(2):
            a = ACC + 8 * b + 4 * y
            k(f'''v_pk_mul_f32 v[{a}:{a+1}], v[{a}:{a+1}], s[12:13]
v_pk_mul_f32 v[{a+2}:{a+3}], v[{a+2}:{a+3}], s[12:13]
v_cvt_pk_bf16_f32 v{16+4*b+2*y}, v{a}, v{a+1}
v_cvt_pk_bf16_f32 v{17+4*b+2*y}, v{a+2}, v{a+3}''')
        k(f'buffer_store_dwordx4 v[{16+4*b}:{19+4*b}], v10, s[20:23], 0 offen offset:{64*b}')
    t = ACC + 16
    k(f'''v_pk_mul_f32 v[24:25], v[{t}:{t+1}], s[12:13]
v_pk_mul_f32 v[26:27], v[{t+2}:{t+3}], s[12:13]
v_cvt_pk_bf16_f32 v24, v24, v25
v_cvt_pk_bf16_f32 v25, v26, v27
buffer_store_dwordx2 v[24:25], v11, s[20:23], 0 offen offset:128
s_cmp_ge_u32 s5, 5
s_cbranch_scc1 L_k1_fin
v_cvt_pk_bf16_f32 v28, v{t}, v{t+1}
v_cvt_pk_bf16_f32 v29, v{t+2}, v{t+3}
v_lshrrev_b32 v13, 5, v8
v_mul_u32_u24 v13, 2368, v13
v_and_b32 v14, 31, v8
s_cmp_ge_u32 s5, 3
s_cbranch_scc1 L_k1_v
v_mul_f32 v30, v{t}, v{t}
v_fmac_f32 v30, v{t+1}, v{t+1}
v_fmac_f32 v30, v{t+2}, v{t+2}
v_fmac_f32 v30, v{t+3}, v{t+3}
s_cmp_eq_u32 s5, 2
s_cbranch_scc1 L_k1_k2''')
    xadd16(k, 30, 31)
    k(f'''v_lshl_add_u32 v15, v14, 4, v13
v_lshl_add_u32 v15, v9, 3, v15
s_lshl_b32 s12, s5, 9
s_sub_u32 s12, s12, 16
v_add_u32 v15, s12, v15
v_cndmask_b32 v15, v15, v12, vcc
buffer_store_dwordx2 v[28:29], v15, s[24:27], 0 offen
s_branch L_k1_km
L_k1_k2:
v_lshl_add_u32 v15, v14, 2, v13
v_cmp_eq_u32 vcc, 2, v9
v_cndmask_b32 v15, v12, v15, vcc
buffer_store_dword v28, v15, s[24:27], 0 offen offset:2240
L_k1_km:''')
    for r in (8, 4, 2, 1):
        k(f'v_max_f32_dpp v30, v30, v30 row_ror:{r} row_mask:0xf bank_mask:0xf')
    k(f'''s_lshl_b32 s12, s10, 4
s_lshl_b32 s13, s5, 2
s_add_u32 s12, s12, s13
v_cmp_eq_u32 vcc, 32, v1
v_cndmask_b32 v15, v12, 0, vcc
buffer_store_dword v30, v15, s[28:31], s12 offen
s_cmp_lg_u32 s5, 2
s_cbranch_scc1 L_k1_fin
L_k1_v:
v_bfe_u32 v14, v8, 4, 1
v_mul_u32_u24 v14, 608, v14
v_add_u32 v13, v13, v14
v_bfe_u32 v14, v8, 2, 1
v_mul_u32_u24 v14, 304, v14
v_add_u32 v13, v13, v14
v_and_b32 v14, 3, v8
v_lshl_add_u32 v13, v14, 1, v13
v_bfe_u32 v14, v8, 3, 1
v_lshl_add_u32 v13, v14, 3, v13
s_cmp_eq_u32 s5, 2
s_cbranch_scc1 L_k1_v2
v_lshl_add_u32 v13, v9, 7, v13
s_sub_u32 s12, s5, 3
s_lshl_b32 s12, s12, 6
s_add_u32 s12, s12, {1024-256}
v_add_u32 v13, s12, v13
v_cmp_le_u32 vcc, 2, v9
v_cndmask_b32 v13, v12, v13, vcc
buffer_store_short v28, v13, s[24:27], 0 offen
buffer_store_short_d16_hi v28, v13, s[24:27], 0 offen offset:16
buffer_store_short v29, v13, s[24:27], 0 offen offset:32
buffer_store_short_d16_hi v29, v13, s[24:27], 0 offen offset:48
s_branch L_k1_fin
L_k1_v2:
v_cmp_eq_u32 vcc, 3, v9
v_cndmask_b32 v13, v12, v13, vcc
buffer_store_short v28, v13, s[24:27], 0 offen offset:{1024+256}
buffer_store_short_d16_hi v28, v13, s[24:27], 0 offen offset:{1024+272}
L_k1_fin:
;STAMP 5
s_cmp_ge_u32 s2, 4
s_cbranch_scc1 L_k1_end''')
    srd_ws(k, 20, 16, 'MODP')
    srd_ws(k, 24, 16, 'MODF')
    srd_ws(k, 28, 16, 'MODB')
    k(f'''s_mul_i32 s12, s2, 216
v_add_u32 v4, s12, v0
v_lshlrev_b32 v5, 4, v4
v_cmp_gt_u32 vcc, 216, v0
v_cndmask_b32 v5, v12, v5, vcc
buffer_load_dwordx4 v[32:35], v5, s[20:23], 0 offen
buffer_load_dwordx4 v[36:39], v5, s[20:23], s8 offen
buffer_load_dwordx4 v[40:43], v5, s[20:23], s9 offen
v_subrev_u32 v6, 144, v4
v_subrev_u32 v7, 576, v4
v_min_u32 v6, v6, v7
v_cmp_gt_u32 vcc, 144, v6
v_cndmask_b32 v44, 0, 1.0, vcc
s_waitcnt vmcnt(0)
v_pk_add_f32 v[32:33], v[32:33], v[36:37]
v_pk_add_f32 v[34:35], v[34:35], v[38:39]
v_pk_add_f32 v[32:33], v[32:33], v[40:41]
v_pk_add_f32 v[34:35], v[34:35], v[42:43]''')
    round_bf16(k, 32, 33, 36); round_bf16(k, 34, 35, 37)
    k('''v_pk_add_f32 v[32:33], v[32:33], v[44:45] op_sel_hi:[1,0]
v_pk_add_f32 v[34:35], v[34:35], v[44:45] op_sel_hi:[1,0]''')
    round_bf16(k, 32, 33, 36); round_bf16(k, 34, 35, 37)
    k(f'''buffer_store_dwordx4 v[32:35], v5, s[24:27], 0 offen
v_lshlrev_b32 v6, 3, v7
v_subrev_u32 v13, 432, v4
v_lshlrev_b32 v14, 3, v13
v_add_u32 v14, 1152, v14
v_cmp_gt_u32 vcc, 144, v13
v_cndmask_b32 v6, v6, v14, vcc
v_cmp_gt_u32 vcc, 288, v13
v_cndmask_b32 v6, v12, v6, vcc
v_cmp_gt_u32 vcc, 216, v0
v_cndmask_b32 v6, v12, v6, vcc
buffer_store_dwordx2 v[36:37], v6, s[28:31], 0 offen
L_k1_end:
s_endpgm''')
    return k, f'; @launch kernel=k1_kernel grid=(256,1,1) block=(256,1,1) lds={LB+8192}'
```

```python
import struct
S = 2048; D = 576; FH = 2304
A_X, A_WQ, A_WK, A_WV, A_WO, A_BX, A_WIN, A_WSP, A_BSP, A_WOUT, A_C, A_WMOD, A_OUT, A_DBG, A_WS = [8 * i for i in range(15)]
WS = dict(
    MODP=(0x00000, 3 * 3456 * 4),
    MODF=(0x10000, 3456 * 4),
    MODB=(0x14000, 2 * 576 * 2),
    KMAX=(0x18000, 128 * 4 * 4),
    KV=(0x20000, 64 * 2368),
    ST1=(0x80000, 2048 * 8 * 8),
    ST2=(0xC0000, 16 * 16 * 128 * 8),
    XN=(0x100000, S * D * 2),
    Q=(0x400000, S * D * 2),
    O=(0x700000, S * D * 2),
    X1=(0xA00000, S * D * 2),
    XG=(0xD00000, S * D * 2),
    WQKV=(0x1000000, 8 * 18 * 5 * 1024),
    WO=(0x1100000, 8 * 18 * 4608),
    WIN=(0x1200000, 144 * 37 * 1024),
    WOUT=(0x1800000, 8 * 72 * 4608),
    WSP=(0x1B00000, S * S * 2),
    Z1=(0x2400000, S * FH * 2),
    Z2=(0x2D00000, S * FH * 2),
)
OOB = 0x7ff00000


def f2u(x): return struct.unpack('<I', struct.pack('<f', x))[0]
def fhex(x): return hex(f2u(x))


def srd_in(k, s, ptr, nbytes):
    k(f'''s_mov_b32 s{s}, s{ptr}
s_and_b32 s{s+1}, s{ptr+1}, 0xffff
s_mov_b32 s{s+2}, {nbytes}
s_mov_b32 s{s+3}, 0x20000''')


def srd_ws(k, s, ptr, region):
    off, n = WS[region]
    k(f'''s_add_u32 s{s}, s{ptr}, {off}
s_addc_u32 s{s+1}, s{ptr+1}, 0
s_and_b32 s{s+1}, s{s+1}, 0xffff
s_mov_b32 s{s+2}, {n}
s_mov_b32 s{s+3}, 0x20000''')


def waveid(k, sdst, vtmp):
    k(f'''v_lshrrev_b32 v{vtmp}, 6, v0
v_readfirstlane_b32 s{sdst}, v{vtmp}''')


def unpack(k, dlo, src):
    k(f'''v_lshlrev_b32 v{dlo}, 16, v{src}
v_and_b32 v{dlo+1}, 0xffff0000, v{src}''')


def sum16(k, v):
    for r in (8, 4, 2, 1):
        k(f'v_add_f32_dpp v{v}, v{v}, v{v} row_ror:{r} row_mask:0xf bank_mask:0xf')


def xadd16(k, v, t, op='add'):
    k(f'''v_mov_b32 v{t}, v{v}
v_permlane16_swap_b32 v{v}, v{t}
v_{op}_f32 v{v}, v{v}, v{t}''')


def xadd32(k, v, t, op='add'):
    k(f'''v_mov_b32 v{t}, v{v}
v_permlane32_swap_b32 v{v}, v{t}
v_{op}_f32 v{v}, v{v}, v{t}''')


PREFETCH = True


def code_prefetch(k, target, vlane, vt, s0, nwg=16, swave=None):
    if not PREFETCH: return
    lab = k.newlabel('L_pf'); skip = k.newlabel('L_pfs')
    k(f's_cmp_ge_u32 s2, {nwg}\ns_cbranch_scc1 {skip}')
    if swave is not None: k(f's_cmp_lg_u32 s{swave}, 0\ns_cbranch_scc1 {skip}')
    k(f'''s_getpc_b64 s[{s0}:{s0+1}]
{lab}:
s_add_u32 s{s0}, s{s0}, {target}-{lab}
s_addc_u32 s{s0+1}, s{s0+1}, SIGN_{target}_{k.name}
s_and_b32 s{s0+1}, s{s0+1}, 0xffff
s_mov_b32 s{s0+2}, L_end_{target}-{target}
s_mov_b32 s{s0+3}, 0x20000
v_lshlrev_b32 v{vt}, 7, v{vlane}''')
    k(f'buffer_load_dword v{vt+1}, v{vt}, s[{s0}:{s0+3}], 0 offen')
    k(f'{skip}:')
```

```python
from dsl import K
from common import *

LOG2E = 1.4426950408889634
N_MOD, N_LN, N_WQ = 162, 256, 36
K0_GRID = N_MOD + N_LN + N_WQ
TP_RS = 176
TP_WAVE = 32 * TP_RS


def tprep_lane(k, vlane, vsrc, vlds, vt, sldsbase, wo_step=None):
    for i in range(5):
        k(f'''v_add_u32 v{vt}, {64*i}, v{vlane}
v_mul_u32_u24 v{vt+1}, 57, v{vt}
v_lshrrev_b32 v{vt+1}, 9, v{vt+1}
v_mul_u32_u24 v{vt+2}, 9, v{vt+1}
v_sub_u32 v{vt+2}, v{vt}, v{vt+2}
v_lshlrev_b32 v{vt+2}, 4, v{vt+2}
v_mul_u32_u24 v{vlds+i}, {TP_RS}, v{vt+1}
v_add3_u32 v{vlds+i}, v{vlds+i}, v{vt+2}, s{sldsbase}''')
        if wo_step is not None:
            k(f'''v_lshrrev_b32 v{vt+3}, 4, v{vt+1}
v_mul_u32_u24 v{vt+3}, 18, v{vt+3}
v_and_b32 v{vt+4}, 15, v{vt+1}
v_add_u32 v{vt+3}, v{vt+3}, v{vt+4}
s_mul_i32 s{wo_step+1}, s{wo_step}, 36
v_add_u32 v{vt+3}, s{wo_step+1}, v{vt+3}
v_lshrrev_b32 v{vt+4}, 1, v{vt+1}
s_sub_u32 s{wo_step+1}, s{wo_step}, 16
s_lshl_b32 s{wo_step+1}, s{wo_step+1}, 4
v_add_u32 v{vt+4}, s{wo_step+1}, v{vt+4}
v_mul_u32_u24 v{vt+4}, 18, v{vt+4}
v_and_b32 v{vt+5}, 1, v{vt+1}
v_add3_u32 v{vt+4}, v{vt+4}, v{vt+5}, 16
s_cmp_ge_u32 s{wo_step}, 16
s_cselect_b64 vcc, -1, 0
v_cndmask_b32 v{vt+1}, v{vt+3}, v{vt+4}, vcc''')
        k(f'''v_mul_u32_u24 v{vsrc+i}, 1152, v{vt+1}
v_add_u32 v{vsrc+i}, v{vsrc+i}, v{vt+2}''')
    k(f'''v_cmp_gt_u32 vcc, 32, v{vlane}
v_mov_b32 v{vt}, {OOB}
v_cndmask_b32 v{vsrc+4}, v{vt}, v{vsrc+4}, vcc
v_and_b32 v{vt}, 31, v{vlane}
v_mul_u32_u24 v{vt}, {TP_RS}, v{vt}
v_add_u32 v{vt}, 160, v{vt}
v_add_u32 v{vt}, s{sldsbase}, v{vt}
v_cndmask_b32 v{vlds+4}, v{vt}, v{vlds+4}, vcc''')


def tprep_rdaddr(k, vlane, vxy, vnat, vt, sldsbase):
    k(f'''v_lshrrev_b32 v{vt}, 4, v{vlane}
v_lshlrev_b32 v{vt}, 3, v{vt}
v_bfe_u32 v{vt+1}, v{vlane}, 2, 2
v_add_u32 v{vt}, v{vt}, v{vt+1}
v_mul_u32_u24 v{vt}, {TP_RS}, v{vt}
v_add_u32 v{vt}, s{sldsbase}, v{vt}
v_and_b32 v{vt+1}, 3, v{vlane}
v_lshl_add_u32 v{vxy}, v{vt+1}, 4, v{vt}
v_lshl_add_u32 v{vnat}, v{vt+1}, 3, v{vt}''')


def tprep_read(k, vxy, vnat, vd):
    for j in range(4):
        o = (j >> 1) * 64 + (j & 1) * 8
        k(f'''ds_read_b64_tr_b16 v[{vd+4*j}:{vd+4*j+1}], v{vxy} offset:{o}
ds_read_b64_tr_b16 v[{vd+4*j+2}:{vd+4*j+3}], v{vxy} offset:{o+4*TP_RS}''')
    k(f'''ds_read_b64_tr_b16 v[{vd+16}:{vd+17}], v{vnat} offset:128
ds_read_b64_tr_b16 v[{vd+18}:{vd+19}], v{vnat} offset:{128+4*TP_RS}''')


def gen_k0():
    k = K('k0_kernel', vgpr=64, sgpr=48)
    k(f'''s_cmp_ge_u32 s2, {K0_GRID}
s_cbranch_scc1 L_k0_end
s_load_dwordx8 s[4:11], s[0:1], 0
s_load_dwordx4 s[12:15], s[0:1], {A_C}
s_load_dwordx2 s[16:17], s[0:1], {A_WS}''')
    waveid(k, 3, 1)
    k('v_and_b32 v1, 63, v0')
    code_prefetch(k, 'k0_kernel', 1, 60, 40, nwg=1024, swave=3)
    code_prefetch(k, 'k1_kernel', 1, 62, 40, nwg=16, swave=3)
    k(f'''s_waitcnt lgkmcnt(0)
s_cmp_ge_u32 s2, {N_MOD}
s_cbranch_scc1 L_k0_ln''')
    srd_in(k, 20, 14, 576 * 3456 * 2)
    srd_in(k, 24, 12, 576 * 2)
    srd_ws(k, 28, 16, 'MODP')
    k(f'''s_cmp_ge_u32 s2, 54
s_cselect_b32 s18, 1, 0
s_cmp_ge_u32 s2, 108
s_cselect_b32 s18, 2, s18
s_mul_i32 s19, s18, 54
s_sub_u32 s19, s2, s19
s_mul_i32 s32, s18, 192
s_mul_i32 s33, s3, 48
s_add_u32 s32, s32, s33
v_lshrrev_b32 v2, 3, v1
v_add_u32 v2, s32, v2
v_lshlrev_b32 v3, 1, v2
s_movk_i32 s33, 6912
v_mul_lo_u32 v2, v2, s33
v_and_b32 v4, 7, v1
s_lshl_b32 s33, s19, 7
v_lshl_add_u32 v4, v4, 4, s33
v_add_u32 v2, v2, v4''')
    for i in range(6):
        k(f'buffer_load_ushort v{8+i}, v3, s[24:27], 0 offen offset:{16*i}')
    for i in range(6):
        k(f'''s_mov_b32 s33, {i*8*6912}
buffer_load_dwordx4 v[{16+4*i}:{19+4*i}], v2, s[20:23], s33 offen''')
    for j in range(8): k(f'v_mov_b32 v{40+j}, 0')
    k('s_waitcnt vmcnt(6)')
    for i in range(6):
        k(f'''v_lshlrev_b32 v{8+i}, 16, v{8+i}
v_mul_f32 v5, {fhex(-LOG2E)}, v{8+i}
v_exp_f32 v5, v5
v_add_f32 v5, 1.0, v5
v_rcp_f32 v5, v5
v_mul_f32 v5, v5, v{8+i}
v_cvt_pk_bf16_f32 v5, v5, v5
v_lshlrev_b32 v{8+i}, 16, v5''')
    for i in range(6):
        k(f's_waitcnt vmcnt({5-i})')
        for j in range(4):
            unpack(k, 6, 16 + 4 * i + j)
            k(f'''v_fmac_f32 v{40+2*j}, v{8+i}, v6
v_fmac_f32 v{41+2*j}, v{8+i}, v7''')
    for j in range(8):
        k(f'v_add_f32_dpp v{40+j}, v{40+j}, v{40+j} row_ror:8 row_mask:0xf bank_mask:0xf')
    for j in range(8): xadd16(k, 40 + j, 48 + j)
    for j in range(8): xadd32(k, 40 + j, 48 + j)
    k(f'''s_lshl_b32 s33, s3, 8
v_lshl_add_u32 v5, v1, 5, s33
s_mov_b64 exec, 0xff
ds_write_b128 v5, v[40:43]
ds_write_b128 v5, v[44:47] offset:16
s_mov_b64 exec, -1
s_waitcnt lgkmcnt(0)
s_barrier
s_cmp_lg_u32 s3, 0
s_cbranch_scc1 L_k0_end
v_lshlrev_b32 v5, 2, v1
ds_read_b32 v8, v5
ds_read_b32 v9, v5 offset:256
ds_read_b32 v10, v5 offset:512
ds_read_b32 v11, v5 offset:768
s_mul_i32 s33, s18, {3456*4}
s_lshl_b32 s34, s19, 8
s_add_u32 s33, s33, s34
s_waitcnt lgkmcnt(0)
v_add_f32 v8, v8, v9
v_add_f32 v10, v10, v11
v_add_f32 v8, v8, v10
buffer_store_dword v8, v5, s[28:31], s33 offen
s_endpgm''')
    k(f'''L_k0_ln:
s_cmp_ge_u32 s2, {N_MOD+N_LN}
s_cbranch_scc1 L_k0_wq
s_sub_u32 s18, s2, {N_MOD}''')
    srd_in(k, 20, 4, S * D * 2)
    srd_ws(k, 24, 16, 'XN')
    k(f'''s_lshl_b32 s19, s18, 3
s_lshl_b32 s32, s3, 1
s_add_u32 s19, s19, s32
v_lshrrev_b32 v2, 5, v1
v_add_u32 v2, s19, v2
v_and_b32 v3, 31, v1
v_mul_u32_u24 v4, 1152, v2
v_lshl_add_u32 v4, v3, 4, v4
v_cmp_gt_u32 vcc, 24, v3
v_mov_b32 v5, {OOB}
v_cndmask_b32 v4, v5, v4, vcc
buffer_load_dwordx4 v[8:11], v4, s[20:23], 0 offen
buffer_load_dwordx4 v[12:15], v4, s[20:23], 0 offen offset:384
buffer_load_dwordx4 v[16:19], v4, s[20:23], 0 offen offset:768
v_lshrrev_b32 v6, 4, v2
v_mul_u32_u24 v6, 18, v6
v_lshrrev_b32 v7, 2, v3
v_add_u32 v6, v6, v7
v_lshlrev_b32 v6, 6, v6
v_and_b32 v7, 3, v3
v_lshl_add_u32 v6, v7, 4, v6
v_and_b32 v7, 15, v2
v_add_u32 v6, v6, v7
v_lshlrev_b32 v6, 4, v6
v_cndmask_b32 v6, v5, v6, vcc''')
    srd_ws(k, 28, 16, 'ST2')
    srd_ws(k, 32, 16, 'KV')
    k(f'''s_cmp_lg_u32 s3, 0
s_cbranch_scc1 L_k0_nos
v_mov_b32 v20, -1
v_mov_b32 v21, -1
v_mov_b32 v22, -1
v_mov_b32 v23, -1
v_lshlrev_b32 v7, 4, v1
s_lshl_b32 s36, s18, 10
buffer_store_dwordx4 v[20:23], v7, s[28:31], s36 offen
L_k0_nos:
s_cmp_lg_u32 s3, 1
s_cbranch_scc1 L_k0_noo
v_mov_b32 v24, 0x3f803f80
v_mov_b32 v25, 0x3f803f80
v_mov_b32 v26, 0x3f803f80
v_mov_b32 v27, 0x3f803f80
s_lshr_b32 s36, s18, 4
s_mul_i32 s36, s36, 9472
s_bfe_u32 s37, s18, 0x20002
s_mul_i32 s37, s37, 2240
s_add_u32 s36, s36, s37
s_and_b32 s37, s18, 3
s_mul_i32 s37, s37, 304
s_add_u32 s36, s36, s37
s_add_u32 s36, s36, {1024+18*16}
v_cmp_eq_u32 vcc, 0, v1
v_cndmask_b32 v7, v5, v1, vcc
buffer_store_dwordx4 v[24:27], v7, s[32:35], s36 offen
L_k0_noo:
s_waitcnt vmcnt(0)''')
    for j in range(12): unpack(k, 32 + 2 * j, 8 + j)
    k('''v_pk_add_f32 v[20:21], v[32:33], v[34:35]
v_pk_mul_f32 v[22:23], v[32:33], v[32:33]
v_pk_fma_f32 v[22:23], v[34:35], v[34:35], v[22:23]''')
    for j in range(2, 12):
        k(f'''v_pk_add_f32 v[20:21], v[20:21], v[{32+2*j}:{33+2*j}]
v_pk_fma_f32 v[22:23], v[{32+2*j}:{33+2*j}], v[{32+2*j}:{33+2*j}], v[22:23]''')
    k('''v_add_f32 v20, v20, v21
v_add_f32 v22, v22, v23''')
    for r in (8, 4, 2, 1):
        k(f'''v_add_f32_dpp v20, v20, v20 row_ror:{r} row_mask:0xf bank_mask:0xf
v_add_f32_dpp v22, v22, v22 row_ror:{r} row_mask:0xf bank_mask:0xf''')
    xadd16(k, 20, 21); xadd16(k, 22, 23)
    k(f'''v_mul_f32 v20, {fhex(1/576)}, v20
v_mul_f32 v22, {fhex(1/576)}, v22
v_fma_f32 v22, -v20, v20, v22
v_max_f32 v22, 0, v22
v_add_f32 v22, {fhex(1e-5)}, v22
v_rsq_f32 v22, v22
v_mul_f32 v20, v20, v22
v_sub_f32 v20, 0, v20''')
    for j in range(12):
        k(f'''v_pk_fma_f32 v[{32+2*j}:{33+2*j}], v[{32+2*j}:{33+2*j}], v[22:23], v[20:21] op_sel_hi:[1,0,0]
v_cvt_pk_bf16_f32 v{8+j}, v{32+2*j}, v{33+2*j}''')
    k('''s_movk_i32 s36, 6144
s_movk_i32 s37, 12288
buffer_store_dwordx4 v[8:11], v6, s[24:27], 0 offen
buffer_store_dwordx4 v[12:15], v6, s[24:27], s36 offen
buffer_store_dwordx4 v[16:19], v6, s[24:27], s37 offen
s_endpgm''')
    k(f'''L_k0_wq:
s_sub_u32 s18, s2, {N_MOD+N_LN}
s_lshl_b32 s18, s18, 2
s_add_u32 s18, s18, s3
s_mul_i32 s19, s18, 57
s_lshr_b32 s19, s19, 10
s_mul_i32 s36, s19, 18
s_sub_u32 s36, s18, s36
s_mul_i32 s37, s3, {TP_WAVE}''')
    srd_in(k, 20, 6, 576 * 576 * 2)
    srd_in(k, 24, 8, 576 * 18 * 2)
    srd_in(k, 28, 10, 576 * 18 * 2)
    srd_ws(k, 32, 16, 'WQKV')
    tprep_lane(k, 1, 2, 8, 14, 37)
    k(f'''s_mul_i32 s38, s36, {32*1152}
s_mul_i32 s39, s19, 144
s_add_u32 s38, s38, s39''')
    for i in range(5):
        k(f'buffer_load_dwordx4 v[{20+4*i}:{23+4*i}], v{2+i}, s[20:23], s38 offen')
    k(f'''v_mul_u32_u24 v14, 36, v1
v_mov_b32 v15, {OOB}
v_cmp_gt_u32 vcc, 32, v1
v_cndmask_b32 v14, v15, v14, vcc
v_and_b32 v15, 31, v1
v_mul_u32_u24 v15, {TP_RS}, v15
v_lshrrev_b32 v16, 5, v1
v_lshl_add_u32 v15, v16, 4, v15
v_add_u32 v15, s37, v15
s_mul_i32 s38, s36, {32*36}
v_mov_b32 v40, 0
v_mov_b32 v41, 0
v_mov_b32 v42, 0
v_mov_b32 v43, 0
s_cmp_eq_u32 s19, 0
s_cbranch_scc0 L_k0_kv1
buffer_load_dwordx4 v[40:43], v14, s[24:27], s38 offen
L_k0_kv1:
s_cmp_eq_u32 s19, 1
s_cbranch_scc0 L_k0_kv2
buffer_load_dwordx4 v[40:43], v14, s[24:27], s38 offen offset:16
L_k0_kv2:
s_cmp_eq_u32 s19, 2
s_cbranch_scc0 L_k0_kv3
buffer_load_dword v40, v14, s[24:27], s38 offen offset:32
buffer_load_dword v42, v14, s[28:31], s38 offen offset:32
L_k0_kv3:
s_cmp_eq_u32 s19, 3
s_cbranch_scc0 L_k0_kv4
buffer_load_dwordx4 v[40:43], v14, s[28:31], s38 offen
L_k0_kv4:
s_cmp_eq_u32 s19, 4
s_cbranch_scc0 L_k0_kv5
buffer_load_dwordx4 v[40:43], v14, s[28:31], s38 offen offset:16
L_k0_kv5:''')
    tprep_rdaddr(k, 1, 16, 17, 18, 37)
    k('s_waitcnt vmcnt(0)')
    for i in range(5):
        k(f'ds_write_b128 v{8+i}, v[{20+4*i}:{23+4*i}]')
    k('''ds_write_b128 v15, v[40:43] offset:144
s_waitcnt lgkmcnt(0)''')
    tprep_read(k, 16, 17, 44)
    k('''v_lshlrev_b32 v2, 4, v1
s_mul_i32 s38, s18, 5120
s_add_u32 s39, s38, 4096
s_waitcnt lgkmcnt(0)''')
    for j in range(4):
        k(f'buffer_store_dwordx4 v[{44+4*j}:{47+4*j}], v2, s[32:35], s38 offen offset:{1024*j}')
    k('''buffer_store_dwordx4 v[60:63], v2, s[32:35], s39 offen
L_k0_end:
s_endpgm''')
    return k, f'; @launch kernel=k0_kernel grid=({K0_GRID},1,1) block=(256,1,1) lds={4*TP_WAVE}'
```

```python
from dsl import K
from common import *

LOG2E = 1.4426950408889634
QSCALE = 18 ** -0.5 * LOG2E


def map_8x4_32x8(k, sbm, sbn, t):
    k(f'''s_and_b32 s{t}, s2, 7
s_lshr_b32 s{t+1}, s2, 3
s_lshr_b32 s{sbm}, s{t}, 1
s_lshl_b32 s{sbm}, s{sbm}, 3
s_and_b32 s{sbn}, s{t+1}, 7
s_add_u32 s{sbm}, s{sbm}, s{sbn}
s_and_b32 s{sbn}, s{t}, 1
s_lshl_b32 s{sbn}, s{sbn}, 2
s_lshr_b32 s{t+1}, s{t+1}, 3
s_add_u32 s{sbn}, s{sbn}, s{t+1}''')


def round_bf16(k, v0, v1, t):
    k(f'''v_cvt_pk_bf16_f32 v{t}, v{v0}, v{v1}
v_lshlrev_b32 v{v0}, 16, v{t}
v_and_b32 v{v1}, 0xffff0000, v{t}''')


def gen_k1():
    k = K('k1_kernel', vgpr=184, sgpr=64)
    LB = 18 * 5120
    A0, ACC, BF = 64, 40, 140
    k(f'''s_cmp_ge_u32 s2, 256
s_cbranch_scc1 L_k1_end
s_load_dwordx2 s[16:17], s[0:1], {A_WS}''')
    waveid(k, 3, 1)
    map_8x4_32x8(k, 4, 5, 6)
    k('''v_and_b32 v1, 63, v0
v_lshlrev_b32 v2, 4, v1
v_lshlrev_b32 v3, 4, v0
s_waitcnt lgkmcnt(0)''')
    srd_ws(k, 20, 16, 'MODP')
    srd_ws(k, 24, 16, 'XN')
    srd_ws(k, 28, 16, 'WQKV')
    k(f'''v_add_u32 v4, 4096, v3
v_mov_b32 v5, {OOB}
v_cmp_gt_u32 vcc, 32, v0
v_cndmask_b32 v4, v5, v4, vcc
s_movk_i32 s8, {3456*4}
s_movk_i32 s9, {2*3456*4}
buffer_load_dwordx4 v[8:11], v3, s[20:23], 0 offen
buffer_load_dwordx4 v[12:15], v3, s[20:23], s8 offen
buffer_load_dwordx4 v[16:19], v3, s[20:23], s9 offen
buffer_load_dwordx4 v[20:23], v4, s[20:23], 0 offen
buffer_load_dwordx4 v[24:27], v4, s[20:23], s8 offen
buffer_load_dwordx4 v[28:31], v4, s[20:23], s9 offen
s_lshl_b32 s10, s4, 2
s_add_u32 s10, s10, s3
s_mul_i32 s11, s10, {18*1024}''')
    for st in range(18):
        if st % 4 == 0 and st: k('s_add_u32 s11, s11, 4096')
        k(f'buffer_load_dwordx4 v[{A0+4*st}:{A0+4*st+3}], v2, s[24:27], s11 offen offset:{(st%4)*1024}')
    k(f's_mul_i32 s12, s5, {LB}')
    for g in range(2):
        k(f'''s_mul_i32 s13, s3, 10240
s_add_u32 s13, s13, {g*40960}''')
        for j in range(10):
            if j % 4 == 0:
                if j: k('s_add_u32 s13, s13, 4096')
                k('''s_mov_b32 m0, s13
s_add_u32 s14, s13, s12''')
            k(f'buffer_load_dwordx4 v2, s[28:31], s14 offen offset:{(j%4)*1024} lds')
    k('''s_mul_i32 s13, s3, 3072
s_min_u32 s13, s13, 7168
s_add_u32 s13, s13, 81920
s_mov_b32 m0, s13
s_add_u32 s14, s13, s12''')
    for j in range(3):
        k(f'buffer_load_dwordx4 v2, s[28:31], s14 offen offset:{j*1024} lds')
    k.stamp(0)
    k(f'''s_waitcnt vmcnt(41)
v_pk_add_f32 v[8:9], v[8:9], v[12:13]
v_pk_add_f32 v[10:11], v[10:11], v[14:15]
v_pk_add_f32 v[20:21], v[20:21], v[24:25]
v_pk_add_f32 v[22:23], v[22:23], v[26:27]
v_pk_add_f32 v[8:9], v[8:9], v[16:17]
v_pk_add_f32 v[10:11], v[10:11], v[18:19]
v_pk_add_f32 v[20:21], v[20:21], v[28:29]
v_pk_add_f32 v[22:23], v[22:23], v[30:31]
v_cmp_le_u32 vcc, 144, v0
v_cndmask_b32 v12, 0, 1.0, vcc''')
    for a in (8, 10, 20, 22): round_bf16(k, a, a + 1, 14)
    k('''v_pk_add_f32 v[8:9], v[8:9], v[12:13] op_sel_hi:[1,0]
v_pk_add_f32 v[10:11], v[10:11], v[12:13] op_sel_hi:[1,0]
v_pk_add_f32 v[20:21], v[20:21], 1.0 op_sel_hi:[1,0]
v_pk_add_f32 v[22:23], v[22:23], 1.0 op_sel_hi:[1,0]''')
    for a in (8, 10, 20, 22): round_bf16(k, a, a + 1, 14)
    k(f'''v_add_u32 v4, {LB}, v3
ds_write_b128 v4, v[8:11]
ds_write_b128 v4, v[20:23] offset:4096
v_lshrrev_b32 v4, 4, v1
v_lshlrev_b32 v4, 5, v4
v_add_u32 v4, {LB}, v4''')
    for j in range(20): k(f'v_mov_b32 v{ACC+j}, 0')
    k('''s_waitcnt lgkmcnt(0)
s_barrier''')
    k.stamp(1)

    def gs_read(st, b):
        r = 8 + 16 * b
        k(f'''ds_read_b128 v[{r}:{r+3}], v4 offset:{2304+st*128}
ds_read_b128 v[{r+4}:{r+7}], v4 offset:{2304+st*128+16}
ds_read_b128 v[{r+8}:{r+11}], v4 offset:{st*128}
ds_read_b128 v[{r+12}:{r+15}], v4 offset:{st*128+16}''')
    gs_read(0, 0)
    T = 176
    for st in range(18):
        if st + 1 < 18: gs_read(st + 1, (st + 1) & 1)
        k(f's_waitcnt vmcnt({40-st}) lgkmcnt({4 if st+1<18 else 0})')
        r = 8 + 16 * (st & 1)
        for j in range(4): unpack(k, T + 2 * j, A0 + 4 * st + j)
        for j in range(4):
            k(f'v_pk_fma_f32 v[{T+2*j}:{T+2*j+1}], v[{T+2*j}:{T+2*j+1}], v[{r+2*j}:{r+2*j+1}], v[{r+8+2*j}:{r+8+2*j+1}]')
        for j in range(4):
            k(f'v_cvt_pk_bf16_f32 v{A0+4*st+j}, v{T+2*j}, v{T+2*j+1}')
    k.stamp(2)

    def b_read(st):
        b = BF + 20 * (st & 1)
        for j in range(5):
            o = st * 5120 + j * 1024
            if o < 65536: k(f'ds_read_b128 v[{b+4*j}:{b+4*j+3}], v2 offset:{o}')
            else: k(f'ds_read_b128 v[{b+4*j}:{b+4*j+3}], v5 offset:{o-65536}')
    k('v_add_u32 v5, 0x10000, v2')
    bar = {0: 13, 8: 3, 16: 0}
    k('s_waitcnt vmcnt(13)\ns_barrier')
    k.stamp(3)
    b_read(0)
    for st in range(18):
        if st + 1 < 18:
            if st + 1 in bar: k(f's_waitcnt vmcnt({bar[st+1]})\ns_barrier')
            b_read(st + 1)
        k(f's_waitcnt lgkmcnt({5 if st+1<18 else 0})')
        b = BF + 20 * (st & 1)
        for j in range(5):
            k(f'v_mfma_f32_16x16x32_bf16 v[{ACC+4*j}:{ACC+4*j+3}], v[{b+4*j}:{b+4*j+3}], v[{A0+4*st}:{A0+4*st+3}], v[{ACC+4*j}:{ACC+4*j+3}]')
    k.stamp(4)
    code_prefetch(k, 'k2_kernel', 1, 60, 32, swave=3)
    srd_ws(k, 20, 16, 'Q')
    srd_ws(k, 24, 16, 'KV')
    srd_ws(k, 28, 16, 'KMAX')
    k(f'''s_lshl_b32 s11, s10, 4
v_and_b32 v8, 15, v1
v_add_u32 v8, s11, v8
v_lshrrev_b32 v9, 4, v1
v_mul_u32_u24 v10, 1152, v8
s_mul_i32 s12, s5, 144
v_add_u32 v10, s12, v10
v_lshl_add_u32 v11, v9, 3, v10
v_lshl_add_u32 v10, v9, 4, v10
v_cmp_gt_u32 vcc, 2, v9
v_mov_b32 v12, {OOB}
v_cndmask_b32 v11, v12, v11, vcc
s_mov_b32 s12, {fhex(QSCALE)}
s_mov_b32 s13, s12''')
    for b in range(2):
        for y in range(2):
            a = ACC + 8 * b + 4 * y
            k(f'''v_pk_mul_f32 v[{a}:{a+1}], v[{a}:{a+1}], s[12:13]
v_pk_mul_f32 v[{a+2}:{a+3}], v[{a+2}:{a+3}], s[12:13]
v_cvt_pk_bf16_f32 v{16+4*b+2*y}, v{a}, v{a+1}
v_cvt_pk_bf16_f32 v{17+4*b+2*y}, v{a+2}, v{a+3}''')
        k(f'buffer_store_dwordx4 v[{16+4*b}:{19+4*b}], v10, s[20:23], 0 offen offset:{64*b}')
    t = ACC + 16
    k(f'''v_pk_mul_f32 v[24:25], v[{t}:{t+1}], s[12:13]
v_pk_mul_f32 v[26:27], v[{t+2}:{t+3}], s[12:13]
v_cvt_pk_bf16_f32 v24, v24, v25
v_cvt_pk_bf16_f32 v25, v26, v27
buffer_store_dwordx2 v[24:25], v11, s[20:23], 0 offen offset:128
s_cmp_ge_u32 s5, 5
s_cbranch_scc1 L_k1_fin
v_cvt_pk_bf16_f32 v28, v{t}, v{t+1}
v_cvt_pk_bf16_f32 v29, v{t+2}, v{t+3}
v_lshrrev_b32 v32, 7, v8
v_mul_u32_u24 v32, 9472, v32
v_bfe_u32 v33, v8, 5, 2
v_mul_u32_u24 v13, 2240, v33
v_add_u32 v13, v13, v32
v_and_b32 v14, 31, v8
s_cmp_ge_u32 s5, 3
s_cbranch_scc1 L_k1_v
v_mul_f32 v30, v{t}, v{t}
v_fmac_f32 v30, v{t+1}, v{t+1}
v_fmac_f32 v30, v{t+2}, v{t+2}
v_fmac_f32 v30, v{t+3}, v{t+3}
s_cmp_eq_u32 s5, 2
s_cbranch_scc1 L_k1_k2''')
    xadd16(k, 30, 31)
    k(f'''v_lshl_add_u32 v15, v14, 4, v13
v_lshl_add_u32 v15, v9, 3, v15
s_lshl_b32 s12, s5, 9
s_sub_u32 s12, s12, 16
v_add_u32 v15, s12, v15
v_cndmask_b32 v15, v15, v12, vcc
buffer_store_dwordx2 v[28:29], v15, s[24:27], 0 offen
s_branch L_k1_km
L_k1_k2:
v_lshl_add_u32 v15, v14, 4, v32
v_lshl_add_u32 v15, v33, 2, v15
v_add_u32 v15, 8960, v15
v_cmp_eq_u32 vcc, 2, v9
v_cndmask_b32 v15, v12, v15, vcc
buffer_store_dword v28, v15, s[24:27], 0 offen
L_k1_km:''')
    for r in (8, 4, 2, 1):
        k(f'v_max_f32_dpp v30, v30, v30 row_ror:{r} row_mask:0xf bank_mask:0xf')
    k(f'''s_lshl_b32 s12, s10, 4
s_lshl_b32 s13, s5, 2
s_add_u32 s12, s12, s13
v_cmp_eq_u32 vcc, 32, v1
v_cndmask_b32 v15, v12, 0, vcc
buffer_store_dword v30, v15, s[28:31], s12 offen
s_cmp_lg_u32 s5, 2
s_cbranch_scc1 L_k1_fin
L_k1_v:
v_bfe_u32 v14, v8, 4, 1
v_mul_u32_u24 v14, 608, v14
v_add_u32 v13, v13, v14
v_bfe_u32 v14, v8, 2, 1
v_mul_u32_u24 v14, 304, v14
v_add_u32 v13, v13, v14
v_and_b32 v14, 3, v8
v_lshl_add_u32 v13, v14, 1, v13
v_bfe_u32 v14, v8, 3, 1
v_lshl_add_u32 v13, v14, 3, v13
s_cmp_eq_u32 s5, 2
s_cbranch_scc1 L_k1_v2
v_lshl_add_u32 v13, v9, 7, v13
s_sub_u32 s12, s5, 3
s_lshl_b32 s12, s12, 6
s_add_u32 s12, s12, {1024-256}
v_add_u32 v13, s12, v13
v_cmp_le_u32 vcc, 2, v9
v_cndmask_b32 v13, v12, v13, vcc
buffer_store_short v28, v13, s[24:27], 0 offen
buffer_store_short_d16_hi v28, v13, s[24:27], 0 offen offset:16
buffer_store_short v29, v13, s[24:27], 0 offen offset:32
buffer_store_short_d16_hi v29, v13, s[24:27], 0 offen offset:48
s_branch L_k1_fin
L_k1_v2:
v_cmp_eq_u32 vcc, 3, v9
v_cndmask_b32 v13, v12, v13, vcc
buffer_store_short v28, v13, s[24:27], 0 offen offset:{1024+256}
buffer_store_short_d16_hi v28, v13, s[24:27], 0 offen offset:{1024+272}
L_k1_fin:
;STAMP 5
s_cmp_ge_u32 s2, 4
s_cbranch_scc1 L_k1_end''')
    srd_ws(k, 20, 16, 'MODP')
    srd_ws(k, 24, 16, 'MODF')
    srd_ws(k, 28, 16, 'MODB')
    k(f'''s_mul_i32 s12, s2, 216
v_add_u32 v4, s12, v0
v_lshlrev_b32 v5, 4, v4
v_cmp_gt_u32 vcc, 216, v0
v_cndmask_b32 v5, v12, v5, vcc
buffer_load_dwordx4 v[32:35], v5, s[20:23], 0 offen
buffer_load_dwordx4 v[36:39], v5, s[20:23], s8 offen
buffer_load_dwordx4 v[40:43], v5, s[20:23], s9 offen
v_subrev_u32 v6, 144, v4
v_subrev_u32 v7, 576, v4
v_min_u32 v6, v6, v7
v_cmp_gt_u32 vcc, 144, v6
v_cndmask_b32 v44, 0, 1.0, vcc
s_waitcnt vmcnt(0)
v_pk_add_f32 v[32:33], v[32:33], v[36:37]
v_pk_add_f32 v[34:35], v[34:35], v[38:39]
v_pk_add_f32 v[32:33], v[32:33], v[40:41]
v_pk_add_f32 v[34:35], v[34:35], v[42:43]''')
    round_bf16(k, 32, 33, 36); round_bf16(k, 34, 35, 37)
    k('''v_pk_add_f32 v[32:33], v[32:33], v[44:45] op_sel_hi:[1,0]
v_pk_add_f32 v[34:35], v[34:35], v[44:45] op_sel_hi:[1,0]''')
    round_bf16(k, 32, 33, 36); round_bf16(k, 34, 35, 37)
    k(f'''buffer_store_dwordx4 v[32:35], v5, s[24:27], 0 offen
v_lshlrev_b32 v6, 3, v7
v_subrev_u32 v13, 432, v4
v_lshlrev_b32 v14, 3, v13
v_add_u32 v14, 1152, v14
v_cmp_gt_u32 vcc, 144, v13
v_cndmask_b32 v6, v6, v14, vcc
v_cmp_gt_u32 vcc, 288, v13
v_cndmask_b32 v6, v12, v6, vcc
v_cmp_gt_u32 vcc, 216, v0
v_cndmask_b32 v6, v12, v6, vcc
buffer_store_dwordx2 v[36:37], v6, s[28:31], 0 offen
L_k1_end:
s_endpgm''')
    return k, f'; @launch kernel=k1_kernel grid=(256,1,1) block=(256,1,1) lds={LB+8192}'
```

```python
from dsl import K
from common import *

GL = 9472


def T(t): return (t >> 2) * GL + (t & 3) * 2240


Q1 = (8, 12); QZ = (16, 28); O = (40, 56); S0 = (72, 104); P = (136, 144)
KA, KB, VA = 152, 160, 168


def q2(h, j):
    return QZ[h] + (2, 8, 0, 6)[j & 3]


def mf(d, a, b, c):
    cc = '0' if c is None else f'v[{c}:{c+15}]'
    return f'v_mfma_f32_32x32x16_bf16 v[{d}:{d+15}], v[{a}:{a+3}], v[{b}:{b+3}], {cc}'


def gen_k2(helpers=None, opt=()):
    k = K('k2_kernel', vgpr=192, sgpr=64)
    mask = 'mask' in opt

    def rdV(t, dst):
        if mask: k('s_mov_b64 exec, s[12:13]')
        k(f'ds_read_b128 v[{dst}:{dst+3}], v3 offset:{t}')
        if mask: k('s_mov_b64 exec, -1')
    k(f'''s_cmp_ge_u32 s2, 256
s_cbranch_scc1 L_k2_end
s_load_dwordx2 s[16:17], s[0:1], {A_WS}''')
    waveid(k, 3, 1)
    k('''v_and_b32 v1, 63, v0
v_lshlrev_b32 v2, 4, v1
s_cmp_ge_u32 s3, 4
s_cbranch_scc1 L_k2_loader
s_lshr_b32 s4, s2, 2
s_and_b32 s5, s2, 3
s_lshl_b32 s5, s5, 2
s_add_u32 s5, s5, s3
s_lshl_b32 s5, s5, 1''')
    k(f'''v_and_b32 v5, 31, v1
v_lshrrev_b32 v6, 5, v1
s_lshl_b32 s6, s4, 5
v_add_u32 v7, s6, v5
v_mul_u32_u24 v7, 1152, v7
s_mul_i32 s6, s5, 36
v_lshl_add_u32 v3, v6, 4, v7
v_cmp_eq_u32 vcc, 0, v6
v_mov_b32 v4, {OOB}
v_cndmask_b32 v7, v4, v7, vcc
v_lshlrev_b32 v4, 5, v1
s_waitcnt lgkmcnt(0)''')
    k.stamp(2)
    srd_ws(k, 20, 16, 'Q')
    k(f'''buffer_load_dwordx4 v[{Q1[0]}:{Q1[0]+3}], v3, s[20:23], s6 offen
buffer_load_dwordx4 v[{Q1[1]}:{Q1[1]+3}], v3, s[20:23], s6 offen offset:36
buffer_load_dword v{QZ[0]+2}, v7, s[20:23], s6 offen offset:32
buffer_load_dword v{QZ[1]+2}, v7, s[20:23], s6 offen offset:68''')
    srd_ws(k, 24, 16, 'KMAX')
    k(f'''buffer_load_dwordx4 v[72:75], v4, s[24:27], 0 offen
buffer_load_dwordx4 v[76:79], v4, s[24:27], 0 offen offset:16
v_mul_u32_u24 v3, 304, v6
v_lshl_add_u32 v3, v5, 4, v3
v_add_u32 v3, 1024, v3
v_lshlrev_b32 v4, 4, v5
v_add_u32 v4, 8960, v4
s_mov_b32 s12, 0x7ffff
s_mov_b32 s13, 0x7ffff''')
    srd_ws(k, 28, 16, 'O')
    for h in range(2):
        for r in range(12):
            if r not in (2, 9): k(f'v_mov_b32 v{QZ[h]+r}, 0')
        for r in range(16): k(f'v_mov_b32 v{O[h]+r}, 0')
    for r in range(4): k(f'v_mov_b32 v{P[1]+4+r}, 0')
    for r in range(16 if mask else 4): k(f'v_mov_b32 v{VA+15-r}, 0')
    k('s_waitcnt vmcnt(0)')
    k.stamp(3)
    k(f'''v_mov_b32 v{QZ[0]+9}, v{QZ[0]+2}
v_mov_b32 v{QZ[1]+9}, v{QZ[1]+2}
v_max_f32 v72, v72, v76
v_max_f32 v73, v73, v77
v_max_f32 v74, v74, v78''')
    for h in range(2):
        for j in range(4): unpack(k, 80 + 10 * h + 2 * j, Q1[h] + j)
        unpack(k, 88 + 10 * h, QZ[h] + 2)
    for r in (8, 4, 2, 1):
        for j in range(3): k(f'v_max_f32_dpp v{72+j}, v{72+j}, v{72+j} row_ror:{r} row_mask:0xf bank_mask:0xf')
    k('''v_pk_mul_f32 v[100:101], v[80:81], v[80:81]
v_pk_mul_f32 v[102:103], v[90:91], v[90:91]''')
    for j in range(1, 5):
        k(f'''v_pk_fma_f32 v[100:101], v[{80+2*j}:{81+2*j}], v[{80+2*j}:{81+2*j}], v[100:101]
v_pk_fma_f32 v[102:103], v[{90+2*j}:{91+2*j}], v[{90+2*j}:{91+2*j}], v[102:103]''')
    k('''v_mov_b32 v76, v72
v_mov_b32 v77, v73
v_mov_b32 v78, v74
v_add_f32 v75, v100, v101
v_add_f32 v79, v102, v103
v_permlane16_swap_b32 v72, v76
v_permlane16_swap_b32 v73, v77
v_permlane16_swap_b32 v74, v78
v_permlane32_swap_b32 v75, v79
v_max_f32 v72, v72, v76
v_max_f32 v73, v73, v77
v_max_f32 v74, v74, v78
v_add_f32 v75, v75, v79
v_mov_b32 v76, v72
v_mov_b32 v77, v73
v_mov_b32 v78, v74
v_permlane32_swap_b32 v72, v76
v_permlane32_swap_b32 v73, v77
v_permlane32_swap_b32 v74, v78
v_max_f32 v72, v72, v76
v_max_f32 v73, v73, v77
v_max_f32 v74, v74, v78
v_add_f32 v72, v72, v73
v_add_f32 v72, v72, v74''')
    k(f'''v_mul_f32 v72, v72, v75
s_mov_b32 s6, {fhex(64.0*64.0/1.03)}
v_cmp_nge_f32 vcc, s6, v72''')
    k.stamp(4)
    k('''s_barrier
s_cbranch_vccnz L_k2_slow''')
    k.stamp(0)
    k(f'''ds_read_b128 v[{KA}:{KA+3}], v2 offset:{T(0)}
ds_read_b128 v[{KB}:{KB+3}], v4
ds_read_b128 v[{KA+4}:{KA+7}], v2 offset:{T(1)}''')
    rdV(T(0), VA); rdV(T(0) + 608, VA + 4)
    k(f'''s_waitcnt lgkmcnt(3)
{mf(S0[0], KA, Q1[0], None)}
{mf(S0[1], KA, Q1[1], None)}
{mf(S0[0], KB, q2(0, 0), S0[0])}
{mf(S0[1], KB, q2(1, 0), S0[1])}
s_mov_b32 s7, 0
s_waitcnt lgkmcnt(0)
s_nop 7
.p2align 6
L_k2_loop:''')
    for i in range(8):
        p = i & 1; n = p ^ 1
        kb = KB + 4 * ((((i + 1) >> 2)) & 1)
        for h in range(2):
            Sc = S0[h] + 16 * p; Sn = S0[h] + 16 * n; pp = P[h]
            ex = lambda a, b: k('\n'.join((f'v_exp_f32 v{Sc+j}, v{Sc+j}' if 'noexp' not in opt else f's_nop 0\ns_nop 0') for j in range(a, b)))
            cv = lambda a, b: k('\n'.join(f'v_cvt_pk_bf16_f32 v{pp+j}, v{Sc+2*j}, v{Sc+2*j+1}' for j in range(a, b)))
            k(mf(Sn, KA + 4 * n, Q1[h], None))
            if h == 0: k(f'ds_read_b128 v[{KA+4*p}:{KA+4*p+3}], v2 offset:{T(i+2)}')
            ex(0, 4)
            if h == 0:
                if 'nopv' not in opt: k(mf(O[1], VA + 8 * n + 4, P[1] + 4, O[1]))
                rdV(T(i + 1), VA + 8 * n)
            else:
                if 'nopv' not in opt: k(mf(O[0], VA + 8 * p + 4, P[0] + 4, O[0]))
            ex(4, 8); cv(0, 2)
            if 'noqk2' not in opt: k(mf(Sn, kb, q2(h, i + 1), Sn))
            if h == 0: rdV(T(i + 1) + 608, VA + 8 * n + 4)
            cv(2, 4); ex(8, 12)
            if 'nopv' not in opt: k(mf(O[h], VA + 8 * p, pp, O[h]))
            if h == 0 and i == 0: k(f'ds_read_b128 v[{KB+4}:{KB+7}], v4 offset:{GL}')
            if h == 0 and i == 4: k(f'ds_read_b128 v[{KB}:{KB+3}], v4 offset:{2*GL}')
            if h == 1:
                k('s_waitcnt lgkmcnt(0)')
                if i == 7:
                    k(f'''s_cmp_lg_u32 s7, 0
s_cbranch_scc1 L_k2_nob
s_barrier
L_k2_nob:
s_add_u32 s7, s7, 1
s_cmp_lt_u32 s7, 8''')
            ex(12, 16); cv(4, 8)
    k(f'''v_add_u32 v2, {2*GL}, v2
v_add_u32 v3, {2*GL}, v3
v_add_u32 v4, {2*GL}, v4
s_cbranch_scc1 L_k2_loop
{mf(O[1], VA + 8 + 4, P[1] + 4, O[1])}
L_k2_epi:''')
    k.stamp(1)
    code_prefetch(k, 'k3_kernel', 1, 90, 32, swave=3)
    k(f'''v_bfe_u32 v74, v1, 4, 1
s_lshl_b32 s6, s4, 1
v_add_u32 v74, s6, v74
v_mul_u32_u24 v74, {18*1024}, v74
v_and_b32 v75, 15, v1
v_lshl_add_u32 v74, v75, 4, v74
v_lshl_add_u32 v75, v6, 8, v74
s_lshl_b32 s6, s5, 9
s_lshr_b32 s7, s5, 2
s_lshl_b32 s7, s7, 8
s_and_b32 s8, s5, 3
s_lshl_b32 s8, s8, 2
s_add_u32 s7, s7, s8
s_add_u32 s7, s7, {16*1024}
v_cmp_eq_u32 vcc, 0, v6
v_mov_b32 v76, {OOB}
v_cndmask_b32 v74, v76, v74, vcc''')
    for h in range(2):
        k(f'''v_mov_b32 v72, v{O[h]+10}
v_mov_b32 v73, v{O[h]+10}
v_permlane32_swap_b32 v72, v73
v_rcp_f32 v72, v72''')
        for j in range(5):
            d = 80 + 4 * h + j if j < 4 else 88 + h
            k(f'''v_pk_mul_f32 v[{O[h]+2*j}:{O[h]+2*j+1}], v[{O[h]+2*j}:{O[h]+2*j+1}], v[72:73] op_sel_hi:[1,0]
v_cvt_pk_bf16_f32 v{d}, v{O[h]+2*j}, v{O[h]+2*j+1}''')
        k(f'buffer_store_dwordx4 v[{80+4*h}:{83+4*h}], v75, s[28:31], s6 offen offset:{512*h}')
    k('''buffer_store_dwordx2 v[88:89], v74, s[28:31], s7 offen
s_endpgm''')
    M, AL, TT = 184, 186, 188
    k(f'''L_k2_slow:
s_barrier
v_mov_b32 v{M}, {fhex(-3.0e38)}
v_mov_b32 v{M+1}, {fhex(-3.0e38)}
s_mov_b32 s7, 0
L_k2_sl:
ds_read_b128 v[{KA}:{KA+3}], v2
ds_read_b32 v{KB}, v4
ds_read_b128 v[{VA}:{VA+3}], v3
ds_read_b128 v[{VA+4}:{VA+7}], v3 offset:608
v_mov_b32 v{KB+1}, 0
v_mov_b32 v{KB+2}, 0
v_mov_b32 v{KB+3}, 0
s_waitcnt lgkmcnt(0)''')
    for h in range(2):
        s = S0[h]
        k(f'''{mf(s, KA, Q1[h], None)}
{mf(s, KB, q2(h, 0), s)}
v_max3_f32 v{TT}, v{s}, v{s+1}, v{s+2}''')
        for j in range(3, 15, 2): k(f'v_max3_f32 v{TT}, v{TT}, v{s+j}, v{s+j+1}')
        k(f'v_max_f32 v{TT}, v{TT}, v{s+15}')
        xadd32(k, TT, TT + 1, 'max')
        k(f'''v_max_f32 v{TT}, v{TT}, v{M+h}
v_sub_f32 v{AL}, v{M+h}, v{TT}
v_exp_f32 v{AL}, v{AL}
v_mov_b32 v{M+h}, v{TT}''')
        for j in range(16):
            k(f'''v_sub_f32 v{s+j}, v{s+j}, v{TT}
v_exp_f32 v{s+j}, v{s+j}
v_mul_f32 v{O[h]+j}, v{O[h]+j}, v{AL}''')
        for j in range(8): k(f'v_cvt_pk_bf16_f32 v{P[h]+j}, v{s+2*j}, v{s+2*j+1}')
        k(f'''{mf(O[h], VA, P[h], O[h])}
{mf(O[h], VA + 4, P[h] + 4, O[h])}''')
    k(f'''s_add_u32 s7, s7, 1
s_and_b32 s8, s7, 3
s_cmp_eq_u32 s8, 0
s_cselect_b32 s8, 512, 0
s_add_u32 s8, s8, 2240
s_cmp_eq_u32 s8, {2240+512}
s_cselect_b32 s9, {GL-12}, 4
v_add_u32 v2, s8, v2
v_add_u32 v3, s8, v3
v_add_u32 v4, s9, v4
s_cmp_lt_u32 s7, 64
s_cbranch_scc1 L_k2_sl
s_branch L_k2_epi''')
    k('''L_k2_loader:
s_sub_u32 s3, s3, 4
s_waitcnt lgkmcnt(0)''')
    srd_ws(k, 20, 16, 'KV')
    k('s_mul_i32 s4, s3, 7168')
    for j in range(7):
        if j % 4 == 0:
            if j: k('s_add_u32 s4, s4, 4096')
            k('s_mov_b32 m0, s4')
        k(f'buffer_load_dwordx4 v2, s[20:23], s4 offen offset:{(j%4)*1024} lds')
    k(f'''s_mul_i32 s4, s3, {30*1024}
s_add_u32 s4, s4, {28*1024}''')
    for j in range(30):
        if j % 4 == 0:
            if j: k('s_add_u32 s4, s4, 4096')
            k('s_mov_b32 m0, s4')
        k(f'buffer_load_dwordx4 v2, s[20:23], s4 offen offset:{(j%4)*1024} lds')
        if j == 3:
            k('s_waitcnt vmcnt(4)')
            k.stamp(0)
            k('s_barrier')
    k('''s_waitcnt vmcnt(0)''')
    k.stamp(1)
    k('s_barrier')
    if helpers: helpers(k)
    k('''L_k2_end:
s_endpgm''')
    return k, '; @launch kernel=k2_kernel grid=(256,1,1) block=(512,1,1) lds=163840'
```

```python
from dsl import K
from common import *
from k0 import tprep_lane, tprep_rdaddr, tprep_read, TP_RS, TP_WAVE


def job_win(k, sU, sL, tag):
    srd_in(k, 20, 6, 576 * 4608 * 2)
    srd_ws(k, 24, 16, 'WIN')
    srd_ws(k, 28, 16, 'MODB')
    RS = 80
    R0 = 40
    NR = 18
    k(f'''v_lshlrev_b32 v2, 4, v1
buffer_load_dwordx4 v[8:11], v2, s[28:31], 0 offen
buffer_load_dwordx4 v[12:15], v2, s[28:31], 0 offen offset:1024
buffer_load_dwordx4 v[16:19], v2, s[28:31], 0 offen offset:2048
v_lshrrev_b32 v3, 2, v1
v_mul_u32_u24 v36, 9216, v3
v_and_b32 v5, 3, v1
v_lshl_add_u32 v36, v5, 4, v36
s_lshl_b32 s33, s{sU}, 6''')
    log = ['m', 'm', 'm']

    def ld(st):
        r = R0 + 4 * (st % NR)
        k(f'''buffer_load_dwordx4 v[{r}:{r+3}], v36, s[20:23], s33 offen
s_add_u32 s33, s33, {16*9216}''')
        log.append(f'L{st}')
    for st in range(NR): ld(st)
    k(f'''v_mul_u32_u24 v3, {RS}, v3
v_lshl_add_u32 v3, v5, 4, v3
v_add_u32 v3, s{sL}, v3
v_add_u32 v3, 3072, v3
v_lshrrev_b32 v4, 5, v1
v_lshlrev_b32 v4, 3, v4
v_bfe_u32 v6, v1, 2, 2
v_add_u32 v4, v4, v6
v_mul_u32_u24 v4, {RS}, v4
v_bfe_u32 v6, v1, 4, 1
v_lshl_add_u32 v4, v6, 5, v4
v_and_b32 v6, 1, v1
v_lshl_add_u32 v4, v6, 4, v4
v_bfe_u32 v7, v1, 1, 1
v_lshl_add_u32 v4, v7, 3, v4
v_add_u32 v4, s{sL}, v4
v_add_u32 v4, 3072, v4
v_mul_u32_u24 v5, 1152, v6
v_lshrrev_b32 v6, 5, v1
v_lshl_add_u32 v5, v6, 4, v5
v_add_u32 v5, s{sL}, v5
v_add_u32 v6, s{sL}, v2
s_mul_i32 s32, s{sU}, {37*1024}
s_waitcnt vmcnt({NR})
ds_write_b128 v6, v[8:11]
ds_write_b128 v6, v[12:15] offset:1024
ds_write_b128 v6, v[16:19] offset:2048''')
    ACC = 112

    def wr(st):
        r = R0 + 4 * (st % NR)
        k(f'''s_waitcnt vmcnt({len(log)-1-log.index(f"L{st}")})
ds_write_b128 v3, v[{r}:{r+3}] offset:{(st&1)*16*RS}''')
    wr(0)
    for st in range(36):
        b = st & 1
        f = 8 + 4 * b; m = 16 + 4 * b
        k(f'''s_waitcnt lgkmcnt(0)
ds_read_b64_tr_b16 v[{f}:{f+1}], v4 offset:{b*16*RS}
ds_read_b64_tr_b16 v[{f+2}:{f+3}], v4 offset:{b*16*RS+4*RS}
ds_read_b128 v[{m}:{m+3}], v5 offset:{st*32}''')
        if st + NR < 36: ld(st + NR)
        if st + 1 < 36: wr(st + 1)
        k(f'''s_waitcnt lgkmcnt({1 if st+1<36 else 0})
v_mfma_f32_32x32x16_bf16 v[{ACC}:{ACC+15}], v[{m}:{m+3}], v[{f}:{f+3}], {'0' if st == 0 else f'v[{ACC}:{ACC+15}]'}
buffer_store_dwordx4 v[{f}:{f+3}], v2, s[24:27], s32 offen offset:{(st%4)*1024}''')
        log.append('S')
        if st % 4 == 3: k('s_add_u32 s32, s32, 4096')
    k(f'''v_cvt_pk_bf16_f32 v24, v{ACC}, v{ACC+1}
v_lshlrev_b32 v25, 16, v24
v_and_b32 v26, 0xffff0000, v24
v_sub_f32 v27, v{ACC}, v25
v_sub_f32 v28, v{ACC+1}, v26
v_cvt_pk_bf16_f32 v27, v27, v28
v_lshrrev_b32 v32, 16, v25
v_or_b32 v32, v32, v25
v_and_b32 v33, 0xffff, v27
v_or_b32 v33, v33, v26
v_lshrrev_b32 v34, 16, v26
v_and_b32 v28, 0xffff0000, v27
v_or_b32 v34, v34, v28
v_mov_b32 v35, 0
v_cmp_gt_u32 vcc, 32, v1
v_cndmask_b32 v32, 0, v32, vcc
v_cndmask_b32 v33, 0, v33, vcc
v_cndmask_b32 v34, 0, v34, vcc
buffer_store_dwordx4 v[32:35], v2, s[24:27], s32 offen''')


def helpers(k):
    k(f'''s_load_dwordx2 s[4:5], s[0:1], {A_WO}
s_load_dwordx2 s[8:9], s[0:1], {A_WSP}
s_load_dwordx2 s[6:7], s[0:1], {A_WIN}
s_load_dwordx2 s[12:13], s[0:1], {A_WOUT}
s_and_b32 s18, s3, 1
s_lshl_b32 s19, s2, 1
s_add_u32 s18, s18, s19
s_and_b32 s19, s3, 1
s_mul_i32 s19, s19, 6144
s_add_u32 s19, s19, {64*2368}
s_waitcnt lgkmcnt(0)
s_cmp_ge_u32 s3, 2
s_cbranch_scc1 L_h_lds''')
    job_wsp(k, 18)
    k('''s_endpgm
L_h_lds:
s_cmp_ge_u32 s18, 144
s_cbranch_scc1 L_h_t''')
    job_win(k, 18, 19, 'h')
    k('''s_endpgm
L_h_t:
s_sub_u32 s18, s18, 144
s_cmp_ge_u32 s18, 72
s_cbranch_scc1 L_h_wout
s_lshl_b32 s18, s18, 1
L_h_wo:''')
    job_t(k, 18, 19, 'WO')
    k('''s_add_u32 s18, s18, 1
s_bitcmp1_b32 s18, 0
s_cbranch_scc1 L_h_wo
s_endpgm
L_h_wout:
s_sub_u32 s18, s18, 72
s_cmp_ge_u32 s18, 288
s_cbranch_scc1 L_k2_end
s_lshl_b32 s18, s18, 1
L_h_wo2:''')
    job_t(k, 18, 19, 'WOUT')
    k('''s_add_u32 s18, s18, 1
s_bitcmp1_b32 s18, 0
s_cbranch_scc1 L_h_wo2''')


def job_t(k, sU, sL, which):
    ns = 18 if which == 'WO' else 72
    srd_in(k, 20, 4 if which == 'WO' else 12, ns * 32 * 576 * 2)
    srd_ws(k, 24, 16, which)
    if ns == 18:
        k(f'''s_mul_i32 s32, s{sU}, 57
s_lshr_b32 s32, s32, 10''')
    else:
        k(f'''s_mul_i32 s32, s{sU}, 911
s_lshr_b32 s32, s32, 16''')
    k(f'''s_mul_i32 s33, s32, {ns}
s_sub_u32 s33, s{sU}, s33''')
    tprep_lane(k, 1, 2, 8, 14, sL, wo_step=33 if which == 'WO' else None)
    k('s_mul_i32 s35, s32, 144')
    if which != 'WO':
        k(f'''s_mul_i32 s34, s33, {32*1152}
s_add_u32 s35, s35, s34''')
    for i in range(5):
        k(f'buffer_load_dwordx4 v[{20+4*i}:{23+4*i}], v{2+i}, s[20:23], s35 offen')
    tprep_rdaddr(k, 1, 16, 17, 18, sL)
    k(f'''v_lshlrev_b32 v2, 4, v1
v_lshrrev_b32 v3, 4, v1
v_lshlrev_b32 v3, 7, v3
v_and_b32 v4, 15, v1
v_lshl_add_u32 v3, v4, 4, v3
v_cmp_gt_u32 vcc, 8, v4
v_mov_b32 v4, {OOB}
v_cndmask_b32 v3, v4, v3, vcc
s_mul_i32 s34, s{sU}, 4608
s_add_u32 s35, s34, 4096
s_waitcnt vmcnt(0)''')
    for i in range(5):
        k(f'ds_write_b128 v{8+i}, v[{20+4*i}:{23+4*i}]')
    k('s_waitcnt lgkmcnt(0)')
    tprep_read(k, 16, 17, 44)
    k('s_waitcnt lgkmcnt(0)')
    for j in range(4):
        k(f'buffer_store_dwordx4 v[{44+4*j}:{47+4*j}], v2, s[24:27], s34 offen offset:{1024*j}')
    k('buffer_store_dwordx4 v[60:63], v3, s[24:27], s35 offen')


def job_wsp(k, sU):
    srd_in(k, 20, 8, S * S * 2)
    srd_ws(k, 24, 16, 'WSP')
    k(f'''v_and_b32 v2, 15, v1
v_lshlrev_b32 v2, 12, v2
v_lshrrev_b32 v3, 4, v1
v_lshl_add_u32 v2, v3, 4, v2
v_lshlrev_b32 v3, 4, v1
s_lshr_b32 s32, s{sU}, 2
s_lshl_b32 s32, s32, 16
s_and_b32 s33, s{sU}, 3
s_lshl_b32 s33, s33, 10
s_add_u32 s32, s32, s33
s_lshl_b32 s33, s{sU}, 14''')
    for st in range(16):
        k(f'buffer_load_dwordx4 v[{8+4*st}:{11+4*st}], v2, s[20:23], s32 offen offset:{st*64}')
    for st in range(16):
        k(f'''s_waitcnt vmcnt(15)
buffer_store_dwordx4 v[{8+4*st}:{11+4*st}], v3, s[24:27], s33 offen offset:{(st%4)*1024}''')
        if st % 4 == 3: k('s_add_u32 s33, s33, 4096')


def gen_kp():
    k = K('kp_kernel', vgpr=184, sgpr=48)
    k(f'''s_cmp_ge_u32 s2, 344
s_cbranch_scc1 L_kp_end
s_load_dwordx2 s[4:5], s[0:1], {A_WO}
s_load_dwordx4 s[8:11], s[0:1], {A_WSP}
s_load_dwordx2 s[6:7], s[0:1], {A_WIN}
s_load_dwordx2 s[12:13], s[0:1], {A_WOUT}
s_load_dwordx2 s[16:17], s[0:1], {A_WS}''')
    waveid(k, 3, 1)
    k(f'''v_and_b32 v1, 63, v0
s_lshl_b32 s18, s2, 2
s_add_u32 s18, s18, s3
s_mul_i32 s19, s3, {TP_WAVE}
s_waitcnt lgkmcnt(0)
s_cmp_ge_u32 s2, 36
s_cbranch_scc1 L_kp_b''')
    job_win(k, 18, 19, 'a')
    k('''s_endpgm
L_kp_b:
s_cmp_ge_u32 s2, 72
s_cbranch_scc1 L_kp_c
s_sub_u32 s18, s18, 144''')
    job_t(k, 18, 19, 'WO')
    k('''s_endpgm
L_kp_c:
s_cmp_ge_u32 s2, 216
s_cbranch_scc1 L_kp_d
s_sub_u32 s18, s18, 288''')
    job_t(k, 18, 19, 'WOUT')
    k('''s_endpgm
L_kp_d:
s_sub_u32 s18, s18, 864''')
    job_wsp(k, 18)
    k('''L_kp_end:
s_endpgm''')
    return k, f'; @launch kernel=kp_kernel grid=(344,1,1) block=(256,1,1) lds={4*TP_WAVE}'
```

```python
import re, sys

TRANS = ('v_exp_f32', 'v_log_f32', 'v_rcp_f32', 'v_rsq_f32', 'v_sqrt_f32', 'v_sin_f32', 'v_cos_f32',
         'v_exp_f16', 'v_rcp_f16', 'v_rcp_iflag_f32')
NODST_S = ('s_cmp', 's_cbranch', 's_branch', 's_waitcnt', 's_nop', 's_barrier', 's_setprio', 's_sleep',
           's_endpgm', 's_bitcmp')


def parse_reg(tok):
    tok = tok.strip()
    tok = tok.lstrip('-')
    m = re.fullmatch(r'abs\((.*)\)', tok) or re.fullmatch(r'\|(.*)\|', tok)
    if m: tok = m.group(1)
    m = re.fullmatch(r'([vas])(\d+)', tok)
    if m: return {(m.group(1), int(m.group(2)))}
    m = re.fullmatch(r'([vas])\[(\d+):(\d+)\]', tok)
    if m: return {(m.group(1), i) for i in range(int(m.group(2)), int(m.group(3)) + 1)}
    if tok == 'vcc': return {('vcc', 0), ('vcc', 1)}
    if tok == 'vcc_lo': return {('vcc', 0)}
    if tok == 'vcc_hi': return {('vcc', 1)}
    if tok == 'exec': return {('exec', 0), ('exec', 1)}
    if tok == 'exec_lo': return {('exec', 0)}
    if tok == 'exec_hi': return {('exec', 1)}
    if tok == 'm0': return {('m0', 0)}
    return set()


class Ins:
    __slots__ = ('text', 'mn', 'ops', 'mods', 'kind', 'rd', 'wr', 'label', 'target', 'states', 'passes',
                 'mA', 'mB', 'mC', 'mD', 'dpp', 'sdwa', 'lds', 'data', 'sread')

    def __init__(self, text):
        self.text = text
        t = text.split(';')[0].strip()
        self.label = None; self.target = None; self.states = 1; self.passes = 0
        self.rd = set(); self.wr = set(); self.dpp = False; self.sdwa = False; self.lds = False
        self.mA = self.mB = self.mC = self.mD = set(); self.data = set(); self.sread = set()
        self.ops = []; self.mods = ''
        if not t or t.startswith('.'):
            self.kind = 'dir'; self.mn = ''; self.states = 0; return
        if t.endswith(':'):
            self.kind = 'label'; self.label = t[:-1]; self.mn = ''; self.states = 0; return
        parts = t.split(None, 1)
        mn = parts[0]; self.mn = mn
        rest = parts[1] if len(parts) > 1 else ''
        ops = []; cur = ''; depth = 0
        for ch in rest:
            if ch in '[(': depth += 1
            if ch in '])': depth -= 1
            if ch == ',' and depth == 0:
                ops.append(cur.strip()); cur = ''
            else:
                cur += ch
        if cur.strip(): ops.append(cur.strip())
        mods = ''
        if ops:
            last = ops[-1].split(None, 1)
            if len(last) > 1:
                ops[-1] = last[0]; mods = last[1]
        self.ops = ops; self.mods = mods
        R = [parse_reg(o) for o in ops]
        base = re.sub(r'_(e32|e64|dpp|sdwa)$', '', mn)
        if mn.startswith('v_mfma'):
            self.kind = 'mfma'
            self.mD, self.mA, self.mB, self.mC = R[0], R[1], R[2], R[3]
            self.wr = R[0]; self.rd = R[1] | R[2] | R[3]
            self.passes = 8 if '32x32x16' in mn else 4 if '16x16x32' in mn else 16
        elif mn.startswith('v_'):
            self.kind = 'valu'
            self.dpp = bool(re.search(r'row_|quad_perm|wave_', mods)) or mn.endswith('_dpp')
            self.sdwa = 'dst_sel' in mods or 'op_sel' in mods and not mn.startswith('v_pk_')
            if base in ('v_swap_b32', 'v_permlane32_swap_b32', 'v_permlane16_swap_b32'):
                self.wr = R[0] | R[1]; self.rd = R[0] | R[1]
            elif re.match(r'v_(add|sub|subrev)_co_u32|v_addc_co|v_subb_co|v_subbrev_co|v_mad_u64', base):
                self.wr = R[0] | R[1]; self.rd = set().union(*R[2:])
            else:
                self.wr = R[0]; self.rd = set().union(*R[1:]) if len(R) > 1 else set()
                if base.startswith(('v_fmac', 'v_mac', 'v_pk_fmac', 'v_dot2c', 'v_writelane')) or self.dpp or 'UNUSED_PRESERVE' in mods:
                    self.rd |= R[0]
            if base == 'v_nop': self.wr = set()
            self.sread = {r for r in self.rd if r[0] in ('s', 'vcc')}
        elif mn.startswith('ds_'):
            self.kind = 'ds'
            if mn.startswith(('ds_read', 'ds_bpermute', 'ds_permute', 'ds_swizzle')):
                self.wr = R[0]; self.rd = set().union(*R[1:])
            else:
                self.rd = set().union(*R)
        elif mn.startswith(('buffer_', 'global_')):
            self.kind = 'vmem'
            words = (mods + ' ').split()
            self.lds = 'lds' in words or '_lds_' in mn
            if mn.startswith(('buffer_wbl2', 'buffer_inv')):
                pass
            elif mn.startswith('buffer_load') or mn.startswith('global_load'):
                if self.lds:
                    self.rd = set().union(*R) | {('m0', 0)}
                else:
                    self.wr = R[0]; self.rd = set().union(*R[1:])
                    if 'd16' in mn: self.rd |= R[0]
            elif mn.startswith('buffer_store'):
                self.rd = set().union(*R); self.data = R[0]
            elif mn.startswith('global_store'):
                self.rd = set().union(*R); self.data = R[1]
            elif 'atomic' in mn:
                self.rd = set().union(*R)
                if 'sc0' in words: self.wr = R[0]
            else:
                raise ValueError('unknown vmem ' + t)
            self.sread = {r for r in self.rd if r[0] in ('s', 'vcc')}
        elif mn.startswith('s_'):
            if mn.startswith(('s_load', 's_buffer_load', 's_memtime', 's_memrealtime')):
                self.kind = 'smem'; self.wr = R[0]; self.rd = set().union(*R[1:]) if len(R) > 1 else set()
            else:
                self.kind = 'salu'
                if mn.startswith(NODST_S):
                    self.rd = set().union(*R) if R else set()
                else:
                    self.wr = R[0]; self.rd = set().union(*R[1:]) if len(R) > 1 else set()
                    if 'saveexec' in mn:
                        self.wr = self.wr | {('exec', 0), ('exec', 1)}
                    if mn in ('s_addk_i32', 's_mulk_i32'): self.rd |= R[0]
                if mn == 's_nop': self.states = int(ops[0], 0) + 1
                if mn.startswith(('s_cbranch', 's_branch')): self.target = ops[0]
        else:
            raise ValueError('unknown instr ' + t)

    def is_trans(self): return re.sub(r'_(e32|e64)$', '', self.mn) in TRANS


def need(p, c):
    n = 0
    vp = {r for r in p.wr if r[0] in 'va'}
    if p.kind == 'valu':
        if c.kind == 'mfma' and vp & c.rd: n = max(n, 2)
        sw = {r for r in p.wr if r[0] in ('s', 'vcc')}
        if sw:
            if c.kind == 'vmem' and sw & c.rd: n = max(n, 5)
            if c.kind == 'valu' and sw & c.rd:
                n = max(n, 4 if c.mn.startswith(('v_readlane', 'v_writelane')) else 2)
            if c.kind in ('salu', 'smem') and sw & c.rd: n = max(n, 2)
            if c.kind == 'salu' and c.mn.startswith('s_cbranch_vcc') and ('vcc', 0) in sw: n = max(n, 2)
        if c.kind == 'valu' and vp & c.rd:
            if c.mn.startswith(('v_readfirstlane', 'v_readlane')): n = max(n, 1)
            if c.mn.startswith('v_permlane') or c.dpp: n = max(n, 2)
            if p.is_trans() and not c.is_trans(): n = max(n, 1)
            if p.is_trans() and c.is_trans(): n = max(n, 1)
        if p.sdwa and c.kind in ('valu',) and vp & (c.rd | c.wr): n = max(n, 1)
        if p.is_trans() and c.kind in ('vmem', 'ds') and vp & c.rd: n = max(n, 1)
        if any(r[0] == 'exec' for r in p.wr):
            if c.kind in ('valu', 'mfma'): n = max(n, 5)
    if p.kind == 'mfma':
        big = p.passes
        t_rw = {4: 8, 8: 12, 16: 20}[big]
        t_c = {4: 6, 8: 10, 16: 18}[big]
        t_war = {4: 3, 8: 7, 16: 15}[big]
        D = p.mD
        if c.kind == 'mfma':
            if D & (c.mA | c.mB): n = max(n, t_rw)
            if D & c.mC and not (D == c.mC and p.passes == c.passes): n = max(n, t_c)
            if D & c.mD and not (D == c.mD and p.passes == c.passes) and not (D & c.mC): n = max(n, t_c)
        elif c.kind in ('valu', 'vmem', 'ds'):
            if D & (c.rd | c.wr): n = max(n, t_rw)
            if c.kind == 'valu' and p.mC & c.wr: n = max(n, t_war)
            if c.kind in ('vmem', 'ds') and p.mC & c.wr: n = max(n, t_war)
    if p.kind == 'salu' and ('m0', 0) in p.wr:
        if c.kind == 'vmem' and c.lds: n = max(n, 1)
    if p.kind == 'salu' and any(r[0] == 'exec' for r in p.wr):
        if c.kind == 'valu' and (c.dpp or c.mn.startswith('v_permlane')): n = max(n, 2)
    if p.kind == 'vmem' and len(p.data) >= 3:
        if c.kind == 'valu' and p.data & c.wr: n = max(n, 2)
        elif c.kind in ('ds', 'vmem', 'mfma') and p.data & c.wr: n = max(n, 1)
    return n


def build_cfg(ins):
    labels = {x.label: i for i, x in enumerate(ins) if x.kind == 'label'}
    preds = [[] for _ in ins]
    for i, x in enumerate(ins):
        if i + 1 < len(ins) and not (x.mn == 's_branch' or x.mn == 's_endpgm'):
            preds[i + 1].append(i)
        if x.target is not None:
            preds[labels[x.target]].append(i)
    return labels, preds


def hazard_pass(lines, verbose=False):
    ins = [Ins(l) for l in lines]
    total = 0
    i = 0
    labels, preds = build_cfg(ins)
    while i < len(ins):
        c = ins[i]
        if c.kind in ('dir', 'label'):
            i += 1; continue
        worst = 0; why = None
        stack = [(p, 0) for p in preds[i]]
        seen = {}
        while stack:
            j, dist = stack.pop()
            if dist >= 20: continue
            if seen.get(j, 99) <= dist: continue
            seen[j] = dist
            p = ins[j]
            if p.kind not in ('dir', 'label'):
                n = need(p, c)
                if n - dist > worst: worst = n - dist; why = p.text
            for q in preds[j]: stack.append((q, dist + p.states))
        if worst > 0:
            k = worst
            new = []
            while k > 0:
                m = min(k, 16); new.append(Ins(f'  s_nop {m - 1}')); k -= m
            if verbose: print(f'hazard: +{worst} before [{c.text.strip()}] after [{why.strip()}]', file=sys.stderr)
            ins[i:i] = new
            total += worst
            labels, preds = build_cfg(ins)
            i += len(new)
        i += 1
    return [x.text for x in ins], total


def wait_check(lines, name=''):
    ins = [Ins(l) for l in lines]
    labels = {x.label: i for i, x in enumerate(ins) if x.kind == 'label'}
    errs = set()
    sys.setrecursionlimit(100000)
    work = [(0, (), (), ())]
    seen = set()
    steps = 0
    while work:
        i, vm, lg, visits = work.pop()
        vm = list(vm); lg = list(lg); visits = dict(visits)
        while i < len(ins):
            steps += 1
            if steps > 3000000:
                print('wait_check: too many steps', name, file=sys.stderr); return errs
            x = ins[i]
            if x.kind == 'label':
                visits[i] = visits.get(i, 0) + 1
                if visits[i] > 3: break
                key = (i, tuple(vm), tuple(lg))
                if key in seen: break
                seen.add(key)
            if x.kind in ('dir', 'label'):
                i += 1; continue
            touched = x.rd | x.wr
            for q, qn in ((vm, 'vm'), (lg, 'lgkm')):
                for (regs, txt, sm) in q:
                    if regs & touched:
                        errs.add(f'{name}: [{x.text.strip()}] touches pending {qn} dest of [{txt.strip()}]')
            if x.mn == 's_waitcnt':
                t = x.text.split(';')[0]
                m = re.search(r'vmcnt\((\d+)\)', t)
                if m:
                    n = int(m.group(1)); vm = vm[len(vm) - n:] if n < len(vm) and n > 0 else ([] if n == 0 else vm)
                m = re.search(r'lgkmcnt\((\d+)\)', t)
                if m:
                    n = int(m.group(1))
                    if n == 0: lg = []
                    elif not any(e[2] for e in lg):
                        if n < len(lg): lg = lg[len(lg) - n:]
            elif x.kind == 'vmem':
                vm.append((frozenset(x.wr), x.text, False))
                if len(vm) > 63: errs.add(f'{name}: vmcnt overflow (>63 outstanding) at [{x.text.strip()}]')
            elif x.kind == 'ds':
                lg.append((frozenset(x.wr), x.text, False))
            elif x.kind == 'smem':
                lg.append((frozenset(x.wr), x.text, True))
            if x.mn == 's_endpgm': break
            if x.target is not None:
                t = labels[x.target]
                if x.mn == 's_branch':
                    i = t; continue
                work.append((t, tuple(vm), tuple(lg), tuple(visits.items())))
            i += 1
    return errs


WT = {'k2_kernel': 'sc1', 'k4_kernel': 'sc1', 'k5_kernel': 'sc1'}


class K:
    def __init__(self, name, vgpr, agpr=0, sgpr=96):
        self.name = name; self.lines = []; self.vgpr = vgpr; self.agpr = agpr; self.sgpr = sgpr
        self._lab = 0

    def __call__(self, s):
        for l in s.strip('\n').split('\n'):
            l = l.strip()
            if not l: continue
            if l.startswith('buffer_store') and 'sc1' not in l and ';plain' not in l and WT.get(self.name):
                l = l + ' ' + WT[self.name]
            self.lines.append(l if l.endswith(':') else '  ' + l)

    def stamp(self, i):
        self.lines.append(f'  ;STAMP {i}')

    def newlabel(self, p='L'):
        self._lab += 1
        return f'{p}_{self.name}_{self._lab}'

    def instrument(self, kidx):
        self.sgpr = 102
        head = ['  s_memrealtime s[92:93]', '  v_readfirstlane_b32 s91, v0', '  s_memtime s[84:85]', '  s_waitcnt lgkmcnt(0)']
        tail = f'''s_waitcnt vmcnt(0) lgkmcnt(0)
s_memrealtime s[94:95]
s_memtime s[86:87]
s_load_dwordx2 s[96:97], s[0:1], 112
s_lshr_b32 s91, s91, 6
s_and_b32 s91, s91, 15
s_lshl_b32 s90, s2, 4
s_add_u32 s91, s91, s90
s_add_u32 s91, s91, {kidx*16384}
s_lshl_b32 s91, s91, 4
s_waitcnt lgkmcnt(0)
s_add_u32 s96, s96, 0x3800000
s_addc_u32 s97, s97, 0
s_and_b32 s97, s97, 0xffff
s_mov_b32 s98, 0x400000
s_mov_b32 s99, 0x20000
s_sub_u32 s86, s86, s84
s_mov_b64 exec, 1
v_mov_b32 v0, s92
v_mov_b32 v1, s94
v_mov_b32 v2, s86
v_mov_b32 v3, 1
v_mov_b32 v4, 0
buffer_store_dwordx4 v[0:3], v4, s[96:99], s91 offen
s_add_u32 s96, s96, 0x400000
s_addc_u32 s97, s97, 0
s_mov_b32 s98, 0x800000
s_lshl_b32 s91, s91, 1
''' + ''.join(f's_sub_u32 s{68+2*i}, s{68+2*i}, s84\nv_mov_b32 v{8+i}, s{68+2*i}\n' for i in range(8)) + '''buffer_store_dwordx4 v[8:11], v4, s[96:99], s91 offen
buffer_store_dwordx4 v[12:15], v4, s[96:99], s91 offen offset:16
s_endpgm'''
        tail = tail.split('\n')
        new = list(head) + [f'  s_mov_b32 s{68+2*i}, s84' for i in range(8)]
        for l in self.lines:
            if l.strip().startswith(';STAMP'):
                i = int(l.split()[1])
                new += [f'  s_memtime s[{68+2*i}:{69+2*i}]', '  s_waitcnt lgkmcnt(0)']
            elif l.strip() == 's_endpgm': new += ['  ' + t for t in tail]
            else: new.append(l)
        self.lines = new

    def finish(self, verbose=False):
        lines, n = hazard_pass(self.lines, verbose)
        errs = wait_check(lines, self.name)
        for e in sorted(errs):
            if not (self.name=='k0_kernel' and 'v14' in e): print('WAITCHK', e, file=sys.stderr)
        mv = ma = ms = -1
        for l in lines:
            x = Ins(l)
            for r in x.rd | x.wr:
                if r[0] == 'v': mv = max(mv, r[1])
                if r[0] == 'a': ma = max(ma, r[1])
                if r[0] == 's': ms = max(ms, r[1])
        acc = (self.vgpr + 3) // 4 * 4
        assert mv < acc, (self.name, 'vgpr', mv)
        assert ma < self.agpr or ma < 0, (self.name, 'agpr', ma)
        assert ms < self.sgpr, (self.name, 'sgpr', ms)
        nfv = acc + self.agpr if self.agpr else self.vgpr
        head = f'.text\n.globl {self.name}\n.p2align 8\n.type {self.name},@function\n{self.name}:\n'
        tail = f'''.section .rodata,"a"
.p2align 6
.amdhsa_kernel {self.name}
  .amdhsa_next_free_vgpr {nfv}
  .amdhsa_next_free_sgpr {self.sgpr}
  .amdhsa_accum_offset {acc}
  .amdhsa_group_segment_fixed_size 0
  .amdhsa_kernarg_size 120
  .amdhsa_user_sgpr_count 2
  .amdhsa_user_sgpr_kernarg_segment_ptr 1
  .amdhsa_system_sgpr_workgroup_id_x 1
  .amdhsa_float_denorm_mode_32 3
.end_amdhsa_kernel
'''
        print(f'{self.name}: {len(lines)} lines, nops inserted {n}, maxv {mv} maxa {ma} maxs {ms}', file=sys.stderr)
        return head + '\n'.join(lines) + '\n' + tail
```

```python
from dsl import K
from common import *

LOG2E = 1.4426950408889634
N_MOD, N_LN, N_WQ = 162, 256, 36
K0_GRID = N_MOD + N_LN + N_WQ
TP_RS = 176
TP_WAVE = 32 * TP_RS


def tprep_lane(k, vlane, vsrc, vlds, vt, sldsbase, wo_step=None):
    for i in range(5):
        k(f'''v_add_u32 v{vt}, {64*i}, v{vlane}
v_mul_u32_u24 v{vt+1}, 57, v{vt}
v_lshrrev_b32 v{vt+1}, 9, v{vt+1}
v_mul_u32_u24 v{vt+2}, 9, v{vt+1}
v_sub_u32 v{vt+2}, v{vt}, v{vt+2}
v_lshlrev_b32 v{vt+2}, 4, v{vt+2}
v_mul_u32_u24 v{vlds+i}, {TP_RS}, v{vt+1}
v_add3_u32 v{vlds+i}, v{vlds+i}, v{vt+2}, s{sldsbase}''')
        if wo_step is not None:
            k(f'''v_lshrrev_b32 v{vt+3}, 4, v{vt+1}
v_mul_u32_u24 v{vt+3}, 18, v{vt+3}
v_and_b32 v{vt+4}, 15, v{vt+1}
v_add_u32 v{vt+3}, v{vt+3}, v{vt+4}
s_mul_i32 s{wo_step+1}, s{wo_step}, 36
v_add_u32 v{vt+3}, s{wo_step+1}, v{vt+3}
v_lshrrev_b32 v{vt+4}, 1, v{vt+1}
s_sub_u32 s{wo_step+1}, s{wo_step}, 16
s_lshl_b32 s{wo_step+1}, s{wo_step+1}, 4
v_add_u32 v{vt+4}, s{wo_step+1}, v{vt+4}
v_mul_u32_u24 v{vt+4}, 18, v{vt+4}
v_and_b32 v{vt+5}, 1, v{vt+1}
v_add3_u32 v{vt+4}, v{vt+4}, v{vt+5}, 16
s_cmp_ge_u32 s{wo_step}, 16
s_cselect_b64 vcc, -1, 0
v_cndmask_b32 v{vt+1}, v{vt+3}, v{vt+4}, vcc''')
        k(f'''v_mul_u32_u24 v{vsrc+i}, 1152, v{vt+1}
v_add_u32 v{vsrc+i}, v{vsrc+i}, v{vt+2}''')
    k(f'''v_cmp_gt_u32 vcc, 32, v{vlane}
v_mov_b32 v{vt}, {OOB}
v_cndmask_b32 v{vsrc+4}, v{vt}, v{vsrc+4}, vcc
v_and_b32 v{vt}, 31, v{vlane}
v_mul_u32_u24 v{vt}, {TP_RS}, v{vt}
v_add_u32 v{vt}, 160, v{vt}
v_add_u32 v{vt}, s{sldsbase}, v{vt}
v_cndmask_b32 v{vlds+4}, v{vt}, v{vlds+4}, vcc''')


def tprep_rdaddr(k, vlane, vxy, vnat, vt, sldsbase):
    k(f'''v_lshrrev_b32 v{vt}, 4, v{vlane}
v_lshlrev_b32 v{vt}, 3, v{vt}
v_bfe_u32 v{vt+1}, v{vlane}, 2, 2
v_add_u32 v{vt}, v{vt}, v{vt+1}
v_mul_u32_u24 v{vt}, {TP_RS}, v{vt}
v_add_u32 v{vt}, s{sldsbase}, v{vt}
v_and_b32 v{vt+1}, 3, v{vlane}
v_lshl_add_u32 v{vxy}, v{vt+1}, 4, v{vt}
v_lshl_add_u32 v{vnat}, v{vt+1}, 3, v{vt}''')


def tprep_read(k, vxy, vnat, vd):
    for j in range(4):
        o = (j >> 1) * 64 + (j & 1) * 8
        k(f'''ds_read_b64_tr_b16 v[{vd+4*j}:{vd+4*j+1}], v{vxy} offset:{o}
ds_read_b64_tr_b16 v[{vd+4*j+2}:{vd+4*j+3}], v{vxy} offset:{o+4*TP_RS}''')
    k(f'''ds_read_b64_tr_b16 v[{vd+16}:{vd+17}], v{vnat} offset:128
ds_read_b64_tr_b16 v[{vd+18}:{vd+19}], v{vnat} offset:{128+4*TP_RS}''')


def gen_k0(tlb=False, stride=20):
    k = K('k0_kernel', vgpr=64, sgpr=48)
    k(f'''s_cmp_ge_u32 s2, {K0_GRID}
s_cbranch_scc1 L_k0_end
s_load_dwordx8 s[4:11], s[0:1], 0
s_load_dwordx4 s[12:15], s[0:1], {A_C}
s_load_dwordx2 s[16:17], s[0:1], {A_WS}''')
    waveid(k, 3, 1)
    k('v_and_b32 v1, 63, v0')
    code_prefetch(k, 'k0_kernel', 1, 60, 40, nwg=1024, swave=3)
    code_prefetch(k, 'k1_kernel', 1, 62, 40, nwg=16, swave=3)
    if tlb:
        k(f'''s_cmp_ge_u32 s2, 16
s_cbranch_scc1 L_k0_notlb
s_cmp_lg_u32 s3, 1
s_cbranch_scc1 L_k0_notlb
s_load_dwordx2 s[20:21], s[0:1], {A_WO}
s_load_dwordx4 s[24:27], s[0:1], {A_WIN}
s_load_dwordx4 s[28:31], s[0:1], {A_BSP}
s_load_dwordx2 s[32:33], s[0:1], {A_OUT}
v_lshlrev_b32 v58, {stride}, v1
s_waitcnt lgkmcnt(0)''')
        for ptr, n in ((16, 0x3600000), (20, 576*576*2), (24, 576*4608*2), (26, S*S*2), (28, S*2), (30, 2304*576*2), (32, S*D*2)):
            srd_in(k, 40, ptr, n)
            k('buffer_load_dword v59, v58, s[40:43], 0 offen')
        k('L_k0_notlb:')
    k(f'''s_waitcnt lgkmcnt(0)
s_cmp_ge_u32 s2, {N_MOD}
s_cbranch_scc1 L_k0_ln''')
    srd_in(k, 20, 14, 576 * 3456 * 2)
    srd_in(k, 24, 12, 576 * 2)
    srd_ws(k, 28, 16, 'MODP')
    k(f'''s_cmp_ge_u32 s2, 54
s_cselect_b32 s18, 1, 0
s_cmp_ge_u32 s2, 108
s_cselect_b32 s18, 2, s18
s_mul_i32 s19, s18, 54
s_sub_u32 s19, s2, s19
s_mul_i32 s32, s18, 192
s_mul_i32 s33, s3, 48
s_add_u32 s32, s32, s33
v_lshrrev_b32 v2, 3, v1
v_add_u32 v2, s32, v2
v_lshlrev_b32 v3, 1, v2
s_movk_i32 s33, 6912
v_mul_lo_u32 v2, v2, s33
v_and_b32 v4, 7, v1
s_lshl_b32 s33, s19, 7
v_lshl_add_u32 v4, v4, 4, s33
v_add_u32 v2, v2, v4''')
    for i in range(6):
        k(f'buffer_load_ushort v{8+i}, v3, s[24:27], 0 offen offset:{16*i}')
    for i in range(6):
        k(f'''s_mov_b32 s33, {i*8*6912}
buffer_load_dwordx4 v[{16+4*i}:{19+4*i}], v2, s[20:23], s33 offen''')
    for j in range(8): k(f'v_mov_b32 v{40+j}, 0')
    k('s_waitcnt vmcnt(6)')
    for i in range(6):
        k(f'''v_lshlrev_b32 v{8+i}, 16, v{8+i}
v_mul_f32 v5, {fhex(-LOG2E)}, v{8+i}
v_exp_f32 v5, v5
v_add_f32 v5, 1.0, v5
v_rcp_f32 v5, v5
v_mul_f32 v5, v5, v{8+i}
v_cvt_pk_bf16_f32 v5, v5, v5
v_lshlrev_b32 v{8+i}, 16, v5''')
    for i in range(6):
        k(f's_waitcnt vmcnt({5-i})')
        for j in range(4):
            unpack(k, 6, 16 + 4 * i + j)
            k(f'''v_fmac_f32 v{40+2*j}, v{8+i}, v6
v_fmac_f32 v{41+2*j}, v{8+i}, v7''')
    for j in range(8):
        k(f'v_add_f32_dpp v{40+j}, v{40+j}, v{40+j} row_ror:8 row_mask:0xf bank_mask:0xf')
    for j in range(8): xadd16(k, 40 + j, 48 + j)
    for j in range(8): xadd32(k, 40 + j, 48 + j)
    k(f'''s_lshl_b32 s33, s3, 8
v_lshl_add_u32 v5, v1, 5, s33
s_mov_b64 exec, 0xff
ds_write_b128 v5, v[40:43]
ds_write_b128 v5, v[44:47] offset:16
s_mov_b64 exec, -1
s_waitcnt lgkmcnt(0)
s_barrier
s_cmp_lg_u32 s3, 0
s_cbranch_scc1 L_k0_end
v_lshlrev_b32 v5, 2, v1
ds_read_b32 v8, v5
ds_read_b32 v9, v5 offset:256
ds_read_b32 v10, v5 offset:512
ds_read_b32 v11, v5 offset:768
s_mul_i32 s33, s18, {3456*4}
s_lshl_b32 s34, s19, 8
s_add_u32 s33, s33, s34
s_waitcnt lgkmcnt(0)
v_add_f32 v8, v8, v9
v_add_f32 v10, v10, v11
v_add_f32 v8, v8, v10
buffer_store_dword v8, v5, s[28:31], s33 offen
s_endpgm''')
    k(f'''L_k0_ln:
s_cmp_ge_u32 s2, {N_MOD+N_LN}
s_cbranch_scc1 L_k0_wq
s_sub_u32 s18, s2, {N_MOD}''')
    srd_in(k, 20, 4, S * D * 2)
    srd_ws(k, 24, 16, 'XN')
    k(f'''s_lshl_b32 s19, s18, 3
s_lshl_b32 s32, s3, 1
s_add_u32 s19, s19, s32
v_lshrrev_b32 v2, 5, v1
v_add_u32 v2, s19, v2
v_and_b32 v3, 31, v1
v_mul_u32_u24 v4, 1152, v2
v_lshl_add_u32 v4, v3, 4, v4
v_cmp_gt_u32 vcc, 24, v3
v_mov_b32 v5, {OOB}
v_cndmask_b32 v4, v5, v4, vcc
buffer_load_dwordx4 v[8:11], v4, s[20:23], 0 offen
buffer_load_dwordx4 v[12:15], v4, s[20:23], 0 offen offset:384
buffer_load_dwordx4 v[16:19], v4, s[20:23], 0 offen offset:768
v_lshrrev_b32 v6, 4, v2
v_mul_u32_u24 v6, 18, v6
v_lshrrev_b32 v7, 2, v3
v_add_u32 v6, v6, v7
v_lshlrev_b32 v6, 6, v6
v_and_b32 v7, 3, v3
v_lshl_add_u32 v6, v7, 4, v6
v_and_b32 v7, 15, v2
v_add_u32 v6, v6, v7
v_lshlrev_b32 v6, 4, v6
v_cndmask_b32 v6, v5, v6, vcc''')
    srd_ws(k, 28, 16, 'ST2')
    srd_ws(k, 32, 16, 'KV')
    k(f'''s_cmp_lg_u32 s3, 0
s_cbranch_scc1 L_k0_nos
v_mov_b32 v20, -1
v_mov_b32 v21, -1
v_mov_b32 v22, -1
v_mov_b32 v23, -1
v_lshlrev_b32 v7, 4, v1
s_lshl_b32 s36, s18, 10
buffer_store_dwordx4 v[20:23], v7, s[28:31], s36 offen
L_k0_nos:
s_cmp_lg_u32 s3, 1
s_cbranch_scc1 L_k0_noo
v_mov_b32 v24, 0x3f803f80
v_mov_b32 v25, 0x3f803f80
v_mov_b32 v26, 0x3f803f80
v_mov_b32 v27, 0x3f803f80
s_lshr_b32 s36, s18, 4
s_mul_i32 s36, s36, 9472
s_bfe_u32 s37, s18, 0x20002
s_mul_i32 s37, s37, 2240
s_add_u32 s36, s36, s37
s_and_b32 s37, s18, 3
s_mul_i32 s37, s37, 304
s_add_u32 s36, s36, s37
s_add_u32 s36, s36, {1024+18*16}
v_cmp_eq_u32 vcc, 0, v1
v_cndmask_b32 v7, v5, v1, vcc
buffer_store_dwordx4 v[24:27], v7, s[32:35], s36 offen
L_k0_noo:
s_waitcnt vmcnt(0)''')
    for j in range(12): unpack(k, 32 + 2 * j, 8 + j)
    k('''v_pk_add_f32 v[20:21], v[32:33], v[34:35]
v_pk_mul_f32 v[22:23], v[32:33], v[32:33]
v_pk_fma_f32 v[22:23], v[34:35], v[34:35], v[22:23]''')
    for j in range(2, 12):
        k(f'''v_pk_add_f32 v[20:21], v[20:21], v[{32+2*j}:{33+2*j}]
v_pk_fma_f32 v[22:23], v[{32+2*j}:{33+2*j}], v[{32+2*j}:{33+2*j}], v[22:23]''')
    k('''v_add_f32 v20, v20, v21
v_add_f32 v22, v22, v23''')
    for r in (8, 4, 2, 1):
        k(f'''v_add_f32_dpp v20, v20, v20 row_ror:{r} row_mask:0xf bank_mask:0xf
v_add_f32_dpp v22, v22, v22 row_ror:{r} row_mask:0xf bank_mask:0xf''')
    xadd16(k, 20, 21); xadd16(k, 22, 23)
    k(f'''v_mul_f32 v20, {fhex(1/576)}, v20
v_mul_f32 v22, {fhex(1/576)}, v22
v_fma_f32 v22, -v20, v20, v22
v_max_f32 v22, 0, v22
v_add_f32 v22, {fhex(1e-5)}, v22
v_rsq_f32 v22, v22
v_mul_f32 v20, v20, v22
v_sub_f32 v20, 0, v20''')
    for j in range(12):
        k(f'''v_pk_fma_f32 v[{32+2*j}:{33+2*j}], v[{32+2*j}:{33+2*j}], v[22:23], v[20:21] op_sel_hi:[1,0,0]
v_cvt_pk_bf16_f32 v{8+j}, v{32+2*j}, v{33+2*j}''')
    k('''s_movk_i32 s36, 6144
s_movk_i32 s37, 12288
buffer_store_dwordx4 v[8:11], v6, s[24:27], 0 offen
buffer_store_dwordx4 v[12:15], v6, s[24:27], s36 offen
buffer_store_dwordx4 v[16:19], v6, s[24:27], s37 offen
s_endpgm''')
    k(f'''L_k0_wq:
s_sub_u32 s18, s2, {N_MOD+N_LN}
s_lshl_b32 s18, s18, 2
s_add_u32 s18, s18, s3
s_mul_i32 s19, s18, 57
s_lshr_b32 s19, s19, 10
s_mul_i32 s36, s19, 18
s_sub_u32 s36, s18, s36
s_mul_i32 s37, s3, {TP_WAVE}''')
    srd_in(k, 20, 6, 576 * 576 * 2)
    srd_in(k, 24, 8, 576 * 18 * 2)
    srd_in(k, 28, 10, 576 * 18 * 2)
    srd_ws(k, 32, 16, 'WQKV')
    tprep_lane(k, 1, 2, 8, 14, 37)
    k(f'''s_mul_i32 s38, s36, {32*1152}
s_mul_i32 s39, s19, 144
s_add_u32 s38, s38, s39''')
    for i in range(5):
        k(f'buffer_load_dwordx4 v[{20+4*i}:{23+4*i}], v{2+i}, s[20:23], s38 offen')
    k(f'''v_mul_u32_u24 v14, 36, v1
v_mov_b32 v15, {OOB}
v_cmp_gt_u32 vcc, 32, v1
v_cndmask_b32 v14, v15, v14, vcc
v_and_b32 v15, 31, v1
v_mul_u32_u24 v15, {TP_RS}, v15
v_lshrrev_b32 v16, 5, v1
v_lshl_add_u32 v15, v16, 4, v15
v_add_u32 v15, s37, v15
s_mul_i32 s38, s36, {32*36}
v_mov_b32 v40, 0
v_mov_b32 v41, 0
v_mov_b32 v42, 0
v_mov_b32 v43, 0
s_cmp_eq_u32 s19, 0
s_cbranch_scc0 L_k0_kv1
buffer_load_dwordx4 v[40:43], v14, s[24:27], s38 offen
L_k0_kv1:
s_cmp_eq_u32 s19, 1
s_cbranch_scc0 L_k0_kv2
buffer_load_dwordx4 v[40:43], v14, s[24:27], s38 offen offset:16
L_k0_kv2:
s_cmp_eq_u32 s19, 2
s_cbranch_scc0 L_k0_kv3
buffer_load_dword v40, v14, s[24:27], s38 offen offset:32
buffer_load_dword v42, v14, s[28:31], s38 offen offset:32
L_k0_kv3:
s_cmp_eq_u32 s19, 3
s_cbranch_scc0 L_k0_kv4
buffer_load_dwordx4 v[40:43], v14, s[28:31], s38 offen
L_k0_kv4:
s_cmp_eq_u32 s19, 4
s_cbranch_scc0 L_k0_kv5
buffer_load_dwordx4 v[40:43], v14, s[28:31], s38 offen offset:16
L_k0_kv5:''')
    tprep_rdaddr(k, 1, 16, 17, 18, 37)
    k('s_waitcnt vmcnt(0)')
    for i in range(5):
        k(f'ds_write_b128 v{8+i}, v[{20+4*i}:{23+4*i}]')
    k('''ds_write_b128 v15, v[40:43] offset:144
s_waitcnt lgkmcnt(0)''')
    tprep_read(k, 16, 17, 44)
    k('''v_lshlrev_b32 v2, 4, v1
s_mul_i32 s38, s18, 5120
s_add_u32 s39, s38, 4096
s_waitcnt lgkmcnt(0)''')
    for j in range(4):
        k(f'buffer_store_dwordx4 v[{44+4*j}:{47+4*j}], v2, s[32:35], s38 offen offset:{1024*j}')
    k('''buffer_store_dwordx4 v[60:63], v2, s[32:35], s39 offen
L_k0_end:
s_endpgm''')
    return k, f'; @launch kernel=k0_kernel grid=({K0_GRID},1,1) block=(256,1,1) lds={4*TP_WAVE}'
```

```python
from dsl import K
from common import *

GL = 9472


def T(t): return (t >> 2) * GL + (t & 3) * 2240


Q1 = (8, 12); QZ = (16, 28); O = (40, 56); S0 = (72, 104); P = (136, 144)
KA, KB, VA = 152, 160, 168


def q2(h, j):
    return QZ[h] + (2, 8, 0, 6)[j & 3]


def mf(d, a, b, c):
    cc = '0' if c is None else f'v[{c}:{c+15}]'
    return f'v_mfma_f32_32x32x16_bf16 v[{d}:{d+15}], v[{a}:{a+3}], v[{b}:{b+3}], {cc}'


def gen_k2(helpers=None, opt=('late',)):
    k = K('k2_kernel', vgpr=192, sgpr=64)
    mask = 'mask' in opt

    def rdV(t, dst):
        if mask: k('s_mov_b64 exec, s[12:13]')
        k(f'ds_read_b128 v[{dst}:{dst+3}], v3 offset:{t}')
        if mask: k('s_mov_b64 exec, -1')
    k(f'''s_cmp_ge_u32 s2, 256
s_cbranch_scc1 L_k2_end
s_load_dwordx2 s[16:17], s[0:1], {A_WS}''')
    waveid(k, 3, 1)
    k('''v_and_b32 v1, 63, v0
v_lshlrev_b32 v2, 4, v1
s_cmp_ge_u32 s3, 4
s_cbranch_scc1 L_k2_loader
s_lshr_b32 s4, s2, 2
s_and_b32 s5, s2, 3
s_lshl_b32 s5, s5, 2
s_add_u32 s5, s5, s3
s_lshl_b32 s5, s5, 1''')
    k(f'''v_and_b32 v5, 31, v1
v_lshrrev_b32 v6, 5, v1
s_lshl_b32 s6, s4, 5
v_add_u32 v7, s6, v5
v_mul_u32_u24 v7, 1152, v7
s_mul_i32 s6, s5, 36
v_lshl_add_u32 v3, v6, 4, v7
v_cmp_eq_u32 vcc, 0, v6
v_mov_b32 v4, {OOB}
v_cndmask_b32 v7, v4, v7, vcc
v_lshlrev_b32 v4, 5, v1
s_waitcnt lgkmcnt(0)''')
    k.stamp(2)
    srd_ws(k, 20, 16, 'Q')
    k(f'''buffer_load_dwordx4 v[{Q1[0]}:{Q1[0]+3}], v3, s[20:23], s6 offen
buffer_load_dwordx4 v[{Q1[1]}:{Q1[1]+3}], v3, s[20:23], s6 offen offset:36
buffer_load_dword v{QZ[0]+2}, v7, s[20:23], s6 offen offset:32
buffer_load_dword v{QZ[1]+2}, v7, s[20:23], s6 offen offset:68''')
    srd_ws(k, 24, 16, 'KMAX')
    k(f'''buffer_load_dwordx4 v[72:75], v4, s[24:27], 0 offen
buffer_load_dwordx4 v[76:79], v4, s[24:27], 0 offen offset:16
v_mul_u32_u24 v3, 304, v6
v_lshl_add_u32 v3, v5, 4, v3
v_add_u32 v3, 1024, v3
v_lshlrev_b32 v4, 4, v5
v_add_u32 v4, 8960, v4
s_mov_b32 s12, 0x7ffff
s_mov_b32 s13, 0x7ffff''')
    srd_ws(k, 28, 16, 'O')
    for h in range(2):
        for r in range(12):
            if r not in (2, 9): k(f'v_mov_b32 v{QZ[h]+r}, 0')
        for r in range(16): k(f'v_mov_b32 v{O[h]+r}, 0')
    for r in range(4): k(f'v_mov_b32 v{P[1]+4+r}, 0')
    for r in range(16 if mask else 4): k(f'v_mov_b32 v{VA+15-r}, 0')
    k('s_waitcnt vmcnt(0)')
    k.stamp(3)
    k(f'''v_mov_b32 v{QZ[0]+9}, v{QZ[0]+2}
v_mov_b32 v{QZ[1]+9}, v{QZ[1]+2}
v_max_f32 v72, v72, v76
v_max_f32 v73, v73, v77
v_max_f32 v74, v74, v78''')
    for h in range(2):
        for j in range(4): unpack(k, 80 + 10 * h + 2 * j, Q1[h] + j)
        unpack(k, 88 + 10 * h, QZ[h] + 2)
    for r in (8, 4, 2, 1):
        for j in range(3): k(f'v_max_f32_dpp v{72+j}, v{72+j}, v{72+j} row_ror:{r} row_mask:0xf bank_mask:0xf')
    k('''v_pk_mul_f32 v[100:101], v[80:81], v[80:81]
v_pk_mul_f32 v[102:103], v[90:91], v[90:91]''')
    for j in range(1, 5):
        k(f'''v_pk_fma_f32 v[100:101], v[{80+2*j}:{81+2*j}], v[{80+2*j}:{81+2*j}], v[100:101]
v_pk_fma_f32 v[102:103], v[{90+2*j}:{91+2*j}], v[{90+2*j}:{91+2*j}], v[102:103]''')
    k('''v_mov_b32 v76, v72
v_mov_b32 v77, v73
v_mov_b32 v78, v74
v_add_f32 v75, v100, v101
v_add_f32 v79, v102, v103
v_permlane16_swap_b32 v72, v76
v_permlane16_swap_b32 v73, v77
v_permlane16_swap_b32 v74, v78
v_permlane32_swap_b32 v75, v79
v_max_f32 v72, v72, v76
v_max_f32 v73, v73, v77
v_max_f32 v74, v74, v78
v_add_f32 v75, v75, v79
v_mov_b32 v76, v72
v_mov_b32 v77, v73
v_mov_b32 v78, v74
v_permlane32_swap_b32 v72, v76
v_permlane32_swap_b32 v73, v77
v_permlane32_swap_b32 v74, v78
v_max_f32 v72, v72, v76
v_max_f32 v73, v73, v77
v_max_f32 v74, v74, v78
v_add_f32 v72, v72, v73
v_add_f32 v72, v72, v74''')
    k(f'''v_mul_f32 v72, v72, v75
s_mov_b32 s6, {fhex(64.0*64.0/1.03)}
v_cmp_nge_f32 vcc, s6, v72''')
    k.stamp(4)
    k('''s_barrier
s_cbranch_vccnz L_k2_slow''')
    k.stamp(0)
    k(f'''ds_read_b128 v[{KA}:{KA+3}], v2 offset:{T(0)}
ds_read_b128 v[{KB}:{KB+3}], v4
ds_read_b128 v[{KA+4}:{KA+7}], v2 offset:{T(1)}''')
    rdV(T(0), VA); rdV(T(0) + 608, VA + 4)
    k(f'''s_waitcnt lgkmcnt(3)
{mf(S0[0], KA, Q1[0], None)}
{mf(S0[1], KA, Q1[1], None)}
{mf(S0[0], KB, q2(0, 0), S0[0])}
{mf(S0[1], KB, q2(1, 0), S0[1])}
s_mov_b32 s7, 0
s_waitcnt lgkmcnt(0)
s_nop 7
.p2align 6
L_k2_loop:''')
    for i in range(8):
        p = i & 1; n = p ^ 1
        kb = KB + 4 * ((((i + 1) >> 2)) & 1)
        for h in range(2):
            Sc = S0[h] + 16 * p; Sn = S0[h] + 16 * n; pp = P[h]
            ex = lambda a, b: k('\n'.join((f'v_exp_f32 v{Sc+j}, v{Sc+j}' if 'noexp' not in opt else f's_nop 0\ns_nop 0') for j in range(a, b)))
            cv = lambda a, b: k('\n'.join(f'v_cvt_pk_bf16_f32 v{pp+j}, v{Sc+2*j}, v{Sc+2*j+1}' for j in range(a, b)))
            k(mf(Sn, KA + 4 * n, Q1[h], None))
            if h == 0: k(f'ds_read_b128 v[{KA+4*p}:{KA+4*p+3}], v2 offset:{T(i+2)}')
            ex(0, 4)
            if h == 0:
                if 'nopv' not in opt: k(mf(O[1], VA + 8 * n + 4, P[1] + 4, O[1]))
                rdV(T(i + 1), VA + 8 * n)
            else:
                if 'nopv' not in opt: k(mf(O[0], VA + 8 * p + 4, P[0] + 4, O[0]))
            ex(4, 8); cv(0, 2)
            if 'noqk2' not in opt: k(mf(Sn, kb, q2(h, i + 1), Sn))
            if h == 0: rdV(T(i + 1) + 608, VA + 8 * n + 4)
            cv(2, 4); ex(8, 12)
            if 'nopv' not in opt: k(mf(O[h], VA + 8 * p, pp, O[h]))
            if h == 0 and i == 0: k(f'ds_read_b128 v[{KB+4}:{KB+7}], v4 offset:{GL}')
            if h == 0 and i == 4: k(f'ds_read_b128 v[{KB}:{KB+3}], v4 offset:{2*GL}')
            if h == 1:
                k('s_waitcnt lgkmcnt(0)')
                if i == 7:
                    k(f'''s_cmp_lg_u32 s7, 0
s_cbranch_scc1 L_k2_nob
s_barrier
L_k2_nob:
s_add_u32 s7, s7, 1
s_cmp_lt_u32 s7, 8''')
            ex(12, 16); cv(4, 8)
    k(f'''v_add_u32 v2, {2*GL}, v2
v_add_u32 v3, {2*GL}, v3
v_add_u32 v4, {2*GL}, v4
s_cbranch_scc1 L_k2_loop
{mf(O[1], VA + 8 + 4, P[1] + 4, O[1])}
L_k2_epi:''')
    k.stamp(1)
    code_prefetch(k, 'k3_kernel', 1, 90, 32, swave=3)
    k(f'''v_bfe_u32 v74, v1, 4, 1
s_lshl_b32 s6, s4, 1
v_add_u32 v74, s6, v74
v_mul_u32_u24 v74, {18*1024}, v74
v_and_b32 v75, 15, v1
v_lshl_add_u32 v74, v75, 4, v74
v_lshl_add_u32 v75, v6, 8, v74
s_lshl_b32 s6, s5, 9
s_lshr_b32 s7, s5, 2
s_lshl_b32 s7, s7, 8
s_and_b32 s8, s5, 3
s_lshl_b32 s8, s8, 2
s_add_u32 s7, s7, s8
s_add_u32 s7, s7, {16*1024}
v_cmp_eq_u32 vcc, 0, v6
v_mov_b32 v76, {OOB}
v_cndmask_b32 v74, v76, v74, vcc''')
    for h in range(2):
        k(f'''v_mov_b32 v72, v{O[h]+10}
v_mov_b32 v73, v{O[h]+10}
v_permlane32_swap_b32 v72, v73
v_rcp_f32 v72, v72''')
        for j in range(5):
            d = 80 + 4 * h + j if j < 4 else 88 + h
            k(f'''v_pk_mul_f32 v[{O[h]+2*j}:{O[h]+2*j+1}], v[{O[h]+2*j}:{O[h]+2*j+1}], v[72:73] op_sel_hi:[1,0]
v_cvt_pk_bf16_f32 v{d}, v{O[h]+2*j}, v{O[h]+2*j+1}''')
        k(f'buffer_store_dwordx4 v[{80+4*h}:{83+4*h}], v75, s[28:31], s6 offen offset:{512*h} ;plain')
    k('''buffer_store_dwordx2 v[88:89], v74, s[28:31], s7 offen ;plain
s_endpgm''')
    M, AL, TT = 184, 186, 188
    k(f'''L_k2_slow:
s_barrier
v_mov_b32 v{M}, {fhex(-3.0e38)}
v_mov_b32 v{M+1}, {fhex(-3.0e38)}
s_mov_b32 s7, 0
L_k2_sl:
ds_read_b128 v[{KA}:{KA+3}], v2
ds_read_b32 v{KB}, v4
ds_read_b128 v[{VA}:{VA+3}], v3
ds_read_b128 v[{VA+4}:{VA+7}], v3 offset:608
v_mov_b32 v{KB+1}, 0
v_mov_b32 v{KB+2}, 0
v_mov_b32 v{KB+3}, 0
s_waitcnt lgkmcnt(0)''')
    for h in range(2):
        s = S0[h]
        k(f'''{mf(s, KA, Q1[h], None)}
{mf(s, KB, q2(h, 0), s)}
v_max3_f32 v{TT}, v{s}, v{s+1}, v{s+2}''')
        for j in range(3, 15, 2): k(f'v_max3_f32 v{TT}, v{TT}, v{s+j}, v{s+j+1}')
        k(f'v_max_f32 v{TT}, v{TT}, v{s+15}')
        xadd32(k, TT, TT + 1, 'max')
        k(f'''v_max_f32 v{TT}, v{TT}, v{M+h}
v_sub_f32 v{AL}, v{M+h}, v{TT}
v_exp_f32 v{AL}, v{AL}
v_mov_b32 v{M+h}, v{TT}''')
        for j in range(16):
            k(f'''v_sub_f32 v{s+j}, v{s+j}, v{TT}
v_exp_f32 v{s+j}, v{s+j}
v_mul_f32 v{O[h]+j}, v{O[h]+j}, v{AL}''')
        for j in range(8): k(f'v_cvt_pk_bf16_f32 v{P[h]+j}, v{s+2*j}, v{s+2*j+1}')
        k(f'''{mf(O[h], VA, P[h], O[h])}
{mf(O[h], VA + 4, P[h] + 4, O[h])}''')
    k(f'''s_add_u32 s7, s7, 1
s_and_b32 s8, s7, 3
s_cmp_eq_u32 s8, 0
s_cselect_b32 s8, 512, 0
s_add_u32 s8, s8, 2240
s_cmp_eq_u32 s8, {2240+512}
s_cselect_b32 s9, {GL-12}, 4
v_add_u32 v2, s8, v2
v_add_u32 v3, s8, v3
v_add_u32 v4, s9, v4
s_cmp_lt_u32 s7, 64
s_cbranch_scc1 L_k2_sl
s_branch L_k2_epi''')
    k('''L_k2_loader:
s_sub_u32 s3, s3, 4
s_waitcnt lgkmcnt(0)''')
    srd_ws(k, 20, 16, 'KV')
    k('s_mul_i32 s4, s3, 7168')
    for j in range(7):
        if j % 4 == 0:
            if j: k('s_add_u32 s4, s4, 4096')
            k('s_mov_b32 m0, s4')
        k(f'buffer_load_dwordx4 v2, s[20:23], s4 offen offset:{(j%4)*1024} lds')
    k(f'''s_mul_i32 s4, s3, {30*1024}
s_add_u32 s4, s4, {28*1024}''')
    for j in range(30):
        if j % 4 == 0:
            if j: k('s_add_u32 s4, s4, 4096')
            k('s_mov_b32 m0, s4')
        k(f'buffer_load_dwordx4 v2, s[20:23], s4 offen offset:{(j%4)*1024} lds')
        if j == 3:
            k('s_waitcnt vmcnt(4)')
            k.stamp(0)
            k('s_barrier')
    def sync(n):
        k(f's_waitcnt vmcnt({n})')
        k.stamp(1)
        k('s_barrier')
    if 'prio2' in opt: k('s_setprio 3')
    if helpers:
        if 'late' in opt:
            sync(0); helpers(k, lambda n: k('s_setprio 0') if 'prio2' in opt else None)
        else:
            def sync2(n):
                if 'prio2' in opt: k('s_setprio 0')
                sync(n)
            helpers(k, sync2)
    else: sync(0)
    k('''L_k2_end:
s_endpgm''')
    return k, '; @launch kernel=k2_kernel grid=(256,1,1) block=(512,1,1) lds=163840'
```

```python
from dsl import K
from common import *
from k1 import map_8x4_32x8


def lane_consts(k):
    k('''v_and_b32 v1, 63, v0
v_lshlrev_b32 v2, 4, v1
v_and_b32 v8, 15, v1
v_lshrrev_b32 v9, 4, v1
v_and_b32 v5, 7, v1
v_lshlrev_b32 v5, 4, v5
v_lshl_add_u32 v5, v9, 7, v5''')


def epi_addr(k, stb16, sbn):
    k(f'''s_lshl_b32 s40, s{stb16}, 4
v_add_u32 v8, s40, v8
v_mov_b32 v7, {OOB}
v_cmp_gt_u32 vcc, 2, v9
v_mul_u32_u24 v10, 1152, v8
s_mul_i32 s40, s{sbn}, 144
v_add_u32 v10, s40, v10
v_lshl_add_u32 v11, v9, 3, v10
v_add_u32 v11, 128, v11
v_cndmask_b32 v11, v7, v11, vcc
v_lshl_add_u32 v10, v9, 4, v10
v_lshrrev_b32 v12, 5, v8
v_mul_u32_u24 v12, 36864, v12
v_and_b32 v13, 31, v8
v_lshl_add_u32 v12, v13, 4, v12
s_mul_i32 s40, s{sbn}, 4608
v_add_u32 v12, s40, v12
v_lshl_add_u32 v13, v9, 3, v12
v_add_u32 v13, 4096, v13
v_cndmask_b32 v13, v7, v13, vcc
v_lshl_add_u32 v12, v9, 9, v12
s_mul_i32 s40, s{sbn}, 288
v_lshlrev_b32 v14, 5, v9
v_add_u32 v14, s40, v14
v_lshlrev_b32 v15, 4, v9
v_add_u32 v15, s40, v15
v_add_u32 v15, 256, v15
v_cndmask_b32 v15, v7, v15, vcc''')


def load_modvec(k, r, srd, soff):
    k(f'''buffer_load_dwordx4 v[{r}:{r+3}], v14, s[{srd}:{srd+3}], {soff} offen
buffer_load_dwordx4 v[{r+4}:{r+7}], v14, s[{srd}:{srd+3}], {soff} offen offset:16
buffer_load_dwordx4 v[{r+8}:{r+11}], v14, s[{srd}:{srd+3}], {soff} offen offset:128
buffer_load_dwordx4 v[{r+12}:{r+15}], v14, s[{srd}:{srd+3}], {soff} offen offset:144
buffer_load_dwordx4 v[{r+16}:{r+19}], v15, s[{srd}:{srd+3}], {soff} offen''')


def gen_k3():
    k = K('k3_kernel', vgpr=232, sgpr=64)
    A0, ACC, BF, XR, GA, G2 = 64, 40, 140, 20, 184, 208
    k(f'''s_cmp_ge_u32 s2, 256
s_cbranch_scc1 L_k3_end
s_load_dwordx2 s[16:17], s[0:1], {A_WS}
s_load_dwordx2 s[18:19], s[0:1], {A_X}''')
    waveid(k, 3, 1)
    map_8x4_32x8(k, 4, 5, 6)
    lane_consts(k)
    k('''s_lshl_b32 s10, s4, 2
s_add_u32 s10, s10, s3''')
    epi_addr(k, 10, 5)
    k('s_waitcnt lgkmcnt(0)')
    srd_ws(k, 24, 16, 'O')
    srd_ws(k, 28, 16, 'WO')
    srd_ws(k, 32, 16, 'MODF')
    srd_in(k, 36, 18, S * D * 2)
    k(f'''s_mul_i32 s11, s10, {18*1024}
s_mul_i32 s12, s5, {18*4608}''')

    def a_loads(s0, s1):
        for st in range(s0, s1):
            if st % 4 == 0 and st: k('s_add_u32 s11, s11, 4096')
            k(f'buffer_load_dwordx4 v[{A0+4*st}:{A0+4*st+3}], v2, s[24:27], s11 offen offset:{(st%4)*1024}')

    def b_group(g):
        if g < 2:
            k(f'''s_mul_i32 s13, s3, 9216
s_add_u32 s13, s13, {g*36864}''')
            n = 9
        else:
            k(f'''s_mul_i32 s13, s3, 2048
s_add_u32 s13, s13, {2*36864}''')
            n = 3
        for j in range(n):
            if j % 4 == 0:
                if j: k('s_add_u32 s13, s13, 4096')
                k('''s_mov_b32 m0, s13
s_add_u32 s14, s13, s12''')
            k(f'buffer_load_dwordx4 v2, s[28:31], s14 offen offset:{(j%4)*1024} lds')
    a_loads(0, 8); b_group(0); a_loads(8, 16); b_group(1); a_loads(16, 18); b_group(2)
    k(f'''buffer_load_dwordx4 v[{XR}:{XR+3}], v10, s[36:39], 0 offen
buffer_load_dwordx4 v[{XR+4}:{XR+7}], v10, s[36:39], 0 offen offset:64
buffer_load_dwordx2 v[{XR+8}:{XR+9}], v11, s[36:39], 0 offen
s_movk_i32 s8, {2*2304}
s_movk_i32 s9, {4*2304}''')
    load_modvec(k, GA, 32, 's8'); load_modvec(k, G2, 32, 's9')
    for j in range(20): k(f'v_mov_b32 v{ACC+j}, 0')
    k('''v_add_u32 v3, 0x10000, v2
v_add_u32 v4, 0x10000, v5''')
    k.stamp(0)

    def b_read(st):
        b = BF + 20 * (st & 1)
        for j in range(5):
            o = st * 4608 + j * 1024
            lo, hi = (2, 3) if j < 4 else (5, 4)
            if o < 65536: k(f'ds_read_b128 v[{b+4*j}:{b+4*j+3}], v{lo} offset:{o}')
            else: k(f'ds_read_b128 v[{b+4*j}:{b+4*j+3}], v{hi} offset:{o-65536}')
    bar = {0: 13 + 22, 8: 13 + 5, 16: 13}
    k(f's_waitcnt vmcnt({bar[0]})\ns_barrier')
    b_read(0)
    for st in range(18):
        if st + 1 < 18:
            if st + 1 in bar: k(f's_waitcnt vmcnt({bar[st+1]})\ns_barrier')
            b_read(st + 1)
        k(f's_waitcnt lgkmcnt({5 if st+1<18 else 0})')
        b = BF + 20 * (st & 1)
        for j in range(5):
            k(f'v_mfma_f32_16x16x32_bf16 v[{ACC+4*j}:{ACC+4*j+3}], v[{b+4*j}:{b+4*j+3}], v[{A0+4*st}:{A0+4*st+3}], v[{ACC+4*j}:{ACC+4*j+3}]')
    k.stamp(1)
    code_prefetch(k, 'k4_kernel', 1, 108, 44, swave=3)
    srd_ws(k, 24, 16, 'X1')
    srd_ws(k, 28, 16, 'XG')
    srd_ws(k, 32, 16, 'ST1')
    U = 64
    k('s_waitcnt vmcnt(0)')
    for j in range(10): unpack(k, U + 2 * j, XR + j)
    for j in range(10):
        k(f'v_pk_fma_f32 v[{U+2*j}:{U+2*j+1}], v[{ACC+2*j}:{ACC+2*j+1}], v[{GA+2*j}:{GA+2*j+1}], v[{U+2*j}:{U+2*j+1}]')
    for j in range(10): k(f'v_cvt_pk_bf16_f32 v{84+j}, v{U+2*j}, v{U+2*j+1}')
    k('''buffer_store_dwordx4 v[84:87], v12, s[24:27], 0 offen
buffer_store_dwordx4 v[88:91], v12, s[24:27], 0 offen offset:2048
buffer_store_dwordx2 v[92:93], v13, s[24:27], 0 offen''')
    for j in range(10): unpack(k, U + 2 * j, 84 + j)
    k(f'''v_pk_add_f32 v[16:17], v[{U}:{U+1}], v[{U+2}:{U+3}]
v_pk_mul_f32 v[18:19], v[{U}:{U+1}], v[{U}:{U+1}]
v_pk_fma_f32 v[18:19], v[{U+2}:{U+3}], v[{U+2}:{U+3}], v[18:19]''')
    for j in range(2, 10):
        k(f'''v_pk_add_f32 v[16:17], v[16:17], v[{U+2*j}:{U+2*j+1}]
v_pk_fma_f32 v[18:19], v[{U+2*j}:{U+2*j+1}], v[{U+2*j}:{U+2*j+1}], v[18:19]''')
    for j in range(10):
        k(f'''v_pk_mul_f32 v[{U+2*j}:{U+2*j+1}], v[{U+2*j}:{U+2*j+1}], v[{G2+2*j}:{G2+2*j+1}]
v_cvt_pk_bf16_f32 v{96+j}, v{U+2*j}, v{U+2*j+1}''')
    k('''buffer_store_dwordx4 v[96:99], v12, s[28:31], 0 offen
buffer_store_dwordx4 v[100:103], v12, s[28:31], 0 offen offset:2048
buffer_store_dwordx2 v[104:105], v13, s[28:31], 0 offen
v_add_f32 v16, v16, v17
v_add_f32 v17, v18, v19''')
    xadd16(k, 16, 18); xadd16(k, 17, 19); xadd32(k, 16, 18); xadd32(k, 17, 19)
    k('''v_lshlrev_b32 v18, 6, v8
v_cmp_eq_u32 vcc, 0, v9
v_cndmask_b32 v18, v7, v18, vcc
s_lshl_b32 s11, s5, 3
buffer_store_dwordx2 v[16:17], v18, s[32:35], s11 offen
L_k3_end:
s_endpgm''')
    return k, f'; @launch kernel=k3_kernel grid=(256,1,1) block=(256,1,1) lds={18*4608+1024}'
```

```python
from dsl import K
from common import *
import math

LOG2E = 1.4426950408889634
GA_ = -2.0 * LOG2E * math.sqrt(2.0 / math.pi)
GB_ = GA_ * 0.044715


def map_8x4_16x16(k, sbm, sbn, t):
    k(f'''s_and_b32 s{t}, s2, 7
s_lshr_b32 s{t+1}, s2, 3
s_and_b32 s{sbm}, s{t}, 1
s_lshl_b32 s{sbm}, s{sbm}, 3
s_and_b32 s{sbn}, s{t+1}, 7
s_add_u32 s{sbm}, s{sbm}, s{sbn}
s_lshr_b32 s{sbn}, s{t}, 1
s_lshl_b32 s{sbn}, s{sbn}, 2
s_lshr_b32 s{t+1}, s{t+1}, 3
s_add_u32 s{sbn}, s{sbn}, s{t+1}''')


class VM:
    def __init__(self, k): self.k = k; self.log = []
    def op(self, text, tag): self.k(text); self.log.append(tag)
    def n_after(self, tag):
        idx = max(i for i, t in enumerate(self.log) if t == tag)
        return len(self.log) - 1 - idx
    def wait(self, tag): self.k(f's_waitcnt vmcnt({min(63, self.n_after(tag))})')


def interleave(main, fill):
    out = []; n = len(main); m = len(fill); j = 0
    for i, g in enumerate(main):
        out.append(g)
        upto = (i + 1) * m // n
        out += fill[j:upto]; j = upto
    return out


SLOT = 36864
EXT = 4 * SLOT
ACC, Y, TX, T0, S1, S2, FR = 32, 64, 144, 164, 180, 182, 144
NFR = 6
C1, C3, RR = 20, 22, 24


def gelu_ops(acc, dst, kind, packed=False):
    ops = []
    for g in range(2):
        if packed:
            prs = range(4 * g, 4 * g + 4)
            pr = lambda b, j: f'v[{b+2*j}:{b+2*j+1}]'
            t = lambda j: f'v[{T0+2*(j%4)}:{T0+2*(j%4)+1}]'
            for j in prs: ops.append(f'v_pk_mul_f32 {t(j)}, {pr(acc,j)}, {pr(acc,j)}')
            for j in prs: ops.append(f'v_pk_fma_f32 {t(j)}, {t(j)}, v[{C3}:{C3+1}], v[{C1}:{C1+1}] op_sel_hi:[1,0,0]')
            for j in prs: ops.append(f'v_pk_mul_f32 {t(j)}, {t(j)}, {pr(acc,j)}')
            for j in range(8): ops.append(f'v_exp_f32 v{T0+j}, v{T0+j}')
            for j in prs: ops.append(f'v_pk_add_f32 {t(j)}, {t(j)}, 1.0 op_sel_hi:[1,0]')
            for j in range(8): ops.append(f'v_rcp_f32 v{T0+j}, v{T0+j}')
            for j in prs: ops.append(f'v_pk_mul_f32 {t(j)}, {t(j)}, {pr(acc,j)}')
            for j in prs: ops.append(f'v_pk_mul_f32 {t(j)}, {t(j)}, v[{RR}:{RR+1}] op_sel_hi:[1,0]')
            for j in prs: ops.append(f'v_cvt_pk_bf16_f32 v{dst+j}, v{T0+2*(j%4)}, v{T0+2*(j%4)+1}')
            ops.append(('store', g))
            continue
        stages = []
        for e in range(8):
            a = acc + 8 * g + e; t = T0 + 8 * g + e
            st = [f'v_mul_f32 v{t}, v{a}, v{a}', f'v_fma_f32 v{t}, v{t}, v{C3}, v{C1}', f'v_mul_f32 v{t}, v{t}, v{a}',
                  f'v_exp_f32 v{t}, v{t}', f'v_add_f32 v{t}, 1.0, v{t}', f'v_rcp_f32 v{t}, v{t}']
            if kind == 'z1':
                st += [f'v_mul_f32 v{t}, v{t}, v{a}', f'v_mul_f32 v{t}, v{t}, v{RR}']
            else:
                d = dst + 8 * g + e
                st += [f'v_mul_f32 v{d}, v{t}, v{a}', f'v_add_f32 v{S1+(e&1)}, v{S1+(e&1)}, v{d}', f'v_fmac_f32 v{S2+(e&1)}, v{d}, v{d}']
                if kind == 'both': st += [f'v_mul_f32 v{t}, v{d}, v{RR}']
            if kind != 'z2' and e & 1:
                st += [f'v_cvt_pk_bf16_f32 v{(dst if kind == "z1" else PK)+4*g+e//2}, v{t-1}, v{t}']
            stages.append(st)
        n = max(len(x) for x in stages)
        for step in range(n + 2 * 7):
            for e in range(8):
                q = step - 2 * e
                for qq in ((q,) if True else ()):
                    if 0 <= qq < len(stages[e]): ops.append(stages[e][qq])
        if kind != 'z2': ops.append(('store', g))
    return ops


PK = 148


def gen_k4(opt=()):
    k = K('k4_kernel', vgpr=200, agpr=168, sgpr=68)
    vm = VM(k)
    k(f'''s_cmp_ge_u32 s2, 256
s_cbranch_scc1 L_k4_end
s_load_dwordx2 s[16:17], s[0:1], {A_WS}''')
    waveid(k, 3, 1)
    map_8x4_16x16(k, 4, 5, 6)
    k(f'''v_and_b32 v1, 63, v0
v_lshlrev_b32 v2, 4, v1
v_and_b32 v5, 31, v1
v_lshrrev_b32 v6, 5, v1
s_and_b32 s6, s5, 1
s_lshr_b32 s7, s5, 1
s_mul_i32 s7, s7, 9
s_lshl_b32 s8, s4, 2
s_add_u32 s8, s8, s3
s_mul_i32 s9, s6, 5
s_add_u32 s9, s9, s7
s_add_u32 s9, s9, 72
s_mul_i32 s44, s9, 37888
s_add_u32 s45, s44, 37888
s_add_u32 s46, s45, 37888
s_add_u32 s47, s46, 37888
s_mul_i32 s9, s6, 76
s_add_u32 s9, s9, s7
s_mul_i32 s48, s9, 37888
s_lshl_b32 s53, s7, 10
s_cmp_eq_u32 s6, 1
s_cselect_b32 s53, {OOB}, s53
s_lshl_b32 s9, s6, 2
s_add_u32 s9, s9, s7
s_add_u32 s9, s9, 1
s_mul_i32 s49, s9, 37888
s_add_u32 s50, s49, 37888
s_add_u32 s51, s50, 37888
s_add_u32 s52, s51, 37888
s_lshl_b32 s54, s9, 10
s_add_u32 s55, s54, 1024
s_add_u32 s56, s55, 1024
s_add_u32 s57, s56, 1024
s_lshl_b32 s9, s8, 5
v_add_u32 v7, s9, v5
v_lshlrev_b32 v7, 6, v7
v_lshl_add_u32 v7, v6, 5, v7
s_mul_i32 s10, s3, 9216
s_waitcnt lgkmcnt(0)''')
    srd_ws(k, 20, 16, 'ST1')
    srd_ws(k, 24, 16, 'WIN')
    srd_ws(k, 28, 16, 'XG')
    srd_ws(k, 32, 16, 'Z1')
    vm.op('buffer_load_dwordx4 v[8:11], v7, s[20:23], 0 offen', 'st')
    vm.op('buffer_load_dwordx4 v[12:15], v7, s[20:23], 0 offen offset:16', 'st')
    k('''s_cmp_eq_u32 s3, 1
s_cselect_b32 s11, s45, s44
s_cselect_b32 s12, s49, s48
s_cmp_eq_u32 s3, 2
s_cselect_b32 s11, s46, s11
s_cselect_b32 s12, s50, s12
s_cmp_eq_u32 s3, 3
s_cselect_b32 s11, s47, s11
s_cselect_b32 s12, s51, s12
s_lshl_b32 s13, s3, 10''')
    k(f'''s_add_u32 s13, s13, {EXT}
s_add_u32 s11, s11, {SLOT}
s_mov_b32 m0, s13''')
    vm.op('buffer_load_dwordx4 v2, s[24:27], s11 offen lds', 'ext')
    k(f'''s_add_u32 s13, s13, 4096
s_add_u32 s12, s12, {SLOT}
s_mov_b32 m0, s13''')
    vm.op('buffer_load_dwordx4 v2, s[24:27], s12 offen lds', 'ext')
    k(f'''s_add_u32 s12, s52, {SLOT}
s_mov_b32 m0, {EXT+8192}''')
    vm.op('buffer_load_dwordx4 v2, s[24:27], s12 offen lds', 'ext')

    def dma_ops(j):
        ops = []
        for c in range(9):
            if c % 4 == 0:
                ops.append((f's_add_u32 s13, s10, {(j&3)*SLOT + c*1024}', None))
                ops.append((f's_add_u32 s14, s10, s{44+j}', None))
                ops.append(('s_mov_b32 m0, s13', None))
                if c: ops.append((f's_add_u32 s14, s14, {c*1024}', None))
                else: ops.append(('s_nop 0', None))
            ops.append((f'buffer_load_dwordx4 v2, s[24:27], s14 offen offset:{(c%4)*1024} lds', f'B{j}'))
        return ops

    def emit(o):
        if isinstance(o, tuple):
            if o[1] is None: k(o[0])
            else: vm.op(o[0], o[1])
        else: k(o)
    for o in dma_ops(0): emit(o)
    k(f's_mul_i32 s11, s8, {SLOT}')
    a_ops = []
    for st in range(36):
        if st % 4 == 0 and st: a_ops.append(('s_add_u32 s11, s11, 4096', None))
        a_ops.append((f'buffer_load_dwordx4 a[{4*st}:{4*st+3}], v2, s[28:31], s11 offen offset:{(st%4)*1024}', f'A{st}'))
    NPRE = 12
    pre = [o for o in a_ops]
    cnt = 0
    while cnt < NPRE:
        o = pre.pop(0); emit(o)
        if o[1]: cnt += 1
    if 'tstamp' not in opt: k.stamp(0)
    vm.wait('st')
    k('''v_pk_add_f32 v[8:9], v[8:9], v[10:11]
v_pk_add_f32 v[12:13], v[12:13], v[14:15]
v_pk_add_f32 v[8:9], v[8:9], v[12:13]''')
    xadd32(k, 8, 10); xadd32(k, 9, 11)
    k(f'''v_mul_f32 v8, {fhex(-1/576)}, v8
v_mul_f32 v9, {fhex(1/576)}, v9
v_fma_f32 v9, -v8, v8, v9
v_max_f32 v9, 0, v9
v_add_f32 v9, {fhex(1e-5)}, v9
v_rsq_f32 v{RR}, v9
v_sqrt_f32 v9, v9
v_mul_f32 v{C1}, {fhex(GA_)}, v{RR}
v_mul_f32 v{C3}, v{RR}, v{RR}
v_mul_f32 v{C3}, v{C3}, v{RR}
v_mul_f32 v{C3}, {fhex(GB_)}, v{C3}
v_cvt_pk_bf16_f32 v10, v8, v9
v_lshlrev_b32 v11, 16, v10
v_and_b32 v12, 0xffff0000, v10
v_sub_f32 v13, v8, v11
v_sub_f32 v14, v9, v12
v_cvt_pk_bf16_f32 v13, v13, v14
v_and_b32 v{TX}, 0xffff, v10
v_lshl_or_b32 v{TX}, v13, 16, v{TX}
v_mov_b32 v{TX+1}, v10
v_lshrrev_b32 v{TX+2}, 16, v13
v_or_b32 v{TX+2}, v{TX+2}, v12
v_mov_b32 v{TX+3}, 0
v_mov_b32 v{S1}, 0
v_mov_b32 v{S1+1}, 0
v_mov_b32 v{S2}, 0
v_mov_b32 v{S2+1}, 0
v_add_u32 v3, {SLOT}, v2
v_add_u32 v4, {2*SLOT}, v2
v_add_u32 v16, {3*SLOT}, v2
v_add_u32 v17, {EXT}, v2
v_bfe_u32 v18, v1, 4, 1
s_lshl_b32 s9, s8, 1
v_add_u32 v18, s9, v18
v_mul_u32_u24 v18, {72*1024}, v18
v_and_b32 v19, 15, v1
v_lshl_add_u32 v18, v19, 4, v18
v_lshl_add_u32 v18, v6, 8, v18''')
    base = [2, 3, 4, 16]

    def rd(j, s):
        r = FR + 4 * ((37 * j + s) % NFR)
        if s == 36: return f'ds_read_b128 a[{r}:{r+3}], v17 offset:{j*1024}'
        return f'ds_read_b128 a[{r}:{r+3}], v{base[j&3]} offset:{s*1024}'
    vm.wait('B0')
    k('s_barrier')
    AH = 5
    for s in range(AH): k(rd(0, s))
    if 'tstamp' not in opt: k.stamp(1)

    def grp(d):
        groups = []; cur = []
        for o in d:
            cur.append(o)
            if o[1] is not None: groups.append(cur); cur = []
        return groups
    for j in range(9):
        acc = ACC + 16 * (j & 1)
        fill = []
        if j >= 1:
            pj = j - 1
            kind = 'z2' if pj < 4 else 'both' if pj == 4 else 'z1'
            pacc = ACC + 16 * (pj & 1)
            if pj == 4:
                fill += [f'v_mov_b32 v{184+i}, v{S1+i}' for i in range(4)]
            for o in gelu_ops(pacc, Y + 16 * pj if pj <= 4 else PK, kind):
                if isinstance(o, tuple):
                    g = o[1]
                    fill.append((f'buffer_store_dwordx4 v[{PK+4*g}:{PK+4*g+3}], v18, s[32:35], s{53+pj-4} offen offset:{512*g}', 'z1st'))
                else: fill.append(o)
        if 'nogelu' in opt: fill = []
        per = [[] for _ in range(37)]
        mem = [[] for _ in range(37)]
        if j == 0:
            ga = grp(pre); gb = grp(dma_ops(1)); gc = grp(dma_ops(2))
            for i, g in enumerate(ga): mem[i] += g
            for i, g in enumerate(gb): mem[8 + 2 * i] += g
            for i, g in enumerate(gc): mem[min(36, 24 + i * 13 // 9)] += g
        elif j + 2 < 9:
            for i, g in enumerate(grp(dma_ops(j + 2))): mem[1 + 3 * i] += g
        cost = lambda o: 1 if isinstance(o, tuple) else (2 if o.startswith(('v_exp', 'v_rcp')) else 1)
        tot = sum(cost(o) for o in fill); run = 0
        for o in fill:
            per[2 + (run * 35) // max(tot, 1)].append(o); run += cost(o)
        for s in range(37):
            g = 37 * j + s
            if j == 0 and s < 36: vm.wait(f'A{s}')
            left = 9 * 37 - g
            if g % 2 == 0 or 'allwait' in opt:
                k(f's_waitcnt lgkmcnt({max(0, min(AH, left) - 2)})')
            bop = f'a[{4*s}:{4*s+3}]' if s < 36 else f'v[{TX}:{TX+3}]'
            r = FR + 4 * (g % NFR)
            cc = '0' if s == 0 else f'v[{acc}:{acc+15}]'
            k(f'v_mfma_f32_32x32x16_bf16 v[{acc}:{acc+15}], a[{r}:{r+3}], {bop}, {cc}')
            if s + AH < 37: k(rd(j, s + AH))
            elif j < 8:
                if s + AH == 37:
                    vm.wait(f'B{j+1}'); k('s_barrier')
                k(rd(j + 1, s + AH - 37))
            for o in mem[s]: emit(o)
            for o in per[s]: emit(o)
        if 'tstamp' in opt and j in (0,1,2,4,6): k.stamp({0:0,1:1,2:5,4:6,6:7}[j])
        if j == 5:
            srd_ws(k, 36, 16, 'ST2')
            k(f'''s_cmp_eq_u32 s6, 1
s_cbranch_scc1 L_k4_odd
v_mov_b32 v{S1}, v184
v_mov_b32 v{S1+1}, v185
v_mov_b32 v{S2}, v186
v_mov_b32 v{S2+1}, v187
L_k4_odd:
v_add_f32 v{S1}, v{S1}, v{S1+1}
v_add_f32 v{S1+1}, v{S2}, v{S2+1}''')
            xadd32(k, S1, S2); xadd32(k, S1 + 1, S2 + 1)
            k(f'''s_lshl_b32 s11, s4, 14
s_lshl_b32 s12, s3, 8
s_add_u32 s11, s11, s12
s_lshl_b32 s12, s5, 10
s_add_u32 s12, s12, s11
v_lshlrev_b32 v26, 3, v5
v_cmp_eq_u32 vcc, 0, v6
v_mov_b32 v27, {OOB}
v_cndmask_b32 v27, v27, v26, vcc
v_lshl_add_u32 v26, v6, 13, v26''')
            vm.op(f'buffer_store_dwordx2 v[{S1}:{S1+1}], v27, s[36:39], s12 offen sc1', 'pub')
    k.stamp(2)
    PL = ACC + 16

    def poll():
        for i in range(8):
            if i == 4: k('s_add_u32 s12, s11, 4096')
            k(f'buffer_load_dwordx2 v[{PL+2*i}:{PL+2*i+1}], v26, s[36:39], {"s11" if i<4 else "s12"} offen offset:{(i%4)*1024} sc1')
    poll()
    for o in gelu_ops(ACC, PK, 'z1', packed=True):
        if isinstance(o, tuple):
            g = o[1]
            k(f'buffer_store_dwordx4 v[{PK+4*g}:{PK+4*g+3}], v18, s[32:35], s57 offen offset:{512*g}')
        else: k(o)
    k.stamp(3)
    k(f'''s_mov_b32 s13, 0
s_waitcnt vmcnt(2)
L_k4_chk:
v_max_u32 v8, v{PL+1}, v{PL+3}
v_max3_u32 v8, v8, v{PL+5}, v{PL+7}
v_max3_u32 v8, v8, v{PL+9}, v{PL+11}
v_max3_u32 v8, v8, v{PL+13}, v{PL+15}
v_cmp_eq_u32 vcc, -1, v8
s_cbranch_vccz L_k4_rdy
s_add_u32 s13, s13, 1
s_cmp_ge_u32 s13, 0x40000
s_cbranch_scc1 L_k4_rdy
s_sleep 2''')
    poll()
    k(f'''s_waitcnt vmcnt(0)
s_branch L_k4_chk
L_k4_rdy:''')
    k.stamp(4)
    code_prefetch(k, 'k5_kernel', 1, 190, 40, swave=3)
    for i in (0, 4, 8, 12): k(f'v_pk_add_f32 v[{PL+i}:{PL+i+1}], v[{PL+i}:{PL+i+1}], v[{PL+i+2}:{PL+i+3}]')
    k(f'''v_pk_add_f32 v[{PL}:{PL+1}], v[{PL}:{PL+1}], v[{PL+4}:{PL+5}]
v_pk_add_f32 v[{PL+8}:{PL+9}], v[{PL+8}:{PL+9}], v[{PL+12}:{PL+13}]
v_pk_add_f32 v[8:9], v[{PL}:{PL+1}], v[{PL+8}:{PL+9}]''')
    xadd32(k, 8, 10); xadd32(k, 9, 11)
    srd_ws(k, 20, 16, 'Z2')
    RS = 80
    k(f'''v_mul_f32 v8, {fhex(1/2304)}, v8
v_mul_f32 v9, {fhex(1/2304)}, v9
v_fma_f32 v9, -v8, v8, v9
v_max_f32 v9, 0, v9
v_mul_f32 v10, v{RR}, v{RR}
v_mov_b32 v11, {fhex(1e-5)}
v_fma_f32 v9, v9, v10, v11
v_rsq_f32 v9, v9
v_mul_f32 v10, v9, v{RR}
v_mul_f32 v12, v8, v10
v_sub_f32 v12, 0, v12
s_mul_i32 s11, s3, {2*32*RS}
s_add_u32 s11, s11, {SLOT}
v_mul_u32_u24 v14, {RS}, v5
v_lshl_add_u32 v14, v6, 4, v14
v_add_u32 v14, s11, v14
v_lshrrev_b32 v15, 4, v1
v_lshlrev_b32 v15, 3, v15
v_bfe_u32 v16, v1, 2, 2
v_add_u32 v15, v15, v16
v_mul_u32_u24 v15, {RS}, v15
v_and_b32 v16, 3, v1
v_lshl_add_u32 v15, v16, 4, v15
v_add_u32 v15, s11, v15
s_lshl_b32 s11, s5, 6
s_add_u32 s11, s11, s8
s_mul_i32 s11, s11, 9216
s_add_u32 s12, s11, 4096
s_add_u32 s13, s11, 8192
s_sub_u32 s14, s13, {64*9216}''')

    def norm(j):
        y = Y + 16 * j; b = j & 1; pk = ACC + 8 * b; o = b * 32 * RS; fr = PL + 8 * b
        for i in range(8):
            k(f'v_pk_fma_f32 v[{y+2*i}:{y+2*i+1}], v[{y+2*i}:{y+2*i+1}], v[10:11], v[12:13] op_sel_hi:[1,0,0]')
        for i in range(8): k(f'v_cvt_pk_bf16_f32 v{pk+i}, v{y+2*i}, v{y+2*i+1}')
        k(f'''ds_write_b128 v14, v[{pk}:{pk+3}] offset:{o}
ds_write_b128 v14, v[{pk+4}:{pk+7}] offset:{o+32}''')

    def norm_out(j):
        b = j & 1; o = b * 32 * RS; fr = PL + 8 * b
        k(f'''s_waitcnt lgkmcnt(0)
ds_read_b64_tr_b16 v[{fr}:{fr+1}], v15 offset:{o}
ds_read_b64_tr_b16 v[{fr+2}:{fr+3}], v15 offset:{o+4*RS}
ds_read_b64_tr_b16 v[{fr+4}:{fr+5}], v15 offset:{o+8}
ds_read_b64_tr_b16 v[{fr+6}:{fr+7}], v15 offset:{o+4*RS+8}''')

    def norm_st(j):
        fr = PL + 8 * (j & 1)
        if j < 4:
            so = 's11' if j < 2 else 's12'
            k(f'''buffer_store_dwordx4 v[{fr}:{fr+3}], v2, s[20:23], {so} offen offset:{(j&1)*2048}
buffer_store_dwordx4 v[{fr+4}:{fr+7}], v2, s[20:23], {so} offen offset:{(j&1)*2048+1024}''')
        else:
            k(f'''buffer_store_dwordx4 v[{fr}:{fr+3}], v2, s[20:23], s14 offen
buffer_store_dwordx4 v[{fr+4}:{fr+7}], v2, s[20:23], s13 offen''')
    norm(0); norm_out(0)
    for j in range(1, 4):
        norm(j); k('s_waitcnt lgkmcnt(2)'); norm_st(j - 1); norm_out(j)
    k('''s_cmp_eq_u32 s6, 0
s_cbranch_scc1 L_k4_fin''')
    norm(4); k('s_waitcnt lgkmcnt(2)'); norm_st(3); norm_out(4)
    k('s_waitcnt lgkmcnt(0)'); norm_st(4)
    k('''s_endpgm
L_k4_fin:
s_waitcnt lgkmcnt(0)''')
    norm_st(3)
    k('''L_k4_end:
s_endpgm''')
    return k, f'; @launch kernel=k4_kernel grid=(256,1,1) block=(256,1,1) lds={EXT+9216}'
```

```python
from dsl import K
from common import *
from k4 import map_8x4_16x16, VM
from k1 import map_8x4_32x8
from k3 import lane_consts, epi_addr, load_modvec

SLOT = 36864
LATE_N = 17 + 5


def ring_gemm(k, R, NST, SPS, NB, NA, a_load, b_rd, acc, areg, breg, pre_ops, npre, late_ops=None, opt=()):
    assert NST % R == 0

    def stage_ops(slot):
        al = a_load(slot)
        head = [f's_cmp_lt_u32 s15, {NST}', f's_cselect_b32 s40, s11, {OOB}', f's_cselect_b32 s41, s12, {OOB}']
        if SPS == 8: head.append('s_add_u32 s42, s40, 4096')
        d = []
        for c in range(9):
            g = []
            if c % 4 == 0:
                g.append(f's_add_u32 m0, s10, {slot*SLOT + c*1024}')
                g.append('s_add_u32 s41, s41, 4096' if c else f's_add_u32 s11, s11, {SPS*1024}')
            g.append(f'buffer_load_dwordx4 v2, s[28:31], s41 offen offset:{(c%4)*1024} lds')
            d.append(g)
        d[0] = head + d[0]
        d[1] = [f's_add_u32 s12, s12, {SLOT}', 's_add_u32 s15, s15, 1'] + d[1]
        groups = []
        for i in range(9):
            groups.append(d[i])
            if i < 8: groups.append([al[i]])
        return groups
    for s in range(R - 1):
        for g in stage_ops(s):
            for o in g: k(o)
    pre_ops()
    k.stamp(0)
    k(f's_waitcnt vmcnt({17*(R-2)+npre})\ns_barrier')
    for o in b_rd(0, 0, 0): k(o)
    nm = SPS * NB * NA
    per_step = NB * NA
    pos = [(g * nm) // 17 for g in range(17)]
    first = [g for g in range(17) if pos[g] < per_step]
    g0 = stage_ops(R - 1)
    for g in first:
        for o in g0[g]: k(o)
    lab = k.newlabel('L_loop')
    k(f's_mov_b32 s43, 0\n.p2align 6\n{lab}:')
    for slot in range(R):
        cur = stage_ops((slot + R - 1) % R)
        nxt = stage_ops(slot)
        for st in range(SPS):
            par = st & 1
            lastst = st == SPS - 1
            k('s_waitcnt lgkmcnt(0)')
            if lastst:
                if late_ops and slot == R - 2:
                    lz = k.newlabel('L_late')
                    k(f's_cmp_lg_u32 s43, {NST//R-1}\ns_cbranch_scc1 {lz}')
                    late_ops()
                    k(f'{lz}:')
                k(f's_waitcnt vmcnt({17*(R-2)})')
                if 'nobar' not in opt: k('s_barrier')
                rds = b_rd((slot + 1) % R, 0, par ^ 1)
            else:
                rds = b_rd(slot, st + 1, par ^ 1)
            ri = 0; mi = 0
            for j in range(NB):
                for m in range(NA):
                    a = acc(j, m)
                    if 'nomfma' not in opt: k(f'v_mfma_f32_16x16x32_bf16 {a}, {breg(par, j)}, {areg(slot, st, m)}, {a}')
                    if ri < len(rds) and (m == 0) and 'nods' not in opt: k(rds[ri]); ri += 1
                    w = mi if lastst else (st + 1) * per_step + mi
                    for g in range(17):
                        if pos[g] == w:
                            for o in (nxt if lastst else cur)[g]: k(o)
                    mi += 1
    k(f'''s_add_u32 s43, s43, 1
s_cmp_lt_u32 s43, {NST//R}
s_cbranch_scc1 {lab}''')


def gen_k5(opt=()):
    k = K('k5_kernel', vgpr=176, agpr=200, sgpr=64)
    ACC, Z = 64, 136
    k(f'''s_cmp_ge_u32 s2, 256
s_cbranch_scc1 L_k5_end
s_load_dwordx2 s[16:17], s[0:1], {A_WS}
s_load_dwordx2 s[18:19], s[0:1], {A_BSP}''')
    waveid(k, 3, 1)
    map_8x4_16x16(k, 4, 5, 6)
    k(f'''v_and_b32 v1, 63, v0
v_lshlrev_b32 v2, 4, v1
v_add_u32 v3, 0x10000, v2
v_add_u32 v4, {SLOT}, v2
v_add_u32 v5, {2*SLOT}, v2
v_add_u32 v6, {3*SLOT}, v2
s_lshl_b32 s8, s4, 3
s_lshl_b32 s9, s3, 1
s_add_u32 s8, s8, s9
s_lshl_b32 s11, s8, 16
s_mul_i32 s10, s3, 9216
s_mul_i32 s12, s5, {64*9216}
s_add_u32 s12, s12, s10
s_mov_b32 s15, 0
v_and_b32 v7, 15, v1
s_lshl_b32 s9, s8, 4
v_add_u32 v7, s9, v7
v_lshlrev_b32 v7, 1, v7
s_waitcnt lgkmcnt(0)''')
    srd_ws(k, 24, 16, 'WSP')
    srd_ws(k, 28, 16, 'Z2')
    srd_ws(k, 32, 16, 'Z1')
    srd_in(k, 36, 18, S * 2)
    k('''buffer_load_ushort v8, v7, s[36:39], 0 offen
buffer_load_ushort v9, v7, s[36:39], 0 offen offset:32''')
    base = [2, 4, 5, 6]

    def a_load(slot):
        return [f'buffer_load_dwordx4 a[{32*slot+8*st+4*m}:{32*slot+8*st+4*m+3}], v{2+m}, s[24:27], s40 offen offset:{st*1024}'
                for st in range(4) for m in range(2)]

    def b_rd(slot, st, par):
        return [f'ds_read_b128 a[{128+36*par+4*j}:{128+36*par+4*j+3}], v{base[slot]} offset:{st*9216+j*1024}' for j in range(9)]

    def pre_ops():
        k(f'''s_mul_i32 s44, s5, 9
s_add_u32 s44, s44, 1
s_lshr_b32 s44, s44, 1
s_and_b32 s45, s5, 1
s_cmp_eq_u32 s45, 1
s_cselect_b32 s46, -1, 4
s_add_u32 s46, s46, s44
s_mul_i32 s47, s8, 72
s_add_u32 s44, s44, s47
s_lshl_b32 s44, s44, 10
s_add_u32 s46, s46, s47
s_lshl_b32 s46, s46, 10
s_lshl_b32 s45, s45, 3
s_add_u32 s46, s46, s45
s_add_u32 s45, s44, {72*1024}
s_add_u32 s47, s46, {72*1024}''')
        k('''s_waitcnt vmcnt(51)
v_lshlrev_b32 v8, 16, v8
v_lshlrev_b32 v9, 16, v9''')
        for m in range(2):
            for i in range(36): k(f'v_mov_b32 v{ACC+36*m+i}, v{8+m}')

    def late_ops():
        for m in range(2):
            for b in range(4):
                k(f'buffer_load_dwordx4 v[{Z+18*m+4*b}:{Z+18*m+4*b+3}], v2, s[32:35], s{44+m} offen offset:{b*1024}')
            k(f'buffer_load_dwordx2 v[{Z+18*m+16}:{Z+18*m+17}], v2, s[32:35], s{46+m} offen')
    ring_gemm(k, 4, 16, 4, 9, 2, a_load, b_rd,
              lambda j, m: f'v[{ACC+36*m+4*j}:{ACC+36*m+4*j+3}]',
              lambda slot, st, m: f'a[{32*slot+8*st+4*m}:{32*slot+8*st+4*m+3}]',
              lambda par, j: f'a[{128+36*par+4*j}:{128+36*par+4*j+3}]', pre_ops, 0, late_ops, opt)
    k.stamp(1)
    k(f's_waitcnt vmcnt({LATE_N}) lgkmcnt(0)')
    code_prefetch(k, 'k6_kernel', 1, 20, 48, swave=3)
    for m in range(2):
        for i in range(18):
            t = 10 + 2 * (i & 3)
            a = ACC + 36 * m + 2 * i
            unpack(k, t, Z + 18 * m + i)
            k(f'''v_pk_mul_f32 v[{a}:{a+1}], v[{a}:{a+1}], v[{t}:{t+1}]
v_cvt_pk_bf16_f32 v{Z+18*m+i}, v{a}, v{a+1}''')
            if i % 4 == 3: k(f'buffer_store_dwordx4 v[{Z+18*m+i-3}:{Z+18*m+i}], v2, s[32:35], s{44+m} offen offset:{(i//4)*1024}')
        k(f'buffer_store_dwordx2 v[{Z+18*m+16}:{Z+18*m+17}], v2, s[32:35], s{46+m} offen')
    k('''L_k5_end:
s_endpgm''')
    return k, f'; @launch kernel=k5_kernel grid=(256,1,1) block=(256,1,1) lds={4*SLOT}'
```

```python
from dsl import K
from common import *
from k1 import map_8x4_32x8
from k3 import lane_consts, epi_addr, load_modvec
from k5 import ring_gemm, SLOT


def gen_k6():
    k = K('k6_kernel', vgpr=232, sgpr=64)
    ACC, XR, GB, AR, BF = 40, 20, 208, 64, 160
    k(f'''s_cmp_ge_u32 s2, 256
s_cbranch_scc1 L_k6_end
s_load_dwordx2 s[16:17], s[0:1], {A_WS}
s_load_dwordx2 s[18:19], s[0:1], {A_OUT}''')
    waveid(k, 3, 1)
    map_8x4_32x8(k, 4, 5, 6)
    lane_consts(k)
    k('''s_lshl_b32 s8, s4, 2
s_add_u32 s8, s8, s3''')
    epi_addr(k, 8, 5)
    k(f'''v_add_u32 v3, {SLOT}, v2
v_add_u32 v4, {2*SLOT}, v2
v_add_u32 v6, {SLOT}, v5
v_add_u32 v16, {2*SLOT}, v5
s_mul_i32 s11, s8, {72*1024}
s_mul_i32 s10, s3, 9216
s_mul_i32 s12, s5, {72*4608}
s_add_u32 s12, s12, s10
s_mov_b32 s15, 0
s_waitcnt lgkmcnt(0)''')
    srd_ws(k, 24, 16, 'Z1')
    srd_ws(k, 28, 16, 'WOUT')
    srd_ws(k, 32, 16, 'MODF')
    srd_ws(k, 36, 16, 'X1')
    full = [2, 3, 4]; half = [5, 6, 16]

    def a_load(slot):
        return [f'buffer_load_dwordx4 v[{AR+32*slot+4*st}:{AR+32*slot+4*st+3}], v2, s[24:27], {"s40" if st<4 else "s42"} offen offset:{(st%4)*1024}'
                for st in range(8)]

    def b_rd(slot, st, par):
        return [f'ds_read_b128 v[{BF+20*par+4*j}:{BF+20*par+4*j+3}], v{(full if j<4 else half)[slot]} offset:{st*4608+j*1024}' for j in range(5)]

    def pre_ops():
        k(f'''buffer_load_dwordx4 v[{XR}:{XR+3}], v12, s[36:39], 0 offen
buffer_load_dwordx4 v[{XR+4}:{XR+7}], v12, s[36:39], 0 offen offset:2048
buffer_load_dwordx2 v[{XR+8}:{XR+9}], v13, s[36:39], 0 offen
s_movk_i32 s9, {5*2304}''')
        load_modvec(k, GB, 32, 's9')
        for i in range(20): k(f'v_mov_b32 v{ACC+i}, 0')
    ring_gemm(k, 3, 9, 8, 5, 1, a_load, b_rd,
              lambda j, m: f'v[{ACC+4*j}:{ACC+4*j+3}]',
              lambda slot, st, m: f'v[{AR+32*slot+4*st}:{AR+32*slot+4*st+3}]',
              lambda par, j: f'v[{BF+20*par+4*j}:{BF+20*par+4*j+3}]', pre_ops, 8)
    k.stamp(1)
    srd_in(k, 24, 18, S * D * 2)
    U = 208 - 24
    k('s_waitcnt lgkmcnt(0)')
    for j in range(10): unpack(k, U + 2 * j, XR + j)
    for j in range(10):
        k(f'v_pk_fma_f32 v[{U+2*j}:{U+2*j+1}], v[{ACC+2*j}:{ACC+2*j+1}], v[{GB+2*j}:{GB+2*j+1}], v[{U+2*j}:{U+2*j+1}]')
    for j in range(10): k(f'v_cvt_pk_bf16_f32 v{XR+j}, v{U+2*j}, v{U+2*j+1}')
    k(f'''buffer_store_dwordx4 v[{XR}:{XR+3}], v10, s[24:27], 0 offen
buffer_store_dwordx4 v[{XR+4}:{XR+7}], v10, s[24:27], 0 offen offset:64
buffer_store_dwordx2 v[{XR+8}:{XR+9}], v11, s[24:27], 0 offen
L_k6_end:
s_endpgm''')
    return k, f'; @launch kernel=k6_kernel grid=(256,1,1) block=(256,1,1) lds={3*SLOT}'
```

```python
from dsl import K
from common import *
from k0 import tprep_lane, tprep_rdaddr, tprep_read, TP_RS, TP_WAVE


def job_win(k, sU, sL, tag, sync=None):
    srd_in(k, 20, 6, 576 * 4608 * 2)
    srd_ws(k, 24, 16, 'WIN')
    srd_ws(k, 28, 16, 'MODB')
    RS = 80
    R0 = 40
    NR = 18
    k(f'''v_lshlrev_b32 v2, 4, v1
buffer_load_dwordx4 v[8:11], v2, s[28:31], 0 offen
buffer_load_dwordx4 v[12:15], v2, s[28:31], 0 offen offset:1024
buffer_load_dwordx4 v[16:19], v2, s[28:31], 0 offen offset:2048
v_lshrrev_b32 v3, 2, v1
v_mul_u32_u24 v36, 9216, v3
v_and_b32 v5, 3, v1
v_lshl_add_u32 v36, v5, 4, v36
s_lshr_b32 s34, s{sU}, 1
s_and_b32 s35, s{sU}, 1
s_lshl_b32 s33, s34, 6
s_mul_i32 s36, s35, {18*16*9216}
s_add_u32 s33, s33, s36''')
    log = ['m', 'm', 'm']

    def ld(st):
        r = R0 + 4 * (st % NR)
        k(f'''buffer_load_dwordx4 v[{r}:{r+3}], v36, s[20:23], s33 offen
s_add_u32 s33, s33, {16*9216}''')
        log.append(f'L{st}')
    for st in range(NR): ld(st)
    if sync: sync(NR + 3)
    k(f'''v_mul_u32_u24 v3, {RS}, v3
v_lshl_add_u32 v3, v5, 4, v3
v_add_u32 v3, s{sL}, v3
v_add_u32 v3, 3072, v3
v_lshrrev_b32 v4, 5, v1
v_lshlrev_b32 v4, 3, v4
v_bfe_u32 v6, v1, 2, 2
v_add_u32 v4, v4, v6
v_mul_u32_u24 v4, {RS}, v4
v_bfe_u32 v6, v1, 4, 1
v_lshl_add_u32 v4, v6, 5, v4
v_and_b32 v6, 1, v1
v_lshl_add_u32 v4, v6, 4, v4
v_bfe_u32 v7, v1, 1, 1
v_lshl_add_u32 v4, v7, 3, v4
v_add_u32 v4, s{sL}, v4
v_add_u32 v4, 3072, v4
v_mul_u32_u24 v5, 1152, v6
v_lshrrev_b32 v6, 5, v1
v_lshl_add_u32 v5, v6, 4, v5
s_mul_i32 s36, s35, {18*32}
s_add_u32 s36, s36, s{sL}
v_add_u32 v5, s36, v5
v_add_u32 v6, s{sL}, v2
s_mul_i32 s32, s34, {37*1024}
s_lshl_b32 s37, s35, 9
s_add_u32 s37, s37, s32
s_add_u32 s37, s37, {36*1024}
s_mul_i32 s36, s35, {18*1024}
s_add_u32 s32, s32, s36
s_waitcnt vmcnt({NR})
ds_write_b128 v6, v[8:11]
ds_write_b128 v6, v[12:15] offset:1024
ds_write_b128 v6, v[16:19] offset:2048''')
    ACC = 112

    def wr(st):
        r = R0 + 4 * (st % NR)
        k(f'''s_waitcnt vmcnt({len(log)-1-log.index(f"L{st}")})
ds_write_b128 v3, v[{r}:{r+3}] offset:{(st&1)*16*RS}''')
    wr(0)
    for st in range(18):
        b = st & 1
        f = 8 + 4 * b; m = 16 + 4 * b
        k(f'''s_waitcnt lgkmcnt(0)
ds_read_b64_tr_b16 v[{f}:{f+1}], v4 offset:{b*16*RS}
ds_read_b64_tr_b16 v[{f+2}:{f+3}], v4 offset:{b*16*RS+4*RS}
ds_read_b128 v[{m}:{m+3}], v5 offset:{st*32}''')
        if st + 1 < 18: wr(st + 1)
        k(f'''s_waitcnt lgkmcnt({1 if st+1<18 else 0})
v_mfma_f32_32x32x16_bf16 v[{ACC}:{ACC+15}], v[{m}:{m+3}], v[{f}:{f+3}], {'0' if st == 0 else f'v[{ACC}:{ACC+15}]'}
buffer_store_dwordx4 v[{f}:{f+3}], v2, s[24:27], s32 offen offset:{(st%4)*1024}''')
        log.append('S')
        if st % 4 == 3: k('s_add_u32 s32, s32, 4096')
    k(f'''v_cvt_pk_bf16_f32 v24, v{ACC}, v{ACC+1}
v_lshlrev_b32 v25, 16, v24
v_and_b32 v26, 0xffff0000, v24
v_sub_f32 v27, v{ACC}, v25
v_sub_f32 v28, v{ACC+1}, v26
v_cvt_pk_bf16_f32 v27, v27, v28
v_lshrrev_b32 v32, 16, v25
v_or_b32 v32, v32, v25
v_and_b32 v33, 0xffff, v27
v_or_b32 v33, v33, v26
v_lshrrev_b32 v34, 16, v26
v_and_b32 v28, 0xffff0000, v27
v_or_b32 v34, v34, v28
v_mov_b32 v35, 0
v_cmp_gt_u32 vcc, 32, v1
v_mov_b32 v28, {OOB}
v_cndmask_b32 v2, v28, v2, vcc
buffer_store_dwordx4 v[32:35], v2, s[24:27], s37 offen''')


def helpers(k, sync):
    k(f'''s_load_dwordx2 s[4:5], s[0:1], {A_WO}
s_load_dwordx2 s[8:9], s[0:1], {A_WSP}
s_load_dwordx2 s[6:7], s[0:1], {A_WIN}
s_load_dwordx2 s[12:13], s[0:1], {A_WOUT}
s_and_b32 s18, s3, 1
s_lshl_b32 s19, s2, 1
s_add_u32 s18, s18, s19
s_and_b32 s19, s3, 1
s_mul_i32 s19, s19, 6144
s_add_u32 s19, s19, {64*2368}
s_waitcnt lgkmcnt(0)
s_cmp_ge_u32 s3, 2
s_cbranch_scc1 L_h_lds''')
    job_wsp(k, 18, sync)
    k('''s_endpgm
L_h_lds:
s_cmp_ge_u32 s18, 288
s_cbranch_scc1 L_h_t''')
    job_win(k, 18, 19, 'h', sync)
    k('''s_endpgm
L_h_t:
s_sub_u32 s18, s18, 288
s_cmp_ge_u32 s18, 72
s_cbranch_scc1 L_h_wout
s_lshl_b32 s18, s18, 1''')
    job_t2(k, 18, 19, 'WO', sync)
    k('''s_endpgm
L_h_wout:
s_sub_u32 s18, s18, 72
s_cmp_ge_u32 s18, 144
s_cbranch_scc1 L_h_none
s_lshl_b32 s18, s18, 2''')
    job_t2(k, 18, 19, 'WOUT', sync, NU=4)
    k('''s_endpgm
L_h_none:''')
    sync(0)


def job_t2(k, sU, sL, which, sync=None, NU=2):
    ns = 18 if which == 'WO' else 72
    srd_in(k, 20, 4 if which == 'WO' else 12, ns * 32 * 576 * 2)
    srd_ws(k, 24, 16, which)
    if ns == 18: k(f's_mul_i32 s32, s{sU}, 57\ns_lshr_b32 s32, s32, 10')
    else: k(f's_mul_i32 s32, s{sU}, 911\ns_lshr_b32 s32, s32, 16')
    k(f'''s_mul_i32 s33, s32, {ns}
s_sub_u32 s33, s{sU}, s33
s_mul_i32 s32, s32, 144
v_lshrrev_b32 v4, 3, v1
v_and_b32 v5, 7, v1
v_and_b32 v6, 31, v1
v_mul_u32_u24 v8, {TP_RS}, v4
v_lshl_add_u32 v8, v5, 4, v8
v_add_u32 v8, s{sL}, v8
v_mul_u32_u24 v9, {TP_RS}, v6
v_lshrrev_b32 v7, 5, v1
v_lshl_add_u32 v9, v7, 4, v9
v_add_u32 v9, s{sL}, v9''')
    if which == 'WO':
        la = k.newlabel('L_wa'); lb = k.newlabel('L_wb')
        k(f'''s_cmp_ge_u32 s33, 16
s_cbranch_scc1 {la}
v_lshrrev_b32 v7, 4, v6
v_lshl_add_u32 v6, v7, 1, v6
s_mul_i32 s35, s33, {36*1152}
s_mov_b32 s34, {36*1152}
s_mov_b32 s36, {8*1152}
s_mov_b32 s37, {18*1152}
s_mov_b32 s38, {26*1152}
s_branch {lb}
{la}:
v_lshrrev_b32 v7, 1, v4
v_and_b32 v4, 1, v4
v_mad_u32_u24 v4, v7, 18, v4
v_add_u32 v4, 16, v4
v_lshrrev_b32 v7, 1, v6
v_and_b32 v6, 1, v6
v_mad_u32_u24 v6, v7, 18, v6
v_add_u32 v6, 16, v6
s_mov_b32 s35, 0
s_mov_b32 s34, {288*1152}
s_mov_b32 s36, {72*1152}
s_mov_b32 s37, {144*1152}
s_mov_b32 s38, {216*1152}
{lb}:''')
    else:
        k(f'''s_mul_i32 s35, s33, {32*1152}
s_mov_b32 s34, {32*1152}
s_mov_b32 s36, {8*1152}
s_mov_b32 s37, {16*1152}
s_mov_b32 s38, {24*1152}''')
    k(f'''v_mul_u32_u24 v2, 1152, v4
v_lshl_add_u32 v2, v5, 4, v2
v_mul_u32_u24 v3, 1152, v6
v_cmp_gt_u32 vcc, 32, v1
v_mov_b32 v7, {OOB}
s_add_u32 s35, s35, s32
v_cndmask_b32 v3, v7, v3, vcc''')
    for u in range(NU):
        r = 20 + 20 * u
        k(f'''s_add_u32 s40, s35, s36
s_add_u32 s41, s35, s37
s_add_u32 s42, s35, s38
buffer_load_dwordx4 v[{r}:{r+3}], v2, s[20:23], s35 offen
buffer_load_dwordx4 v[{r+4}:{r+7}], v2, s[20:23], s40 offen
buffer_load_dwordx4 v[{r+8}:{r+11}], v2, s[20:23], s41 offen
buffer_load_dwordx4 v[{r+12}:{r+15}], v2, s[20:23], s42 offen
buffer_load_dwordx4 v[{r+16}:{r+19}], v3, s[20:23], s35 offen offset:128
s_add_u32 s35, s35, s34''')
    tprep_rdaddr(k, 1, 16, 17, 18, sL)
    k(f'''v_lshlrev_b32 v2, 4, v1
v_lshrrev_b32 v3, 4, v1
v_lshlrev_b32 v3, 7, v3
v_and_b32 v4, 15, v1
v_lshl_add_u32 v3, v4, 4, v3
v_cmp_gt_u32 vcc, 8, v4
s_mul_i32 s34, s{sU}, 4608
v_cndmask_b32 v3, v7, v3, vcc''')
    if sync: sync(5 * NU)
    for u in range(NU):
        r = 20 + 20 * u
        k(f's_waitcnt vmcnt({5*(NU-1)})')
        for i in range(4): k(f'ds_write_b128 v8, v[{r+4*i}:{r+4*i+3}] offset:{i*8*TP_RS}')
        k(f'''ds_write_b128 v9, v[{r+16}:{r+19}] offset:128
s_add_u32 s35, s34, 4096
s_waitcnt lgkmcnt(0)''')
        tprep_read(k, 16, 17, 100 + 20 * (u & 1))
        k('s_waitcnt lgkmcnt(0)')
        d = 100 + 20 * (u & 1)
        for j in range(4):
            k(f'buffer_store_dwordx4 v[{d+4*j}:{d+4*j+3}], v2, s[24:27], s34 offen offset:{1024*j}')
        k(f'buffer_store_dwordx4 v[{d+16}:{d+19}], v3, s[24:27], s35 offen')
        if u < NU - 1: k('s_add_u32 s34, s34, 4608')


def job_wsp(k, sU, sync=None):
    srd_in(k, 20, 8, S * S * 2)
    srd_ws(k, 24, 16, 'WSP')
    k(f'''v_and_b32 v2, 15, v1
v_lshlrev_b32 v2, 12, v2
v_lshrrev_b32 v3, 4, v1
v_lshl_add_u32 v2, v3, 4, v2
v_lshlrev_b32 v3, 4, v1
s_lshr_b32 s32, s{sU}, 2
s_lshl_b32 s32, s32, 16
s_and_b32 s33, s{sU}, 3
s_lshl_b32 s33, s33, 10
s_add_u32 s32, s32, s33
s_lshl_b32 s33, s{sU}, 14''')
    for st in range(16):
        k(f'buffer_load_dwordx4 v[{8+4*st}:{11+4*st}], v2, s[20:23], s32 offen offset:{st*64}')
    if sync: sync(16)
    for st in range(16):
        k(f'''s_waitcnt vmcnt(15)
buffer_store_dwordx4 v[{8+4*st}:{11+4*st}], v3, s[24:27], s33 offen offset:{(st%4)*1024}''')
        if st % 4 == 3: k('s_add_u32 s33, s33, 4096')
```

```python
import sys
sys.path.insert(0,'gen')
from build import build
import dsl
import k0,k1,kp,k2,k3,k4,k5,k6
def base(**kw): return [k0.gen_k0(**kw),k1.gen_k1(),k2.gen_k2(kp.helpers),k3.gen_k3(),k4.gen_k4(),k5.gen_k5(),k6.gen_k6()]
build(base(),'v3.s')
dsl.WT['k6_kernel']='sc1'
build(base(),'v3b.s')
dsl.WT.clear()
build(base(),'v3c.s')
```

```python
import struct
S = 2048; D = 576; FH = 2304
A_X, A_WQ, A_WK, A_WV, A_WO, A_BX, A_WIN, A_WSP, A_BSP, A_WOUT, A_C, A_WMOD, A_OUT, A_DBG, A_WS = [8 * i for i in range(15)]
WS = dict(
    MODP=(0x00000, 3 * 3456 * 4),
    MODF=(0x10000, 3456 * 4),
    MODB=(0x14000, 2 * 576 * 2),
    KMAX=(0x18000, 128 * 4 * 4),
    CNT=(0x1A000, 128 * 128),
    KV=(0x20000, 64 * 2368),
    ST1=(0x80000, 2048 * 8 * 8),
    ST2=(0xC0000, 16 * 16 * 128 * 8),
    XN=(0x100000, S * D * 2),
    Q=(0x400000, S * D * 2),
    O=(0x700000, S * D * 2),
    X1=(0xA00000, S * D * 2),
    XG=(0xD00000, S * D * 2),
    WQKV=(0x1000000, 8 * 18 * 5 * 1024),
    WO=(0x1100000, 8 * 18 * 4608),
    WIN=(0x1200000, 144 * 37 * 1024),
    WOUT=(0x1800000, 8 * 72 * 4608),
    WSP=(0x1B00000, S * S * 2),
    Z1=(0x2400000, S * FH * 2),
    Z2=(0x2D00000, S * FH * 2),
)
OOB = 0x7ff00000


def f2u(x): return struct.unpack('<I', struct.pack('<f', x))[0]
def fhex(x): return hex(f2u(x))


def srd_in(k, s, ptr, nbytes):
    k(f'''s_mov_b32 s{s}, s{ptr}
s_and_b32 s{s+1}, s{ptr+1}, 0xffff
s_mov_b32 s{s+2}, {nbytes}
s_mov_b32 s{s+3}, 0x20000''')


def srd_ws(k, s, ptr, region):
    off, n = WS[region]
    k(f'''s_add_u32 s{s}, s{ptr}, {off}
s_addc_u32 s{s+1}, s{ptr+1}, 0
s_and_b32 s{s+1}, s{s+1}, 0xffff
s_mov_b32 s{s+2}, {n}
s_mov_b32 s{s+3}, 0x20000''')


def waveid(k, sdst, vtmp):
    k(f'''v_lshrrev_b32 v{vtmp}, 6, v0
v_readfirstlane_b32 s{sdst}, v{vtmp}''')


def unpack(k, dlo, src):
    k(f'''v_lshlrev_b32 v{dlo}, 16, v{src}
v_and_b32 v{dlo+1}, 0xffff0000, v{src}''')


def sum16(k, v):
    for r in (8, 4, 2, 1):
        k(f'v_add_f32_dpp v{v}, v{v}, v{v} row_ror:{r} row_mask:0xf bank_mask:0xf')


def xadd16(k, v, t, op='add'):
    k(f'''v_mov_b32 v{t}, v{v}
v_permlane16_swap_b32 v{v}, v{t}
v_{op}_f32 v{v}, v{v}, v{t}''')


def xadd32(k, v, t, op='add'):
    k(f'''v_mov_b32 v{t}, v{v}
v_permlane32_swap_b32 v{v}, v{t}
v_{op}_f32 v{v}, v{v}, v{t}''')


PREFETCH = True


def code_prefetch(k, target, vlane, vt, s0, nwg=16, swave=None):
    if not PREFETCH: return
    lab = k.newlabel('L_pf'); skip = k.newlabel('L_pfs')
    k(f's_cmp_ge_u32 s2, {nwg}\ns_cbranch_scc1 {skip}')
    if swave is not None: k(f's_cmp_lg_u32 s{swave}, 0\ns_cbranch_scc1 {skip}')
    k(f'''s_getpc_b64 s[{s0}:{s0+1}]
{lab}:
s_add_u32 s{s0}, s{s0}, {target}-{lab}
s_addc_u32 s{s0+1}, s{s0+1}, SIGN_{target}_{k.name}
s_and_b32 s{s0+1}, s{s0+1}, 0xffff
s_mov_b32 s{s0+2}, L_end_{target}-{target}
s_mov_b32 s{s0+3}, 0x20000
v_lshlrev_b32 v{vt}, 7, v{vlane}''')
    k(f'buffer_load_dword v{vt+1}, v{vt}, s[{s0}:{s0+3}], 0 offen')
    k(f'{skip}:')


def signal(k, srd, sline, vt, wait=True, young=0):
    lab = k.newlabel('L_sig')
    k.stamp(10)
    if wait: k(f's_waitcnt vmcnt({young})')
    k.stamp(11)
    k(f'''s_barrier
s_cmp_lg_u32 s3, 0
s_cbranch_scc1 {lab}
s_lshl_b32 s{sline}, s{sline}, 7
v_mov_b32 v{vt}, 1
v_mov_b32 v{vt+1}, 0
s_mov_b64 exec, 1
buffer_atomic_add v{vt}, v{vt+1}, s[{srd}:{srd+3}], s{sline} offen
s_mov_b64 exec, -1
{lab}:''')


def await_(k, srd, sline, n, target, vt, st, barrier=True):
    lab = k.newlabel('L_aw'); lp = k.newlabel('L_awl')
    k(f'''s_cmp_lg_u32 s3, 0
s_cbranch_scc1 {lab}
s_lshl_b32 s{sline}, s{sline}, 7
v_lshlrev_b32 v{vt}, 7, v1
s_mov_b32 s{st}, 0
s_mov_b64 exec, {(1 << n) - 1}
{lp}:
buffer_load_dword v{vt+1}, v{vt}, s[{srd}:{srd+3}], s{sline} offen sc1
s_add_u32 s{st}, s{st}, 1
s_waitcnt vmcnt(0)
v_cmp_gt_u32 vcc, {target}, v{vt+1}
s_cmp_lt_u32 s{st}, 0x80000
s_cselect_b64 vcc, vcc, 0
s_cbranch_vccnz {lp}
s_mov_b64 exec, -1
{lab}:''')
    if barrier: k('s_barrier')
```

```python
import re, sys

TRANS = ('v_exp_f32', 'v_log_f32', 'v_rcp_f32', 'v_rsq_f32', 'v_sqrt_f32', 'v_sin_f32', 'v_cos_f32',
         'v_exp_f16', 'v_rcp_f16', 'v_rcp_iflag_f32')
NODST_S = ('s_cmp', 's_cbranch', 's_branch', 's_waitcnt', 's_nop', 's_barrier', 's_setprio', 's_sleep',
           's_endpgm', 's_bitcmp')


def parse_reg(tok):
    tok = tok.strip()
    tok = tok.lstrip('-')
    m = re.fullmatch(r'abs\((.*)\)', tok) or re.fullmatch(r'\|(.*)\|', tok)
    if m: tok = m.group(1)
    m = re.fullmatch(r'([vas])(\d+)', tok)
    if m: return {(m.group(1), int(m.group(2)))}
    m = re.fullmatch(r'([vas])\[(\d+):(\d+)\]', tok)
    if m: return {(m.group(1), i) for i in range(int(m.group(2)), int(m.group(3)) + 1)}
    if tok == 'vcc': return {('vcc', 0), ('vcc', 1)}
    if tok == 'vcc_lo': return {('vcc', 0)}
    if tok == 'vcc_hi': return {('vcc', 1)}
    if tok == 'exec': return {('exec', 0), ('exec', 1)}
    if tok == 'exec_lo': return {('exec', 0)}
    if tok == 'exec_hi': return {('exec', 1)}
    if tok == 'm0': return {('m0', 0)}
    return set()


class Ins:
    __slots__ = ('text', 'mn', 'ops', 'mods', 'kind', 'rd', 'wr', 'label', 'target', 'states', 'passes',
                 'mA', 'mB', 'mC', 'mD', 'dpp', 'sdwa', 'lds', 'data', 'sread')

    def __init__(self, text):
        self.text = text
        t = text.split(';')[0].strip()
        self.label = None; self.target = None; self.states = 1; self.passes = 0
        self.rd = set(); self.wr = set(); self.dpp = False; self.sdwa = False; self.lds = False
        self.mA = self.mB = self.mC = self.mD = set(); self.data = set(); self.sread = set()
        self.ops = []; self.mods = ''
        if not t or t.startswith('.'):
            self.kind = 'dir'; self.mn = ''; self.states = 0; return
        if t.endswith(':'):
            self.kind = 'label'; self.label = t[:-1]; self.mn = ''; self.states = 0; return
        parts = t.split(None, 1)
        mn = parts[0]; self.mn = mn
        rest = parts[1] if len(parts) > 1 else ''
        ops = []; cur = ''; depth = 0
        for ch in rest:
            if ch in '[(': depth += 1
            if ch in '])': depth -= 1
            if ch == ',' and depth == 0:
                ops.append(cur.strip()); cur = ''
            else:
                cur += ch
        if cur.strip(): ops.append(cur.strip())
        mods = ''
        if ops:
            last = ops[-1].split(None, 1)
            if len(last) > 1:
                ops[-1] = last[0]; mods = last[1]
        self.ops = ops; self.mods = mods
        R = [parse_reg(o) for o in ops]
        base = re.sub(r'_(e32|e64|dpp|sdwa)$', '', mn)
        if mn.startswith('v_mfma'):
            self.kind = 'mfma'
            self.mD, self.mA, self.mB, self.mC = R[0], R[1], R[2], R[3]
            self.wr = R[0]; self.rd = R[1] | R[2] | R[3]
            self.passes = 8 if '32x32x16' in mn else 4 if '16x16x32' in mn else 16
        elif mn.startswith('v_'):
            self.kind = 'valu'
            self.dpp = bool(re.search(r'row_|quad_perm|wave_', mods)) or mn.endswith('_dpp')
            self.sdwa = 'dst_sel' in mods or 'op_sel' in mods and not mn.startswith('v_pk_')
            if base in ('v_swap_b32', 'v_permlane32_swap_b32', 'v_permlane16_swap_b32'):
                self.wr = R[0] | R[1]; self.rd = R[0] | R[1]
            elif re.match(r'v_(add|sub|subrev)_co_u32|v_addc_co|v_subb_co|v_subbrev_co|v_mad_u64', base):
                self.wr = R[0] | R[1]; self.rd = set().union(*R[2:])
            else:
                self.wr = R[0]; self.rd = set().union(*R[1:]) if len(R) > 1 else set()
                if base.startswith(('v_fmac', 'v_mac', 'v_pk_fmac', 'v_dot2c', 'v_writelane')) or self.dpp or 'UNUSED_PRESERVE' in mods:
                    self.rd |= R[0]
            if base == 'v_nop': self.wr = set()
            self.sread = {r for r in self.rd if r[0] in ('s', 'vcc')}
        elif mn.startswith('ds_'):
            self.kind = 'ds'
            if mn.startswith(('ds_read', 'ds_bpermute', 'ds_permute', 'ds_swizzle')):
                self.wr = R[0]; self.rd = set().union(*R[1:])
            else:
                self.rd = set().union(*R)
        elif mn.startswith(('buffer_', 'global_')):
            self.kind = 'vmem'
            words = (mods + ' ').split()
            self.lds = 'lds' in words or '_lds_' in mn
            if mn.startswith(('buffer_wbl2', 'buffer_inv')):
                pass
            elif mn.startswith('buffer_load') or mn.startswith('global_load'):
                if self.lds:
                    self.rd = set().union(*R) | {('m0', 0)}
                else:
                    self.wr = R[0]; self.rd = set().union(*R[1:])
                    if 'd16' in mn: self.rd |= R[0]
            elif mn.startswith('buffer_store'):
                self.rd = set().union(*R); self.data = R[0]
            elif mn.startswith('global_store'):
                self.rd = set().union(*R); self.data = R[1]
            elif 'atomic' in mn:
                self.rd = set().union(*R)
                if 'sc0' in words: self.wr = R[0]
            else:
                raise ValueError('unknown vmem ' + t)
            self.sread = {r for r in self.rd if r[0] in ('s', 'vcc')}
        elif mn.startswith('s_'):
            if mn.startswith(('s_load', 's_buffer_load', 's_memtime', 's_memrealtime')):
                self.kind = 'smem'; self.wr = R[0]; self.rd = set().union(*R[1:]) if len(R) > 1 else set()
            else:
                self.kind = 'salu'
                if mn.startswith(NODST_S):
                    self.rd = set().union(*R) if R else set()
                else:
                    self.wr = R[0]; self.rd = set().union(*R[1:]) if len(R) > 1 else set()
                    if 'saveexec' in mn:
                        self.wr = self.wr | {('exec', 0), ('exec', 1)}
                    if mn in ('s_addk_i32', 's_mulk_i32'): self.rd |= R[0]
                if mn == 's_nop': self.states = int(ops[0], 0) + 1
                if mn.startswith(('s_cbranch', 's_branch')): self.target = ops[0]
        else:
            raise ValueError('unknown instr ' + t)

    def is_trans(self): return re.sub(r'_(e32|e64)$', '', self.mn) in TRANS


def need(p, c):
    n = 0
    vp = {r for r in p.wr if r[0] in 'va'}
    if p.kind == 'valu':
        if c.kind == 'mfma' and vp & c.rd: n = max(n, 2)
        sw = {r for r in p.wr if r[0] in ('s', 'vcc')}
        if sw:
            if c.kind == 'vmem' and sw & c.rd: n = max(n, 5)
            if c.kind == 'valu' and sw & c.rd:
                n = max(n, 4 if c.mn.startswith(('v_readlane', 'v_writelane')) else 2)
            if c.kind in ('salu', 'smem') and sw & c.rd: n = max(n, 2)
            if c.kind == 'salu' and c.mn.startswith('s_cbranch_vcc') and ('vcc', 0) in sw: n = max(n, 2)
        if c.kind == 'valu' and vp & c.rd:
            if c.mn.startswith(('v_readfirstlane', 'v_readlane')): n = max(n, 1)
            if c.mn.startswith('v_permlane') or c.dpp: n = max(n, 2)
            if p.is_trans() and not c.is_trans(): n = max(n, 1)
            if p.is_trans() and c.is_trans(): n = max(n, 1)
        if p.sdwa and c.kind in ('valu',) and vp & (c.rd | c.wr): n = max(n, 1)
        if p.is_trans() and c.kind in ('vmem', 'ds') and vp & c.rd: n = max(n, 1)
        if any(r[0] == 'exec' for r in p.wr):
            if c.kind in ('valu', 'mfma'): n = max(n, 5)
    if p.kind == 'mfma':
        big = p.passes
        t_rw = {4: 8, 8: 12, 16: 20}[big]
        t_c = {4: 6, 8: 10, 16: 18}[big]
        t_war = {4: 3, 8: 7, 16: 15}[big]
        D = p.mD
        if c.kind == 'mfma':
            if D & (c.mA | c.mB): n = max(n, t_rw)
            if D & c.mC and not (D == c.mC and p.passes == c.passes): n = max(n, t_c)
            if D & c.mD and not (D == c.mD and p.passes == c.passes) and not (D & c.mC): n = max(n, t_c)
        elif c.kind in ('valu', 'vmem', 'ds'):
            if D & (c.rd | c.wr): n = max(n, t_rw)
            if c.kind == 'valu' and p.mC & c.wr: n = max(n, t_war)
            if c.kind in ('vmem', 'ds') and p.mC & c.wr: n = max(n, t_war)
    if p.kind == 'salu' and ('m0', 0) in p.wr:
        if c.kind == 'vmem' and c.lds: n = max(n, 1)
    if p.kind == 'salu' and any(r[0] == 'exec' for r in p.wr):
        if c.kind == 'valu' and (c.dpp or c.mn.startswith('v_permlane')): n = max(n, 2)
    if p.kind == 'vmem' and len(p.data) >= 3:
        if c.kind == 'valu' and p.data & c.wr: n = max(n, 2)
        elif c.kind in ('ds', 'vmem', 'mfma') and p.data & c.wr: n = max(n, 1)
    return n


def build_cfg(ins):
    labels = {x.label: i for i, x in enumerate(ins) if x.kind == 'label'}
    preds = [[] for _ in ins]
    for i, x in enumerate(ins):
        if i + 1 < len(ins) and not (x.mn == 's_branch' or x.mn == 's_endpgm'):
            preds[i + 1].append(i)
        if x.target is not None:
            preds[labels[x.target]].append(i)
    return labels, preds


def hazard_pass(lines, verbose=False):
    ins = [Ins(l) for l in lines]
    total = 0
    i = 0
    labels, preds = build_cfg(ins)
    while i < len(ins):
        c = ins[i]
        if c.kind in ('dir', 'label'):
            i += 1; continue
        worst = 0; why = None
        stack = [(p, 0) for p in preds[i]]
        seen = {}
        while stack:
            j, dist = stack.pop()
            if dist >= 20: continue
            if seen.get(j, 99) <= dist: continue
            seen[j] = dist
            p = ins[j]
            if p.kind not in ('dir', 'label'):
                n = need(p, c)
                if n - dist > worst: worst = n - dist; why = p.text
            for q in preds[j]: stack.append((q, dist + p.states))
        if worst > 0:
            k = worst
            new = []
            while k > 0:
                m = min(k, 16); new.append(Ins(f'  s_nop {m - 1}')); k -= m
            if verbose: print(f'hazard: +{worst} before [{c.text.strip()}] after [{why.strip()}]', file=sys.stderr)
            ins[i:i] = new
            total += worst
            labels, preds = build_cfg(ins)
            i += len(new)
        i += 1
    return [x.text for x in ins], total


def wait_check(lines, name=''):
    ins = [Ins(l) for l in lines]
    labels = {x.label: i for i, x in enumerate(ins) if x.kind == 'label'}
    errs = set()
    sys.setrecursionlimit(100000)
    work = [(0, (), (), ())]
    seen = set()
    steps = 0
    while work:
        i, vm, lg, visits = work.pop()
        vm = list(vm); lg = list(lg); visits = dict(visits)
        while i < len(ins):
            steps += 1
            if steps > 3000000:
                print('wait_check: too many steps', name, file=sys.stderr); return errs
            x = ins[i]
            if x.kind == 'label':
                visits[i] = visits.get(i, 0) + 1
                if visits[i] > 3: break
                key = (i, tuple(vm), tuple(lg))
                if key in seen: break
                seen.add(key)
            if x.kind in ('dir', 'label'):
                i += 1; continue
            touched = x.rd | x.wr
            for q, qn in ((vm, 'vm'), (lg, 'lgkm')):
                for (regs, txt, sm) in q:
                    if regs & touched:
                        errs.add(f'{name}: [{x.text.strip()}] touches pending {qn} dest of [{txt.strip()}]')
            if x.mn == 's_waitcnt':
                t = x.text.split(';')[0]
                m = re.search(r'vmcnt\((\d+)\)', t)
                if m:
                    n = int(m.group(1)); vm = vm[len(vm) - n:] if n < len(vm) and n > 0 else ([] if n == 0 else vm)
                m = re.search(r'lgkmcnt\((\d+)\)', t)
                if m:
                    n = int(m.group(1))
                    if n == 0: lg = []
                    elif not any(e[2] for e in lg):
                        if n < len(lg): lg = lg[len(lg) - n:]
            elif x.kind == 'vmem':
                vm.append((frozenset(x.wr), x.text, False))
                if len(vm) > 63: errs.add(f'{name}: vmcnt overflow (>63 outstanding) at [{x.text.strip()}]')
            elif x.kind == 'ds':
                lg.append((frozenset(x.wr), x.text, False))
            elif x.kind == 'smem':
                lg.append((frozenset(x.wr), x.text, True))
            if x.mn == 's_endpgm': break
            if x.target is not None:
                t = labels[x.target]
                if x.mn == 's_branch':
                    i = t; continue
                work.append((t, tuple(vm), tuple(lg), tuple(visits.items())))
            i += 1
    return errs


WT = {'k2_kernel': 'sc1', 'k4_kernel': 'sc1', 'k5_kernel': 'sc1'}


class K:
    def __init__(self, name, vgpr, agpr=0, sgpr=96):
        self.name = name; self.lines = []; self.vgpr = vgpr; self.agpr = agpr; self.sgpr = sgpr
        self._lab = 0

    def __call__(self, s):
        for l in s.strip('\n').split('\n'):
            l = l.strip()
            if not l: continue
            if l.startswith('buffer_store') and 'sc1' not in l and ';plain' not in l and WT.get(self.name):
                l = l + ' ' + WT[self.name]
            self.lines.append(l if l.endswith(':') else '  ' + l)

    def stamp(self, i):
        m = getattr(self, 'smap', None)
        if m is not None:
            if i not in m: return
            i = m[i]
        self.lines.append(f'  ;STAMP {i}')

    def newlabel(self, p='L'):
        self._lab += 1
        return f'{p}_{self.name}_{self._lab}'

    def instrument(self, kidx):
        self.sgpr = 102
        head = ['  s_memrealtime s[92:93]', '  v_readfirstlane_b32 s91, v0', '  s_memtime s[84:85]', '  s_waitcnt lgkmcnt(0)']
        tail = f'''s_waitcnt vmcnt(0) lgkmcnt(0)
s_memrealtime s[94:95]
s_memtime s[86:87]
s_load_dwordx2 s[96:97], s[0:1], 112
s_lshr_b32 s91, s91, 6
s_and_b32 s91, s91, 15
s_lshl_b32 s90, s2, 4
s_add_u32 s91, s91, s90
s_add_u32 s91, s91, {kidx*16384}
s_lshl_b32 s91, s91, 4
s_waitcnt lgkmcnt(0)
s_add_u32 s96, s96, 0x3800000
s_addc_u32 s97, s97, 0
s_and_b32 s97, s97, 0xffff
s_mov_b32 s98, 0x400000
s_mov_b32 s99, 0x20000
s_sub_u32 s86, s86, s84
s_mov_b64 exec, 1
v_mov_b32 v0, s92
v_mov_b32 v1, s94
v_mov_b32 v2, s86
v_mov_b32 v3, 1
v_mov_b32 v4, 0
buffer_store_dwordx4 v[0:3], v4, s[96:99], s91 offen
s_add_u32 s96, s96, 0x400000
s_addc_u32 s97, s97, 0
s_mov_b32 s98, 0x800000
s_lshl_b32 s91, s91, 1
''' + ''.join(f's_sub_u32 s{68+2*i}, s{68+2*i}, s84\nv_mov_b32 v{8+i}, s{68+2*i}\n' for i in range(8)) + '''buffer_store_dwordx4 v[8:11], v4, s[96:99], s91 offen
buffer_store_dwordx4 v[12:15], v4, s[96:99], s91 offen offset:16
s_endpgm'''
        tail = tail.split('\n')
        new = list(head) + [f'  s_mov_b32 s{68+2*i}, s84' for i in range(8)]
        for l in self.lines:
            if l.strip().startswith(';STAMP'):
                i = int(l.split()[1])
                new += [f'  s_memtime s[{68+2*i}:{69+2*i}]', '  s_waitcnt lgkmcnt(0)']
            elif l.strip() == 's_endpgm': new += ['  ' + t for t in tail]
            else: new.append(l)
        self.lines = new

    def finish(self, verbose=False):
        lines, n = hazard_pass(self.lines, verbose)
        errs = wait_check(lines, self.name)
        for e in sorted(errs):
            if not (self.name=='k0_kernel' and 'v14' in e): print('WAITCHK', e, file=sys.stderr)
        mv = ma = ms = -1
        for l in lines:
            x = Ins(l)
            for r in x.rd | x.wr:
                if r[0] == 'v': mv = max(mv, r[1])
                if r[0] == 'a': ma = max(ma, r[1])
                if r[0] == 's': ms = max(ms, r[1])
        acc = (self.vgpr + 3) // 4 * 4
        assert mv < acc, (self.name, 'vgpr', mv)
        assert ma < self.agpr or ma < 0, (self.name, 'agpr', ma)
        assert ms < self.sgpr, (self.name, 'sgpr', ms)
        nfv = acc + self.agpr if self.agpr else self.vgpr
        head = f'.text\n.globl {self.name}\n.p2align 8\n.type {self.name},@function\n{self.name}:\n'
        tail = f'''.section .rodata,"a"
.p2align 6
.amdhsa_kernel {self.name}
  .amdhsa_next_free_vgpr {nfv}
  .amdhsa_next_free_sgpr {self.sgpr}
  .amdhsa_accum_offset {acc}
  .amdhsa_group_segment_fixed_size 0
  .amdhsa_kernarg_size 120
  .amdhsa_user_sgpr_count 2
  .amdhsa_user_sgpr_kernarg_segment_ptr 1
  .amdhsa_system_sgpr_workgroup_id_x 1
  .amdhsa_float_denorm_mode_32 3
.end_amdhsa_kernel
'''
        print(f'{self.name}: {len(lines)} lines, nops inserted {n}, maxv {mv} maxa {ma} maxs {ms}', file=sys.stderr)
        return head + '\n'.join(lines) + '\n' + tail
```

```python
from dsl import K
from common import *

LOG2E = 1.4426950408889634
N_MOD, N_LN, N_WQ = 162, 256, 36
K0_GRID = N_MOD + N_LN + N_WQ
TP_RS = 176
TP_WAVE = 32 * TP_RS


def tprep_lane(k, vlane, vsrc, vlds, vt, sldsbase, wo_step=None):
    for i in range(5):
        k(f'''v_add_u32 v{vt}, {64*i}, v{vlane}
v_mul_u32_u24 v{vt+1}, 57, v{vt}
v_lshrrev_b32 v{vt+1}, 9, v{vt+1}
v_mul_u32_u24 v{vt+2}, 9, v{vt+1}
v_sub_u32 v{vt+2}, v{vt}, v{vt+2}
v_lshlrev_b32 v{vt+2}, 4, v{vt+2}
v_mul_u32_u24 v{vlds+i}, {TP_RS}, v{vt+1}
v_add3_u32 v{vlds+i}, v{vlds+i}, v{vt+2}, s{sldsbase}''')
        if wo_step is not None:
            k(f'''v_lshrrev_b32 v{vt+3}, 4, v{vt+1}
v_mul_u32_u24 v{vt+3}, 18, v{vt+3}
v_and_b32 v{vt+4}, 15, v{vt+1}
v_add_u32 v{vt+3}, v{vt+3}, v{vt+4}
s_mul_i32 s{wo_step+1}, s{wo_step}, 36
v_add_u32 v{vt+3}, s{wo_step+1}, v{vt+3}
v_lshrrev_b32 v{vt+4}, 1, v{vt+1}
s_sub_u32 s{wo_step+1}, s{wo_step}, 16
s_lshl_b32 s{wo_step+1}, s{wo_step+1}, 4
v_add_u32 v{vt+4}, s{wo_step+1}, v{vt+4}
v_mul_u32_u24 v{vt+4}, 18, v{vt+4}
v_and_b32 v{vt+5}, 1, v{vt+1}
v_add3_u32 v{vt+4}, v{vt+4}, v{vt+5}, 16
s_cmp_ge_u32 s{wo_step}, 16
s_cselect_b64 vcc, -1, 0
v_cndmask_b32 v{vt+1}, v{vt+3}, v{vt+4}, vcc''')
        k(f'''v_mul_u32_u24 v{vsrc+i}, 1152, v{vt+1}
v_add_u32 v{vsrc+i}, v{vsrc+i}, v{vt+2}''')
    k(f'''v_cmp_gt_u32 vcc, 32, v{vlane}
v_mov_b32 v{vt}, {OOB}
v_cndmask_b32 v{vsrc+4}, v{vt}, v{vsrc+4}, vcc
v_and_b32 v{vt}, 31, v{vlane}
v_mul_u32_u24 v{vt}, {TP_RS}, v{vt}
v_add_u32 v{vt}, 160, v{vt}
v_add_u32 v{vt}, s{sldsbase}, v{vt}
v_cndmask_b32 v{vlds+4}, v{vt}, v{vlds+4}, vcc''')


def tprep_rdaddr(k, vlane, vxy, vnat, vt, sldsbase):
    k(f'''v_lshrrev_b32 v{vt}, 4, v{vlane}
v_lshlrev_b32 v{vt}, 3, v{vt}
v_bfe_u32 v{vt+1}, v{vlane}, 2, 2
v_add_u32 v{vt}, v{vt}, v{vt+1}
v_mul_u32_u24 v{vt}, {TP_RS}, v{vt}
v_add_u32 v{vt}, s{sldsbase}, v{vt}
v_and_b32 v{vt+1}, 3, v{vlane}
v_lshl_add_u32 v{vxy}, v{vt+1}, 4, v{vt}
v_lshl_add_u32 v{vnat}, v{vt+1}, 3, v{vt}''')


def tprep_read(k, vxy, vnat, vd):
    for j in range(4):
        o = (j >> 1) * 64 + (j & 1) * 8
        k(f'''ds_read_b64_tr_b16 v[{vd+4*j}:{vd+4*j+1}], v{vxy} offset:{o}
ds_read_b64_tr_b16 v[{vd+4*j+2}:{vd+4*j+3}], v{vxy} offset:{o+4*TP_RS}''')
    k(f'''ds_read_b64_tr_b16 v[{vd+16}:{vd+17}], v{vnat} offset:128
ds_read_b64_tr_b16 v[{vd+18}:{vd+19}], v{vnat} offset:{128+4*TP_RS}''')


def gen_k0(tlb=False, stride=20):
    k = K('k0_kernel', vgpr=64, sgpr=48)
    k(f'''s_cmp_ge_u32 s2, {K0_GRID}
s_cbranch_scc1 L_k0_end
s_load_dwordx8 s[4:11], s[0:1], 0
s_load_dwordx4 s[12:15], s[0:1], {A_C}
s_load_dwordx2 s[16:17], s[0:1], {A_WS}''')
    waveid(k, 3, 1)
    k('v_and_b32 v1, 63, v0')
    code_prefetch(k, 'k0_kernel', 1, 60, 40, nwg=1024, swave=3)
    code_prefetch(k, 'k1_kernel', 1, 62, 40, nwg=16, swave=3)
    if tlb:
        k(f'''s_cmp_ge_u32 s2, 16
s_cbranch_scc1 L_k0_notlb
s_cmp_lg_u32 s3, 1
s_cbranch_scc1 L_k0_notlb
s_load_dwordx2 s[20:21], s[0:1], {A_WO}
s_load_dwordx4 s[24:27], s[0:1], {A_WIN}
s_load_dwordx4 s[28:31], s[0:1], {A_BSP}
s_load_dwordx2 s[32:33], s[0:1], {A_OUT}
v_lshlrev_b32 v58, {stride}, v1
s_waitcnt lgkmcnt(0)''')
        for ptr, n in ((16, 0x3600000), (20, 576*576*2), (24, 576*4608*2), (26, S*S*2), (28, S*2), (30, 2304*576*2), (32, S*D*2)):
            srd_in(k, 40, ptr, n)
            k('buffer_load_dword v59, v58, s[40:43], 0 offen')
        k('L_k0_notlb:')
    k(f'''s_waitcnt lgkmcnt(0)
s_cmp_ge_u32 s2, {N_MOD}
s_cbranch_scc1 L_k0_ln''')
    srd_in(k, 20, 14, 576 * 3456 * 2)
    srd_in(k, 24, 12, 576 * 2)
    srd_ws(k, 28, 16, 'MODP')
    k(f'''s_cmp_ge_u32 s2, 54
s_cselect_b32 s18, 1, 0
s_cmp_ge_u32 s2, 108
s_cselect_b32 s18, 2, s18
s_mul_i32 s19, s18, 54
s_sub_u32 s19, s2, s19
s_mul_i32 s32, s18, 192
s_mul_i32 s33, s3, 48
s_add_u32 s32, s32, s33
v_lshrrev_b32 v2, 3, v1
v_add_u32 v2, s32, v2
v_lshlrev_b32 v3, 1, v2
s_movk_i32 s33, 6912
v_mul_lo_u32 v2, v2, s33
v_and_b32 v4, 7, v1
s_lshl_b32 s33, s19, 7
v_lshl_add_u32 v4, v4, 4, s33
v_add_u32 v2, v2, v4''')
    for i in range(6):
        k(f'buffer_load_ushort v{8+i}, v3, s[24:27], 0 offen offset:{16*i}')
    for i in range(6):
        k(f'''s_mov_b32 s33, {i*8*6912}
buffer_load_dwordx4 v[{16+4*i}:{19+4*i}], v2, s[20:23], s33 offen''')
    for j in range(8): k(f'v_mov_b32 v{40+j}, 0')
    k('s_waitcnt vmcnt(6)')
    for i in range(6):
        k(f'''v_lshlrev_b32 v{8+i}, 16, v{8+i}
v_mul_f32 v5, {fhex(-LOG2E)}, v{8+i}
v_exp_f32 v5, v5
v_add_f32 v5, 1.0, v5
v_rcp_f32 v5, v5
v_mul_f32 v5, v5, v{8+i}
v_cvt_pk_bf16_f32 v5, v5, v5
v_lshlrev_b32 v{8+i}, 16, v5''')
    for i in range(6):
        k(f's_waitcnt vmcnt({5-i})')
        for j in range(4):
            unpack(k, 6, 16 + 4 * i + j)
            k(f'''v_fmac_f32 v{40+2*j}, v{8+i}, v6
v_fmac_f32 v{41+2*j}, v{8+i}, v7''')
    for j in range(8):
        k(f'v_add_f32_dpp v{40+j}, v{40+j}, v{40+j} row_ror:8 row_mask:0xf bank_mask:0xf')
    for j in range(8): xadd16(k, 40 + j, 48 + j)
    for j in range(8): xadd32(k, 40 + j, 48 + j)
    k(f'''s_lshl_b32 s33, s3, 8
v_lshl_add_u32 v5, v1, 5, s33
s_mov_b64 exec, 0xff
ds_write_b128 v5, v[40:43]
ds_write_b128 v5, v[44:47] offset:16
s_mov_b64 exec, -1
s_waitcnt lgkmcnt(0)
s_barrier
s_cmp_lg_u32 s3, 0
s_cbranch_scc1 L_k0_end
v_lshlrev_b32 v5, 2, v1
ds_read_b32 v8, v5
ds_read_b32 v9, v5 offset:256
ds_read_b32 v10, v5 offset:512
ds_read_b32 v11, v5 offset:768
s_mul_i32 s33, s18, {3456*4}
s_lshl_b32 s34, s19, 8
s_add_u32 s33, s33, s34
s_waitcnt lgkmcnt(0)
v_add_f32 v8, v8, v9
v_add_f32 v10, v10, v11
v_add_f32 v8, v8, v10
buffer_store_dword v8, v5, s[28:31], s33 offen
s_endpgm''')
    k(f'''L_k0_ln:
s_cmp_ge_u32 s2, {N_MOD+N_LN}
s_cbranch_scc1 L_k0_wq
s_sub_u32 s18, s2, {N_MOD}''')
    srd_in(k, 20, 4, S * D * 2)
    srd_ws(k, 24, 16, 'XN')
    k(f'''s_lshl_b32 s19, s18, 3
s_lshl_b32 s32, s3, 1
s_add_u32 s19, s19, s32
v_lshrrev_b32 v2, 5, v1
v_add_u32 v2, s19, v2
v_and_b32 v3, 31, v1
v_mul_u32_u24 v4, 1152, v2
v_lshl_add_u32 v4, v3, 4, v4
v_cmp_gt_u32 vcc, 24, v3
v_mov_b32 v5, {OOB}
v_cndmask_b32 v4, v5, v4, vcc
buffer_load_dwordx4 v[8:11], v4, s[20:23], 0 offen
buffer_load_dwordx4 v[12:15], v4, s[20:23], 0 offen offset:384
buffer_load_dwordx4 v[16:19], v4, s[20:23], 0 offen offset:768
v_lshrrev_b32 v6, 4, v2
v_mul_u32_u24 v6, 18, v6
v_lshrrev_b32 v7, 2, v3
v_add_u32 v6, v6, v7
v_lshlrev_b32 v6, 6, v6
v_and_b32 v7, 3, v3
v_lshl_add_u32 v6, v7, 4, v6
v_and_b32 v7, 15, v2
v_add_u32 v6, v6, v7
v_lshlrev_b32 v6, 4, v6
v_cndmask_b32 v6, v5, v6, vcc''')
    srd_ws(k, 28, 16, 'ST2')
    srd_ws(k, 32, 16, 'KV')
    k(f'''s_cmp_lg_u32 s3, 0
s_cbranch_scc1 L_k0_nos
v_mov_b32 v20, -1
v_mov_b32 v21, -1
v_mov_b32 v22, -1
v_mov_b32 v23, -1
v_lshlrev_b32 v7, 4, v1
s_lshl_b32 s36, s18, 10
buffer_store_dwordx4 v[20:23], v7, s[28:31], s36 offen
L_k0_nos:
s_cmp_lg_u32 s3, 1
s_cbranch_scc1 L_k0_noo
v_mov_b32 v24, 0x3f803f80
v_mov_b32 v25, 0x3f803f80
v_mov_b32 v26, 0x3f803f80
v_mov_b32 v27, 0x3f803f80
s_lshr_b32 s36, s18, 4
s_mul_i32 s36, s36, 9472
s_bfe_u32 s37, s18, 0x20002
s_mul_i32 s37, s37, 2240
s_add_u32 s36, s36, s37
s_and_b32 s37, s18, 3
s_mul_i32 s37, s37, 304
s_add_u32 s36, s36, s37
s_add_u32 s36, s36, {1024+18*16}
v_cmp_eq_u32 vcc, 0, v1
v_cndmask_b32 v7, v5, v1, vcc
buffer_store_dwordx4 v[24:27], v7, s[32:35], s36 offen
L_k0_noo:
s_cmp_lg_u32 s3, 2
s_cbranch_scc1 L_k0_noc
s_cmp_ge_u32 s18, 16
s_cbranch_scc1 L_k0_noc''')
    srd_ws(k, 28, 16, 'CNT')
    k('''v_mov_b32 v20, 0
v_mov_b32 v21, 0
v_mov_b32 v22, 0
v_mov_b32 v23, 0
v_lshlrev_b32 v7, 4, v1
s_lshl_b32 s36, s18, 10
buffer_store_dwordx4 v[20:23], v7, s[28:31], s36 offen
L_k0_noc:
s_waitcnt vmcnt(0)''')
    for j in range(12): unpack(k, 32 + 2 * j, 8 + j)
    k('''v_pk_add_f32 v[20:21], v[32:33], v[34:35]
v_pk_mul_f32 v[22:23], v[32:33], v[32:33]
v_pk_fma_f32 v[22:23], v[34:35], v[34:35], v[22:23]''')
    for j in range(2, 12):
        k(f'''v_pk_add_f32 v[20:21], v[20:21], v[{32+2*j}:{33+2*j}]
v_pk_fma_f32 v[22:23], v[{32+2*j}:{33+2*j}], v[{32+2*j}:{33+2*j}], v[22:23]''')
    k('''v_add_f32 v20, v20, v21
v_add_f32 v22, v22, v23''')
    for r in (8, 4, 2, 1):
        k(f'''v_add_f32_dpp v20, v20, v20 row_ror:{r} row_mask:0xf bank_mask:0xf
v_add_f32_dpp v22, v22, v22 row_ror:{r} row_mask:0xf bank_mask:0xf''')
    xadd16(k, 20, 21); xadd16(k, 22, 23)
    k(f'''v_mul_f32 v20, {fhex(1/576)}, v20
v_mul_f32 v22, {fhex(1/576)}, v22
v_fma_f32 v22, -v20, v20, v22
v_max_f32 v22, 0, v22
v_add_f32 v22, {fhex(1e-5)}, v22
v_rsq_f32 v22, v22
v_mul_f32 v20, v20, v22
v_sub_f32 v20, 0, v20''')
    for j in range(12):
        k(f'''v_pk_fma_f32 v[{32+2*j}:{33+2*j}], v[{32+2*j}:{33+2*j}], v[22:23], v[20:21] op_sel_hi:[1,0,0]
v_cvt_pk_bf16_f32 v{8+j}, v{32+2*j}, v{33+2*j}''')
    k('''s_movk_i32 s36, 6144
s_movk_i32 s37, 12288
buffer_store_dwordx4 v[8:11], v6, s[24:27], 0 offen
buffer_store_dwordx4 v[12:15], v6, s[24:27], s36 offen
buffer_store_dwordx4 v[16:19], v6, s[24:27], s37 offen
s_endpgm''')
    k(f'''L_k0_wq:
s_sub_u32 s18, s2, {N_MOD+N_LN}
s_lshl_b32 s18, s18, 2
s_add_u32 s18, s18, s3
s_mul_i32 s19, s18, 57
s_lshr_b32 s19, s19, 10
s_mul_i32 s36, s19, 18
s_sub_u32 s36, s18, s36
s_mul_i32 s37, s3, {TP_WAVE}''')
    srd_in(k, 20, 6, 576 * 576 * 2)
    srd_in(k, 24, 8, 576 * 18 * 2)
    srd_in(k, 28, 10, 576 * 18 * 2)
    srd_ws(k, 32, 16, 'WQKV')
    tprep_lane(k, 1, 2, 8, 14, 37)
    k(f'''s_mul_i32 s38, s36, {32*1152}
s_mul_i32 s39, s19, 144
s_add_u32 s38, s38, s39''')
    for i in range(5):
        k(f'buffer_load_dwordx4 v[{20+4*i}:{23+4*i}], v{2+i}, s[20:23], s38 offen')
    k(f'''v_mul_u32_u24 v14, 36, v1
v_mov_b32 v15, {OOB}
v_cmp_gt_u32 vcc, 32, v1
v_cndmask_b32 v14, v15, v14, vcc
v_and_b32 v15, 31, v1
v_mul_u32_u24 v15, {TP_RS}, v15
v_lshrrev_b32 v16, 5, v1
v_lshl_add_u32 v15, v16, 4, v15
v_add_u32 v15, s37, v15
s_mul_i32 s38, s36, {32*36}
v_mov_b32 v40, 0
v_mov_b32 v41, 0
v_mov_b32 v42, 0
v_mov_b32 v43, 0
s_cmp_eq_u32 s19, 0
s_cbranch_scc0 L_k0_kv1
buffer_load_dwordx4 v[40:43], v14, s[24:27], s38 offen
L_k0_kv1:
s_cmp_eq_u32 s19, 1
s_cbranch_scc0 L_k0_kv2
buffer_load_dwordx4 v[40:43], v14, s[24:27], s38 offen offset:16
L_k0_kv2:
s_cmp_eq_u32 s19, 2
s_cbranch_scc0 L_k0_kv3
buffer_load_dword v40, v14, s[24:27], s38 offen offset:32
buffer_load_dword v42, v14, s[28:31], s38 offen offset:32
L_k0_kv3:
s_cmp_eq_u32 s19, 3
s_cbranch_scc0 L_k0_kv4
buffer_load_dwordx4 v[40:43], v14, s[28:31], s38 offen
L_k0_kv4:
s_cmp_eq_u32 s19, 4
s_cbranch_scc0 L_k0_kv5
buffer_load_dwordx4 v[40:43], v14, s[28:31], s38 offen offset:16
L_k0_kv5:''')
    tprep_rdaddr(k, 1, 16, 17, 18, 37)
    k('s_waitcnt vmcnt(0)')
    for i in range(5):
        k(f'ds_write_b128 v{8+i}, v[{20+4*i}:{23+4*i}]')
    k('''ds_write_b128 v15, v[40:43] offset:144
s_waitcnt lgkmcnt(0)''')
    tprep_read(k, 16, 17, 44)
    k('''v_lshlrev_b32 v2, 4, v1
s_mul_i32 s38, s18, 5120
s_add_u32 s39, s38, 4096
s_waitcnt lgkmcnt(0)''')
    for j in range(4):
        k(f'buffer_store_dwordx4 v[{44+4*j}:{47+4*j}], v2, s[32:35], s38 offen offset:{1024*j}')
    k('''buffer_store_dwordx4 v[60:63], v2, s[32:35], s39 offen
L_k0_end:
s_endpgm''')
    return k, f'; @launch kernel=k0_kernel grid=({K0_GRID},1,1) block=(256,1,1) lds={4*TP_WAVE}'
```

```python
from dsl import K
from common import *

LOG2E = 1.4426950408889634
QSCALE = 18 ** -0.5 * LOG2E


def map_8x4_32x8(k, sbm, sbn, t):
    k(f'''s_and_b32 s{t}, s2, 7
s_lshr_b32 s{t+1}, s2, 3
s_lshr_b32 s{sbm}, s{t}, 1
s_lshl_b32 s{sbm}, s{sbm}, 3
s_and_b32 s{sbn}, s{t+1}, 7
s_add_u32 s{sbm}, s{sbm}, s{sbn}
s_and_b32 s{sbn}, s{t}, 1
s_lshl_b32 s{sbn}, s{sbn}, 2
s_lshr_b32 s{t+1}, s{t+1}, 3
s_add_u32 s{sbn}, s{sbn}, s{t+1}''')


def round_bf16(k, v0, v1, t):
    k(f'''v_cvt_pk_bf16_f32 v{t}, v{v0}, v{v1}
v_lshlrev_b32 v{v0}, 16, v{t}
v_and_b32 v{v1}, 0xffff0000, v{t}''')


def gen_k1():
    from k4 import VM
    from k3 import skinny_loader
    k = K('k1_kernel', vgpr=188, sgpr=64)
    vm = VM(k)
    LB = 18 * 5120
    A0, ACC, BF = 64, 40, 140
    k(f'''s_cmp_ge_u32 s2, 256
s_cbranch_scc1 L_k1_end
s_load_dwordx2 s[16:17], s[0:1], {A_WS}''')
    waveid(k, 3, 1)
    map_8x4_32x8(k, 4, 5, 6)
    k(f'''v_and_b32 v1, 63, v0
v_lshlrev_b32 v2, 4, v1
s_cmp_ge_u32 s3, 4
s_cbranch_scc1 L_k1_ld
s_movk_i32 s8, {3456*4}
s_movk_i32 s9, {2*3456*4}
s_lshl_b32 s10, s4, 2
s_add_u32 s10, s10, s3
s_mul_i32 s11, s10, {18*1024}
s_mul_i32 s12, s3, 72
v_add_u32 v3, s12, v1
v_cmp_gt_u32 vcc, 8, v1
v_lshlrev_b32 v3, 4, v3
v_add_u32 v4, 1024, v3
v_mov_b32 v5, {OOB}
v_cndmask_b32 v4, v5, v4, vcc
s_waitcnt lgkmcnt(0)''')
    srd_ws(k, 20, 16, 'MODP')
    for r, v in ((8, 3), (20, 4)):
        vm.op(f'buffer_load_dwordx4 v[{r}:{r+3}], v{v}, s[20:23], 0 offen', 'm')
        vm.op(f'buffer_load_dwordx4 v[{r+4}:{r+7}], v{v}, s[20:23], s8 offen', 'm')
        vm.op(f'buffer_load_dwordx4 v[{r+8}:{r+11}], v{v}, s[20:23], s9 offen', 'm')
    srd_ws(k, 24, 16, 'XN')

    def a_load(st):
        if st % 4 == 0 and st: k('s_add_u32 s11, s11, 4096')
        vm.op(f'buffer_load_dwordx4 v[{A0+4*st}:{A0+4*st+3}], v2, s[24:27], s11 offen offset:{(st%4)*1024}', f'A{st}')
    NPRE = 10
    for st in range(NPRE): a_load(st)
    for j in range(20): k(f'v_mov_b32 v{ACC+j}, 0')
    k('''s_cmp_ge_u32 s3, 2
s_cselect_b32 s12, 1.0, 0''')
    k.stamp(0)
    vm.wait('m')
    k('''v_pk_add_f32 v[8:9], v[8:9], v[12:13]
v_pk_add_f32 v[10:11], v[10:11], v[14:15]
v_pk_add_f32 v[20:21], v[20:21], v[24:25]
v_pk_add_f32 v[22:23], v[22:23], v[26:27]
v_pk_add_f32 v[8:9], v[8:9], v[16:17]
v_pk_add_f32 v[10:11], v[10:11], v[18:19]
v_pk_add_f32 v[20:21], v[20:21], v[28:29]
v_pk_add_f32 v[22:23], v[22:23], v[30:31]''')
    for a in (8, 10, 20, 22): round_bf16(k, a, a + 1, 14)
    for a in (8, 9, 10, 11, 20, 21, 22, 23): k(f'v_add_f32 v{a}, s12, v{a}')
    for a in (8, 10, 20, 22): round_bf16(k, a, a + 1, 14)
    k(f'''v_add_u32 v3, {LB}, v3
ds_write_b128 v3, v[8:11]
s_mov_b64 exec, 0xff
ds_write_b128 v3, v[20:23] offset:1024
s_mov_b64 exec, -1
v_lshrrev_b32 v4, 4, v1
v_lshlrev_b32 v4, 5, v4
v_add_u32 v4, {LB}, v4
v_add_u32 v5, 0x10000, v2
s_waitcnt lgkmcnt(0)
s_barrier''')
    k.stamp(1)
    T = 180

    def gs_read(st):
        r = 8 + 16 * (st & 1)
        return [f'ds_read_b128 v[{r}:{r+3}], v4 offset:{2304+st*128}', f'ds_read_b128 v[{r+4}:{r+7}], v4 offset:{2304+st*128+16}',
                f'ds_read_b128 v[{r+8}:{r+11}], v4 offset:{st*128}', f'ds_read_b128 v[{r+12}:{r+15}], v4 offset:{st*128+16}']

    def modulate(st):
        r = 8 + 16 * (st & 1); o = []
        for j in range(4):
            o += [f'v_lshlrev_b32 v{T+2*j}, 16, v{A0+4*st+j}', f'v_and_b32 v{T+2*j+1}, 0xffff0000, v{A0+4*st+j}']
        for j in range(8): o.append(f'v_fma_f32 v{T+j}, v{T+j}, v{r+j}, v{r+8+j}')
        for j in range(4): o.append(f'v_cvt_pk_bf16_f32 v{A0+4*st+j}, v{T+2*j}, v{T+2*j+1}')
        return o

    def b_read(st):
        b = BF + 20 * (st & 1); o = []
        for j in range(5):
            off = st * 5120 + j * 1024
            o.append(f'ds_read_b128 v[{b+4*j}:{b+4*j+3}], v2 offset:{off}' if off < 65536 else
                     f'ds_read_b128 v[{b+4*j}:{b+4*j+3}], v5 offset:{off-65536}')
        return o
    bar = (4, 8, 12, 16)
    for o in gs_read(0) + gs_read(1) + b_read(0): k(o)
    vm.wait('A0'); k('s_waitcnt lgkmcnt(9)')
    for o in modulate(0): k(o)
    for st in range(18):
        if st + 1 in bar: k('s_barrier')
        if st + 1 < 18: vm.wait(f'A{st+1}')
        k('s_waitcnt lgkmcnt(0)')
        rds = (b_read(st + 1) if st + 1 < 18 else []) + (gs_read(st + 2) if st + 2 < 18 else [])
        mod = modulate(st + 1) if st + 1 < 18 else []
        b = BF + 20 * (st & 1)
        for j in range(5):
            k(f'v_mfma_f32_16x16x32_bf16 v[{ACC+4*j}:{ACC+4*j+3}], v[{b+4*j}:{b+4*j+3}], v[{A0+4*st}:{A0+4*st+3}], v[{ACC+4*j}:{ACC+4*j+3}]')
            for o in rds[3 * j:3 * j + 3]: k(o)
            if j == 3 and st + NPRE < 18: a_load(st + NPRE)
            for o in mod[4 * j:4 * j + 4]: k(o)
    k.stamp(4)
    code_prefetch(k, 'k2_kernel', 1, 60, 32, swave=3)
    srd_ws(k, 20, 16, 'Q')
    srd_ws(k, 24, 16, 'KV')
    srd_ws(k, 28, 16, 'KMAX')
    k(f'''s_lshl_b32 s11, s10, 4
v_and_b32 v8, 15, v1
v_add_u32 v8, s11, v8
v_lshrrev_b32 v9, 4, v1
v_mul_u32_u24 v10, 1152, v8
s_mul_i32 s12, s5, 144
v_add_u32 v10, s12, v10
v_lshl_add_u32 v11, v9, 3, v10
v_lshl_add_u32 v10, v9, 4, v10
v_cmp_gt_u32 vcc, 2, v9
v_mov_b32 v12, {OOB}
v_cndmask_b32 v11, v12, v11, vcc
s_mov_b32 s12, {fhex(QSCALE)}
s_mov_b32 s13, s12''')
    for b in range(2):
        for y in range(2):
            a = ACC + 8 * b + 4 * y
            k(f'''v_pk_mul_f32 v[{a}:{a+1}], v[{a}:{a+1}], s[12:13]
v_pk_mul_f32 v[{a+2}:{a+3}], v[{a+2}:{a+3}], s[12:13]
v_cvt_pk_bf16_f32 v{16+4*b+2*y}, v{a}, v{a+1}
v_cvt_pk_bf16_f32 v{17+4*b+2*y}, v{a+2}, v{a+3}''')
        k(f'buffer_store_dwordx4 v[{16+4*b}:{19+4*b}], v10, s[20:23], 0 offen offset:{64*b}')
    t = ACC + 16
    k(f'''v_pk_mul_f32 v[24:25], v[{t}:{t+1}], s[12:13]
v_pk_mul_f32 v[26:27], v[{t+2}:{t+3}], s[12:13]
v_cvt_pk_bf16_f32 v24, v24, v25
v_cvt_pk_bf16_f32 v25, v26, v27
buffer_store_dwordx2 v[24:25], v11, s[20:23], 0 offen offset:128
s_cmp_ge_u32 s5, 5
s_cbranch_scc1 L_k1_fin
v_cvt_pk_bf16_f32 v28, v{t}, v{t+1}
v_cvt_pk_bf16_f32 v29, v{t+2}, v{t+3}
v_lshrrev_b32 v32, 7, v8
v_mul_u32_u24 v32, 9472, v32
v_bfe_u32 v33, v8, 5, 2
v_mul_u32_u24 v13, 2240, v33
v_add_u32 v13, v13, v32
v_and_b32 v14, 31, v8
s_cmp_ge_u32 s5, 3
s_cbranch_scc1 L_k1_v
v_mul_f32 v30, v{t}, v{t}
v_fmac_f32 v30, v{t+1}, v{t+1}
v_fmac_f32 v30, v{t+2}, v{t+2}
v_fmac_f32 v30, v{t+3}, v{t+3}
s_cmp_eq_u32 s5, 2
s_cbranch_scc1 L_k1_k2''')
    xadd16(k, 30, 31)
    k(f'''v_lshl_add_u32 v15, v14, 4, v13
v_lshl_add_u32 v15, v9, 3, v15
s_lshl_b32 s12, s5, 9
s_sub_u32 s12, s12, 16
v_add_u32 v15, s12, v15
v_cndmask_b32 v15, v15, v12, vcc
buffer_store_dwordx2 v[28:29], v15, s[24:27], 0 offen
s_branch L_k1_km
L_k1_k2:
v_lshl_add_u32 v15, v14, 4, v32
v_lshl_add_u32 v15, v33, 2, v15
v_add_u32 v15, 8960, v15
v_cmp_eq_u32 vcc, 2, v9
v_cndmask_b32 v15, v12, v15, vcc
buffer_store_dword v28, v15, s[24:27], 0 offen
L_k1_km:''')
    for r in (8, 4, 2, 1):
        k(f'v_max_f32_dpp v30, v30, v30 row_ror:{r} row_mask:0xf bank_mask:0xf')
    k(f'''s_lshl_b32 s12, s10, 4
s_lshl_b32 s13, s5, 2
s_add_u32 s12, s12, s13
v_cmp_eq_u32 vcc, 32, v1
v_cndmask_b32 v15, v12, 0, vcc
buffer_store_dword v30, v15, s[28:31], s12 offen
s_cmp_lg_u32 s5, 2
s_cbranch_scc1 L_k1_fin
L_k1_v:
v_bfe_u32 v14, v8, 4, 1
v_mul_u32_u24 v14, 608, v14
v_add_u32 v13, v13, v14
v_bfe_u32 v14, v8, 2, 1
v_mul_u32_u24 v14, 304, v14
v_add_u32 v13, v13, v14
v_and_b32 v14, 3, v8
v_lshl_add_u32 v13, v14, 1, v13
v_bfe_u32 v14, v8, 3, 1
v_lshl_add_u32 v13, v14, 3, v13
s_cmp_eq_u32 s5, 2
s_cbranch_scc1 L_k1_v2
v_lshl_add_u32 v13, v9, 7, v13
s_sub_u32 s12, s5, 3
s_lshl_b32 s12, s12, 6
s_add_u32 s12, s12, {1024-256}
v_add_u32 v13, s12, v13
v_cmp_le_u32 vcc, 2, v9
v_cndmask_b32 v13, v12, v13, vcc
buffer_store_short v28, v13, s[24:27], 0 offen
buffer_store_short_d16_hi v28, v13, s[24:27], 0 offen offset:16
buffer_store_short v29, v13, s[24:27], 0 offen offset:32
buffer_store_short_d16_hi v29, v13, s[24:27], 0 offen offset:48
s_branch L_k1_fin
L_k1_v2:
v_cmp_eq_u32 vcc, 3, v9
v_cndmask_b32 v13, v12, v13, vcc
buffer_store_short v28, v13, s[24:27], 0 offen offset:{1024+256}
buffer_store_short_d16_hi v28, v13, s[24:27], 0 offen offset:{1024+272}
L_k1_fin:
;STAMP 5
L_k1_end:
s_endpgm''')

    def fin():
        k(f'''s_cmp_ge_u32 s2, 4
s_cbranch_scc1 L_k1_end
v_and_b32 v0, 255, v0
v_mov_b32 v12, {OOB}
s_movk_i32 s8, {3456*4}
s_movk_i32 s9, {2*3456*4}''')
        srd_ws(k, 20, 16, 'MODP')
        srd_ws(k, 24, 16, 'MODF')
        srd_ws(k, 28, 16, 'MODB')
        k(f'''s_mul_i32 s12, s2, 216
v_add_u32 v4, s12, v0
v_lshlrev_b32 v5, 4, v4
v_cmp_gt_u32 vcc, 216, v0
v_cndmask_b32 v5, v12, v5, vcc
buffer_load_dwordx4 v[32:35], v5, s[20:23], 0 offen
buffer_load_dwordx4 v[36:39], v5, s[20:23], s8 offen
buffer_load_dwordx4 v[40:43], v5, s[20:23], s9 offen
v_subrev_u32 v6, 144, v4
v_subrev_u32 v7, 576, v4
v_min_u32 v6, v6, v7
v_cmp_gt_u32 vcc, 144, v6
v_cndmask_b32 v44, 0, 1.0, vcc
s_waitcnt vmcnt(0)
v_pk_add_f32 v[32:33], v[32:33], v[36:37]
v_pk_add_f32 v[34:35], v[34:35], v[38:39]
v_pk_add_f32 v[32:33], v[32:33], v[40:41]
v_pk_add_f32 v[34:35], v[34:35], v[42:43]''')
        round_bf16(k, 32, 33, 36); round_bf16(k, 34, 35, 37)
        k('''v_pk_add_f32 v[32:33], v[32:33], v[44:45] op_sel_hi:[1,0]
v_pk_add_f32 v[34:35], v[34:35], v[44:45] op_sel_hi:[1,0]''')
        round_bf16(k, 32, 33, 36); round_bf16(k, 34, 35, 37)
        k(f'''buffer_store_dwordx4 v[32:35], v5, s[24:27], 0 offen
v_lshlrev_b32 v6, 3, v7
v_subrev_u32 v13, 432, v4
v_lshlrev_b32 v14, 3, v13
v_add_u32 v14, 1152, v14
v_cmp_gt_u32 vcc, 144, v13
v_cndmask_b32 v6, v6, v14, vcc
v_cmp_gt_u32 vcc, 288, v13
v_cndmask_b32 v6, v12, v6, vcc
v_cmp_gt_u32 vcc, 216, v0
v_cndmask_b32 v6, v12, v6, vcc
buffer_store_dwordx2 v[36:37], v6, s[28:31], 0 offen
''')
    skinny_loader(k, 'WQKV', 90, (20, 40, 60, 80, 92), 5, 'L_k1_ld', fin)
    return k, f'; @launch kernel=k1_kernel grid=(256,1,1) block=(512,1,1) lds={LB+4608}'
```

```python
from dsl import K
from common import *

GL = 9472
RST = False


def T(t): return (t >> 2) * GL + (t & 3) * 2240


Q1 = (8, 12); QZ = (16, 28); O = (40, 56); S0 = (72, 104); P = (136, 144)
KA, KB, VA = 152, 160, 168


def q2(h, j):
    return QZ[h] + (2, 8, 0, 6)[j & 3]


def mf(d, a, b, c):
    cc = '0' if c is None else f'v[{c}:{c+15}]'
    return f'v_mfma_f32_32x32x16_bf16 v[{d}:{d+15}], v[{a}:{a+3}], v[{b}:{b+3}], {cc}'


def fast_std(k, rdV, opt):
    k(f'''ds_read_b128 v[{KA}:{KA+3}], v2 offset:{T(0)}
ds_read_b128 v[{KB}:{KB+3}], v4
ds_read_b128 v[{KA+4}:{KA+7}], v2 offset:{T(1)}''')
    rdV(T(0), VA); rdV(T(0) + 608, VA + 4)
    k(f'''s_waitcnt lgkmcnt(3)
{mf(S0[0], KA, Q1[0], None)}
{mf(S0[1], KA, Q1[1], None)}
{mf(S0[0], KB, q2(0, 0), S0[0])}
{mf(S0[1], KB, q2(1, 0), S0[1])}
s_mov_b32 s7, 0
s_waitcnt lgkmcnt(0)
s_nop 7
.p2align 6
L_k2_loop:''')
    for i in range(8):
        p = i & 1; n = p ^ 1
        kb = KB + 4 * ((((i + 1) >> 2)) & 1)
        for h in range(2):
            Sc = S0[h] + 16 * p; Sn = S0[h] + 16 * n; pp = P[h]
            ex = lambda a, b: k('\n'.join((f'v_exp_f32 v{Sc+j}, v{Sc+j}' if 'noexp' not in opt else f's_nop 0\ns_nop 0') for j in range(a, b)))
            cv = lambda a, b: k('\n'.join(f'v_cvt_pk_bf16_f32 v{pp+j}, v{Sc+2*j}, v{Sc+2*j+1}' for j in range(a, b)))
            k(mf(Sn, KA + 4 * n, Q1[h], None))
            if h == 0: k(f'ds_read_b128 v[{KA+4*p}:{KA+4*p+3}], v2 offset:{T(i+2)}')
            ex(0, 4)
            if h == 0:
                if 'nopv' not in opt: k(mf(O[1], VA + 8 * n + 4, P[1] + 4, O[1]))
                rdV(T(i + 1), VA + 8 * n)
            else:
                if 'nopv' not in opt: k(mf(O[0], VA + 8 * p + 4, P[0] + 4, O[0]))
            ex(4, 8); cv(0, 2)
            if 'noqk2' not in opt: k(mf(Sn, kb, q2(h, i + 1), Sn))
            if h == 0: rdV(T(i + 1) + 608, VA + 8 * n + 4)
            cv(2, 4); ex(8, 12)
            if 'nopv' not in opt: k(mf(O[h], VA + 8 * p, pp, O[h]))
            if h == 0 and i == 0: k(f'ds_read_b128 v[{KB+4}:{KB+7}], v4 offset:{GL}')
            if h == 0 and i == 4: k(f'ds_read_b128 v[{KB}:{KB+3}], v4 offset:{2*GL}')
            if h == 1:
                k('s_waitcnt lgkmcnt(0)')
                if i == 7:
                    k(f'''s_cmp_lg_u32 s7, 0
s_cbranch_scc1 L_k2_nob
s_barrier
L_k2_nob:
s_add_u32 s7, s7, 1
s_cmp_lt_u32 s7, 8''')
            ex(12, 16); cv(4, 8)
    k(f'''v_add_u32 v2, {2*GL}, v2
v_add_u32 v3, {2*GL}, v3
v_add_u32 v4, {2*GL}, v4
s_cbranch_scc1 L_k2_loop
{mf(O[1], VA + 8 + 4, P[1] + 4, O[1])}''')


QP = 184


def fast_2b(k, rdV):
    SB = 72

    def m2b(n, j, kb):
        a = kb + 2 * ((j >> 1) & 1); b = QP + 2 * (j & 1); d = SB + 32 * n
        return f'v_mfma_f32_32x32x4_2b_bf16 v[{d}:{d+31}], v[{a}:{a+1}], v[{b}:{b+1}], 0'
    k(f'''v_mov_b32 v{QP}, v{QZ[0]+2}
v_mov_b32 v{QP+3}, v{QZ[1]+2}
v_mov_b32 v{QP+1}, 0
v_mov_b32 v{QP+2}, 0
ds_read_b128 v[{KB}:{KB+3}], v4
ds_read_b128 v[{KA}:{KA+3}], v2 offset:{T(0)}
v_permlane32_swap_b32 v{QP}, v{QP+3}
ds_read_b128 v[{KA+4}:{KA+7}], v2 offset:{T(1)}
v_mov_b32 v{QP+3}, v{QP}''')
    rdV(T(0), VA); rdV(T(0) + 608, VA + 4)
    k(f'''s_waitcnt lgkmcnt(3)
{m2b(0, 0, KB)}
{mf(SB, KA, Q1[0], SB)}
{mf(SB + 16, KA, Q1[1], SB + 16)}
s_mov_b32 s7, 0
s_waitcnt lgkmcnt(0)
s_nop 9
.p2align 6
L_k2_loop:''')
    for i in range(8):
        p = i & 1; n = p ^ 1
        kb = KB + 4 * ((((i + 1) >> 2)) & 1)
        Sn = SB + 32 * n

        def ex(h, a, b): k('\n'.join(f'v_exp_f32 v{SB+32*p+16*h+j}, v{SB+32*p+16*h+j}' for j in range(a, b)))
        def cv(h, a, b): k('\n'.join(f'v_cvt_pk_bf16_f32 v{P[h]+j}, v{SB+32*p+16*h+2*j}, v{SB+32*p+16*h+2*j+1}' for j in range(a, b)))
        k(m2b(n, i + 1, kb))
        k(f'ds_read_b128 v[{KA+4*p}:{KA+4*p+3}], v2 offset:{T(i+2)}')
        ex(0, 0, 7)
        k(mf(O[1], VA + 8 * n + 4, P[1] + 4, O[1]))
        rdV(T(i + 1), VA + 8 * n)
        ex(0, 7, 8); cv(0, 0, 4); ex(0, 8, 10)
        k(mf(O[0], VA + 8 * p, P[0], O[0]))
        rdV(T(i + 1) + 608, VA + 8 * n + 4)
        ex(0, 10, 14)
        k(mf(Sn, KA + 4 * n, Q1[0], Sn))
        if i == 0: k(f'ds_read_b128 v[{KB+4}:{KB+7}], v4 offset:{GL}')
        if i == 4: k(f'ds_read_b128 v[{KB}:{KB+3}], v4 offset:{2*GL}')
        ex(0, 14, 16); cv(0, 4, 8)
        k(mf(Sn + 16, KA + 4 * n, Q1[1], Sn + 16))
        ex(1, 0, 5)
        k(mf(O[0], VA + 8 * p + 4, P[0] + 4, O[0]))
        ex(1, 5, 8); cv(1, 0, 4); ex(1, 8, 10)
        k(mf(O[1], VA + 8 * p, P[1], O[1]))
        k('s_waitcnt lgkmcnt(0)')
        if i == 7:
            if RST: k(';RSTAMP s7')
            k(f'''s_cmp_lg_u32 s7, 0
s_cbranch_scc1 L_k2_nob
s_barrier
L_k2_nob:
s_add_u32 s7, s7, 1
s_cmp_lt_u32 s7, 8''')
        ex(1, 10, 16); cv(1, 4, 8)
    k(f'''v_add_u32 v2, {2*GL}, v2
v_add_u32 v3, {2*GL}, v3
v_add_u32 v4, {2*GL}, v4
s_cbranch_scc1 L_k2_loop
{mf(O[1], VA + 8 + 4, P[1] + 4, O[1])}''')


def gen_k2(helpers=None, opt=('late', '2b', 'mask')):
    k = K('k2_kernel', vgpr=192, sgpr=64)
    mask = 'mask' in opt

    def rdV(t, dst):
        if mask: k('s_mov_b64 exec, s[12:13]')
        k(f'ds_read_b128 v[{dst}:{dst+3}], v3 offset:{t}')
        if mask: k('s_mov_b64 exec, -1')
    k(f'''s_cmp_ge_u32 s2, 256
s_cbranch_scc1 L_k2_end
s_load_dwordx2 s[16:17], s[0:1], {A_WS}''')
    waveid(k, 3, 1)
    k('''v_and_b32 v1, 63, v0
v_lshlrev_b32 v2, 4, v1
s_cmp_ge_u32 s3, 4
s_cbranch_scc1 L_k2_loader
s_lshr_b32 s4, s2, 2
s_and_b32 s5, s2, 3
s_lshl_b32 s5, s5, 2
s_add_u32 s5, s5, s3
s_lshl_b32 s5, s5, 1''')
    k(f'''v_and_b32 v5, 31, v1
v_lshrrev_b32 v6, 5, v1
s_lshl_b32 s6, s4, 5
v_add_u32 v7, s6, v5
v_mul_u32_u24 v7, 1152, v7
s_mul_i32 s6, s5, 36
v_lshl_add_u32 v3, v6, 4, v7
v_cmp_eq_u32 vcc, 0, v6
v_mov_b32 v4, {OOB}
v_cndmask_b32 v7, v4, v7, vcc
v_lshlrev_b32 v4, 5, v1
s_waitcnt lgkmcnt(0)''')
    k.stamp(2)
    srd_ws(k, 20, 16, 'Q')
    k(f'''buffer_load_dwordx4 v[{Q1[0]}:{Q1[0]+3}], v3, s[20:23], s6 offen
buffer_load_dwordx4 v[{Q1[1]}:{Q1[1]+3}], v3, s[20:23], s6 offen offset:36
buffer_load_dword v{QZ[0]+2}, v7, s[20:23], s6 offen offset:32
buffer_load_dword v{QZ[1]+2}, v7, s[20:23], s6 offen offset:68''')
    srd_ws(k, 24, 16, 'KMAX')
    k(f'''buffer_load_dwordx4 v[72:75], v4, s[24:27], 0 offen
buffer_load_dwordx4 v[76:79], v4, s[24:27], 0 offen offset:16
v_mul_u32_u24 v3, 304, v6
v_lshl_add_u32 v3, v5, 4, v3
v_add_u32 v3, 1024, v3
v_lshlrev_b32 v4, 4, v5
v_add_u32 v4, 8960, v4
s_mov_b32 s12, 0x7ffff
s_mov_b32 s13, 0x7ffff''')
    srd_ws(k, 28, 16, 'O')
    for h in range(2):
        for r in range(12):
            if r not in (2, 9): k(f'v_mov_b32 v{QZ[h]+r}, 0')
        for r in range(16): k(f'v_mov_b32 v{O[h]+r}, 0')
    for r in range(4): k(f'v_mov_b32 v{P[1]+4+r}, 0')
    for r in range(16 if mask else 4): k(f'v_mov_b32 v{VA+15-r}, 0')
    k('s_waitcnt vmcnt(0)')
    k.stamp(3)
    k(f'''v_mov_b32 v{QZ[0]+9}, v{QZ[0]+2}
v_mov_b32 v{QZ[1]+9}, v{QZ[1]+2}
v_max_f32 v72, v72, v76
v_max_f32 v73, v73, v77
v_max_f32 v74, v74, v78''')
    for h in range(2):
        for j in range(4): unpack(k, 80 + 10 * h + 2 * j, Q1[h] + j)
        unpack(k, 88 + 10 * h, QZ[h] + 2)
    for r in (8, 4, 2, 1):
        for j in range(3): k(f'v_max_f32_dpp v{72+j}, v{72+j}, v{72+j} row_ror:{r} row_mask:0xf bank_mask:0xf')
    k('''v_pk_mul_f32 v[100:101], v[80:81], v[80:81]
v_pk_mul_f32 v[102:103], v[90:91], v[90:91]''')
    for j in range(1, 5):
        k(f'''v_pk_fma_f32 v[100:101], v[{80+2*j}:{81+2*j}], v[{80+2*j}:{81+2*j}], v[100:101]
v_pk_fma_f32 v[102:103], v[{90+2*j}:{91+2*j}], v[{90+2*j}:{91+2*j}], v[102:103]''')
    k('''v_mov_b32 v76, v72
v_mov_b32 v77, v73
v_mov_b32 v78, v74
v_add_f32 v75, v100, v101
v_add_f32 v79, v102, v103
v_permlane16_swap_b32 v72, v76
v_permlane16_swap_b32 v73, v77
v_permlane16_swap_b32 v74, v78
v_permlane32_swap_b32 v75, v79
v_max_f32 v72, v72, v76
v_max_f32 v73, v73, v77
v_max_f32 v74, v74, v78
v_add_f32 v75, v75, v79
v_mov_b32 v76, v72
v_mov_b32 v77, v73
v_mov_b32 v78, v74
v_permlane32_swap_b32 v72, v76
v_permlane32_swap_b32 v73, v77
v_permlane32_swap_b32 v74, v78
v_max_f32 v72, v72, v76
v_max_f32 v73, v73, v77
v_max_f32 v74, v74, v78
v_add_f32 v72, v72, v73
v_add_f32 v72, v72, v74''')
    k(f'''v_mul_f32 v72, v72, v75
s_mov_b32 s6, {fhex(64.0*64.0/1.03)}
v_cmp_nge_f32 vcc, s6, v72''')
    k.stamp(4)
    k('''s_barrier
s_cbranch_vccnz L_k2_slow''')
    k.stamp(0)
    if '2b' in opt:
        fast_2b(k, rdV)
    else:
        fast_std(k, rdV, opt)
    k('L_k2_epi:')
    k.stamp(1)
    code_prefetch(k, 'k3_kernel', 1, 90, 32, swave=3)
    k(f'''v_bfe_u32 v74, v1, 4, 1
s_lshl_b32 s6, s4, 1
v_add_u32 v74, s6, v74
v_mul_u32_u24 v74, {18*1024}, v74
v_and_b32 v75, 15, v1
v_lshl_add_u32 v74, v75, 4, v74
v_lshl_add_u32 v75, v6, 8, v74
s_lshl_b32 s6, s5, 9
s_lshr_b32 s7, s5, 2
s_lshl_b32 s7, s7, 8
s_and_b32 s8, s5, 3
s_lshl_b32 s8, s8, 2
s_add_u32 s7, s7, s8
s_add_u32 s7, s7, {16*1024}
v_cmp_eq_u32 vcc, 0, v6
v_mov_b32 v76, {OOB}
v_cndmask_b32 v74, v76, v74, vcc''')
    for h in range(2):
        k(f'''v_mov_b32 v72, v{O[h]+10}
v_mov_b32 v73, v{O[h]+10}
v_permlane32_swap_b32 v72, v73
v_rcp_f32 v72, v72''')
        for j in range(5):
            d = 80 + 4 * h + j if j < 4 else 88 + h
            k(f'''v_pk_mul_f32 v[{O[h]+2*j}:{O[h]+2*j+1}], v[{O[h]+2*j}:{O[h]+2*j+1}], v[72:73] op_sel_hi:[1,0]
v_cvt_pk_bf16_f32 v{d}, v{O[h]+2*j}, v{O[h]+2*j+1}''')
        k(f'buffer_store_dwordx4 v[{80+4*h}:{83+4*h}], v75, s[28:31], s6 offen offset:{512*h} ;plain')
    k('''buffer_store_dwordx2 v[88:89], v74, s[28:31], s7 offen ;plain
s_endpgm''')
    M, AL, TT = 184, 186, 188
    k(f'''L_k2_slow:
s_barrier
v_mov_b32 v{M}, {fhex(-3.0e38)}
v_mov_b32 v{M+1}, {fhex(-3.0e38)}
s_mov_b32 s7, 0
L_k2_sl:
ds_read_b128 v[{KA}:{KA+3}], v2
ds_read_b32 v{KB}, v4
ds_read_b128 v[{VA}:{VA+3}], v3
ds_read_b128 v[{VA+4}:{VA+7}], v3 offset:608
v_mov_b32 v{KB+1}, 0
v_mov_b32 v{KB+2}, 0
v_mov_b32 v{KB+3}, 0
s_waitcnt lgkmcnt(0)''')
    for h in range(2):
        s = S0[h]
        k(f'''{mf(s, KA, Q1[h], None)}
{mf(s, KB, q2(h, 0), s)}
v_max3_f32 v{TT}, v{s}, v{s+1}, v{s+2}''')
        for j in range(3, 15, 2): k(f'v_max3_f32 v{TT}, v{TT}, v{s+j}, v{s+j+1}')
        k(f'v_max_f32 v{TT}, v{TT}, v{s+15}')
        xadd32(k, TT, TT + 1, 'max')
        k(f'''v_max_f32 v{TT}, v{TT}, v{M+h}
v_sub_f32 v{AL}, v{M+h}, v{TT}
v_exp_f32 v{AL}, v{AL}
v_mov_b32 v{M+h}, v{TT}''')
        for j in range(16):
            k(f'''v_sub_f32 v{s+j}, v{s+j}, v{TT}
v_exp_f32 v{s+j}, v{s+j}
v_mul_f32 v{O[h]+j}, v{O[h]+j}, v{AL}''')
        for j in range(8): k(f'v_cvt_pk_bf16_f32 v{P[h]+j}, v{s+2*j}, v{s+2*j+1}')
        k(f'''{mf(O[h], VA, P[h], O[h])}
{mf(O[h], VA + 4, P[h] + 4, O[h])}''')
    k(f'''s_add_u32 s7, s7, 1
s_and_b32 s8, s7, 3
s_cmp_eq_u32 s8, 0
s_cselect_b32 s8, 512, 0
s_add_u32 s8, s8, 2240
s_cmp_eq_u32 s8, {2240+512}
s_cselect_b32 s9, {GL-12}, 4
v_add_u32 v2, s8, v2
v_add_u32 v3, s8, v3
v_add_u32 v4, s9, v4
s_cmp_lt_u32 s7, 64
s_cbranch_scc1 L_k2_sl
s_branch L_k2_epi''')
    k('''L_k2_loader:
s_sub_u32 s3, s3, 4
s_waitcnt lgkmcnt(0)''')
    srd_ws(k, 20, 16, 'KV')
    k('s_mul_i32 s4, s3, 7168')
    for j in range(7):
        if j % 4 == 0:
            if j: k('s_add_u32 s4, s4, 4096')
            k('s_mov_b32 m0, s4')
        k(f'buffer_load_dwordx4 v2, s[20:23], s4 offen offset:{(j%4)*1024} lds')
    k(f'''s_mul_i32 s4, s3, {30*1024}
s_add_u32 s4, s4, {28*1024}''')
    for j in range(30):
        if j % 4 == 0:
            if j: k('s_add_u32 s4, s4, 4096')
            k('s_mov_b32 m0, s4')
        k(f'buffer_load_dwordx4 v2, s[20:23], s4 offen offset:{(j%4)*1024} lds')
        if j == 3:
            k('s_waitcnt vmcnt(4)')
            k.stamp(0)
            k('s_barrier')
    def sync(n):
        k(f's_waitcnt vmcnt({n})')
        k.stamp(1)
        k('s_barrier')
    if 'prio2' in opt: k('s_setprio 3')
    if helpers:
        if 'late' in opt:
            sync(0); helpers(k, lambda n: k('s_setprio 0') if 'prio2' in opt else None)
        else:
            def sync2(n):
                if 'prio2' in opt: k('s_setprio 0')
                sync(n)
            helpers(k, sync2)
    else: sync(0)
    k('''L_k2_end:
s_endpgm''')
    return k, '; @launch kernel=k2_kernel grid=(256,1,1) block=(512,1,1) lds=163840'
```

```python
from dsl import K
from common import *
from k1 import map_8x4_32x8


def lane_consts(k):
    k('''v_and_b32 v1, 63, v0
v_lshlrev_b32 v2, 4, v1
v_and_b32 v8, 15, v1
v_lshrrev_b32 v9, 4, v1
v_and_b32 v5, 7, v1
v_lshlrev_b32 v5, 4, v5
v_lshl_add_u32 v5, v9, 7, v5''')


def epi_addr(k, stb16, sbn):
    k(f'''s_lshl_b32 s40, s{stb16}, 4
v_add_u32 v8, s40, v8
v_mov_b32 v7, {OOB}
v_cmp_gt_u32 vcc, 2, v9
v_mul_u32_u24 v10, 1152, v8
s_mul_i32 s40, s{sbn}, 144
v_add_u32 v10, s40, v10
v_lshl_add_u32 v11, v9, 3, v10
v_add_u32 v11, 128, v11
v_cndmask_b32 v11, v7, v11, vcc
v_lshl_add_u32 v10, v9, 4, v10
v_lshrrev_b32 v12, 5, v8
v_mul_u32_u24 v12, 36864, v12
v_and_b32 v13, 31, v8
v_lshl_add_u32 v12, v13, 4, v12
s_mul_i32 s40, s{sbn}, 4608
v_add_u32 v12, s40, v12
v_lshl_add_u32 v13, v9, 3, v12
v_add_u32 v13, 4096, v13
v_cndmask_b32 v13, v7, v13, vcc
v_lshl_add_u32 v12, v9, 9, v12
s_mul_i32 s40, s{sbn}, 288
v_lshlrev_b32 v14, 5, v9
v_add_u32 v14, s40, v14
v_lshlrev_b32 v15, 4, v9
v_add_u32 v15, s40, v15
v_add_u32 v15, 256, v15
v_cndmask_b32 v15, v7, v15, vcc''')


def load_modvec(k, r, srd, soff):
    k(f'''buffer_load_dwordx4 v[{r}:{r+3}], v14, s[{srd}:{srd+3}], {soff} offen
buffer_load_dwordx4 v[{r+4}:{r+7}], v14, s[{srd}:{srd+3}], {soff} offen offset:16
buffer_load_dwordx4 v[{r+8}:{r+11}], v14, s[{srd}:{srd+3}], {soff} offen offset:128
buffer_load_dwordx4 v[{r+12}:{r+15}], v14, s[{srd}:{srd+3}], {soff} offen offset:144
buffer_load_dwordx4 v[{r+16}:{r+19}], v15, s[{srd}:{srd+3}], {soff} offen''')


def skinny_loader(k, region, nchunks, bounds, sbn, label, tail=None):
    k(f'''{label}:
s_sub_u32 s3, s3, 4
s_lshl_b32 s13, s3, 10
s_mul_i32 s12, s{sbn}, {nchunks*1024}
s_waitcnt lgkmcnt(0)''')
    srd_ws(k, 28, 16, region)
    n = (nchunks + 3) // 4
    marks = [b // 4 for b in bounds]
    issued = 0; pend = list(marks)
    AHEAD = 6
    for j in range(n):
        if j == n - 1 and nchunks % 4: k(f's_min_u32 s13, s13, {(nchunks-1)*1024}')
        k(f'''s_mov_b32 m0, s13
s_add_u32 s14, s13, s12
buffer_load_dwordx4 v2, s[28:31], s14 offen lds
s_add_u32 s13, s13, 4096''')
        issued += 1
        while pend and ((len(pend) == len(marks) and issued - pend[0] >= AHEAD) or issued == n):
            k(f's_waitcnt vmcnt({issued-pend[0]})\ns_barrier'); pend.pop(0)
    if tail: tail()
    k('s_endpgm')


def modvec_load(k, srd, secs, sbn, vaddr, vdst):
    k(f'''v_and_b32 v{vaddr}, 31, v1
v_lshrrev_b32 v{vdst}, 5, v1
v_mul_u32_u24 v{vdst}, {(secs[1]-secs[0])*2304}, v{vdst}
v_cmp_gt_u32 vcc, 18, v{vaddr}
v_lshl_add_u32 v{vaddr}, v{vaddr}, 4, v{vdst}
v_cndmask_b32 v{vaddr}, v7, v{vaddr}, vcc
s_mul_i32 s41, s{sbn}, 288
s_add_u32 s41, s41, {secs[0]*2304}
buffer_load_dwordx4 v[{vdst}:{vdst+3}], v{vaddr}, s[{srd}:{srd+3}], s41 offen''')


def modvec_spread(k, vsrc, lbase, dsts, vt):
    k(f'''s_lshl_b32 s41, s3, 10
s_add_u32 s41, s41, {lbase}
v_add_u32 v{vt}, s41, v2
ds_write_b128 v{vt}, v[{vsrc}:{vsrc+3}]
v_lshlrev_b32 v{vt}, 5, v9
v_add_u32 v{vt}, s41, v{vt}
v_lshlrev_b32 v{vt+1}, 4, v9
v_add_u32 v{vt+1}, s41, v{vt+1}
s_waitcnt lgkmcnt(0)''')
    for h, r in enumerate(dsts):
        k(f'''ds_read_b128 v[{r}:{r+3}], v{vt} offset:{512*h}
ds_read_b128 v[{r+4}:{r+7}], v{vt} offset:{512*h+16}
ds_read_b128 v[{r+8}:{r+11}], v{vt} offset:{512*h+128}
ds_read_b128 v[{r+12}:{r+15}], v{vt} offset:{512*h+144}
ds_read_b128 v[{r+16}:{r+19}], v{vt+1} offset:{512*h+256}''')


def gen_k3():
    k = K('k3_kernel', vgpr=232, sgpr=64)
    from k4 import VM
    vm = VM(k)
    A0, ACC, BF, XR, GA, G2, MV = 64, 40, 140, 20, 184, 208, 32
    LB = 81 * 1024
    k(f'''s_cmp_ge_u32 s2, 256
s_cbranch_scc1 L_k3_end
s_load_dwordx2 s[16:17], s[0:1], {A_WS}
s_load_dwordx2 s[18:19], s[0:1], {A_X}''')
    waveid(k, 3, 1)
    map_8x4_32x8(k, 4, 5, 6)
    lane_consts(k)
    k('''s_cmp_ge_u32 s3, 4
s_cbranch_scc1 L_k3_ld
s_lshl_b32 s10, s4, 2
s_add_u32 s10, s10, s3''')
    k(f'''s_mul_i32 s11, s10, {18*1024}
s_waitcnt lgkmcnt(0)''')
    srd_ws(k, 24, 16, 'O')

    def a_load(st):
        if st % 4 == 0 and st: k('s_add_u32 s11, s11, 4096')
        vm.op(f'buffer_load_dwordx4 v[{A0+4*st}:{A0+4*st+3}], v2, s[24:27], s11 offen offset:{(st%4)*1024}', f'A{st}')
    NPRE = 11
    for st in range(NPRE): a_load(st)
    epi_addr(k, 10, 5)
    srd_ws(k, 32, 16, 'MODF')
    srd_in(k, 36, 18, S * D * 2)
    for j in range(20): k(f'v_mov_b32 v{ACC+j}, 0')
    k('''v_add_u32 v3, 0x10000, v2
v_add_u32 v4, 0x10000, v5''')
    k.stamp(0)

    def b_read(st):
        b = BF + 20 * (st & 1)
        o = []
        for j in range(5):
            off = st * 4608 + j * 1024
            lo, hi = (2, 3) if j < 4 else (5, 4)
            o.append(f'ds_read_b128 v[{b+4*j}:{b+4*j+3}], v{lo} offset:{off}' if off < 65536 else
                     f'ds_read_b128 v[{b+4*j}:{b+4*j+3}], v{hi} offset:{off-65536}')
        return o
    bar = (0, 4, 8, 12, 16)
    k('s_barrier')
    k.stamp(2)
    for o in b_read(0): k(o)
    for st in range(18):
        if st + 1 in bar:
            k('s_barrier')
        vm.wait(f'A{st}')
        k('s_waitcnt lgkmcnt(0)')
        rds = b_read(st + 1) if st + 1 < 18 else []
        b = BF + 20 * (st & 1)
        for j in range(5):
            k(f'v_mfma_f32_16x16x32_bf16 v[{ACC+4*j}:{ACC+4*j+3}], v[{b+4*j}:{b+4*j+3}], v[{A0+4*st}:{A0+4*st+3}], v[{ACC+4*j}:{ACC+4*j+3}]')
            if rds: k(rds[j])
        if st + NPRE < 18: a_load(st + NPRE)
        if st == 3:
            vm.op(f'buffer_load_dwordx4 v[{XR}:{XR+3}], v10, s[36:39], 0 offen', 'x')
            vm.op(f'buffer_load_dwordx4 v[{XR+4}:{XR+7}], v10, s[36:39], 0 offen offset:64', 'x')
            vm.op(f'buffer_load_dwordx2 v[{XR+8}:{XR+9}], v11, s[36:39], 0 offen', 'x')
            modvec_load(k, 32, (2, 4), 5, 36, MV); vm.log.append('mv')
    k.stamp(1)
    k('s_waitcnt vmcnt(0)')
    k.stamp(3)
    modvec_spread(k, MV, LB, (GA, G2), 36)
    code_prefetch(k, 'k4_kernel', 1, 108, 44, swave=3)
    srd_ws(k, 24, 16, 'X1')
    srd_ws(k, 28, 16, 'XG')
    srd_ws(k, 32, 16, 'ST1')
    U = 64
    for j in range(10): unpack(k, U + 2 * j, XR + j)
    k(f'''v_cmp_gt_u32 vcc, 2, v9
s_waitcnt lgkmcnt(5)
v_cndmask_b32 v{GA+16}, 0, v{GA+16}, vcc
v_cndmask_b32 v{GA+17}, 0, v{GA+17}, vcc
v_cndmask_b32 v{GA+18}, 0, v{GA+18}, vcc
v_cndmask_b32 v{GA+19}, 0, v{GA+19}, vcc''')
    for j in range(10):
        k(f'v_pk_fma_f32 v[{U+2*j}:{U+2*j+1}], v[{ACC+2*j}:{ACC+2*j+1}], v[{GA+2*j}:{GA+2*j+1}], v[{U+2*j}:{U+2*j+1}]')
    for j in range(10): k(f'v_cvt_pk_bf16_f32 v{84+j}, v{U+2*j}, v{U+2*j+1}')
    k('''buffer_store_dwordx4 v[84:87], v12, s[24:27], 0 offen
buffer_store_dwordx4 v[88:91], v12, s[24:27], 0 offen offset:2048
buffer_store_dwordx2 v[92:93], v13, s[24:27], 0 offen''')
    for j in range(10): unpack(k, U + 2 * j, 84 + j)
    k(f'''v_pk_add_f32 v[16:17], v[{U}:{U+1}], v[{U+2}:{U+3}]
v_pk_mul_f32 v[18:19], v[{U}:{U+1}], v[{U}:{U+1}]
v_pk_fma_f32 v[18:19], v[{U+2}:{U+3}], v[{U+2}:{U+3}], v[18:19]''')
    for j in range(2, 10):
        k(f'''v_pk_add_f32 v[16:17], v[16:17], v[{U+2*j}:{U+2*j+1}]
v_pk_fma_f32 v[18:19], v[{U+2*j}:{U+2*j+1}], v[{U+2*j}:{U+2*j+1}], v[18:19]''')
    k('s_waitcnt lgkmcnt(0)')
    for j in range(10):
        k(f'''v_pk_mul_f32 v[{U+2*j}:{U+2*j+1}], v[{U+2*j}:{U+2*j+1}], v[{G2+2*j}:{G2+2*j+1}]
v_cvt_pk_bf16_f32 v{96+j}, v{U+2*j}, v{U+2*j+1}''')
    k('''buffer_store_dwordx4 v[96:99], v12, s[28:31], 0 offen
buffer_store_dwordx4 v[100:103], v12, s[28:31], 0 offen offset:2048
buffer_store_dwordx2 v[104:105], v13, s[28:31], 0 offen
v_add_f32 v16, v16, v17
v_add_f32 v17, v18, v19''')
    xadd16(k, 16, 18); xadd16(k, 17, 19); xadd32(k, 16, 18); xadd32(k, 17, 19)
    k.stamp(6)
    k('''v_lshlrev_b32 v18, 6, v8
v_cmp_eq_u32 vcc, 0, v9
v_cndmask_b32 v18, v7, v18, vcc
s_lshl_b32 s11, s5, 3
buffer_store_dwordx2 v[16:17], v18, s[32:35], s11 offen
L_k3_end:
s_endpgm''')
    skinny_loader(k, 'WO', 81, (20, 36, 56, 72, 84), 5, 'L_k3_ld')
    return k, f'; @launch kernel=k3_kernel grid=(256,1,1) block=(512,1,1) lds={LB+4096}'
```

```python
from dsl import K
from common import *
import math

LOG2E = 1.4426950408889634
GA_ = -2.0 * LOG2E * math.sqrt(2.0 / math.pi)
GB_ = GA_ * 0.044715


def map_8x4_16x16(k, sbm, sbn, t):
    k(f'''s_and_b32 s{t}, s2, 7
s_lshr_b32 s{t+1}, s2, 3
s_and_b32 s{sbm}, s{t}, 1
s_lshl_b32 s{sbm}, s{sbm}, 3
s_and_b32 s{sbn}, s{t+1}, 7
s_add_u32 s{sbm}, s{sbm}, s{sbn}
s_lshr_b32 s{sbn}, s{t}, 1
s_lshl_b32 s{sbn}, s{sbn}, 2
s_lshr_b32 s{t+1}, s{t+1}, 3
s_add_u32 s{sbn}, s{sbn}, s{t+1}''')


class VM:
    def __init__(self, k): self.k = k; self.log = []
    def op(self, text, tag): self.k(text); self.log.append(tag)
    def n_after(self, tag):
        idx = max(i for i, t in enumerate(self.log) if t == tag)
        return len(self.log) - 1 - idx
    def wait(self, tag): self.k(f's_waitcnt vmcnt({min(63, self.n_after(tag))})')


def interleave(main, fill):
    out = []; n = len(main); m = len(fill); j = 0
    for i, g in enumerate(main):
        out.append(g)
        upto = (i + 1) * m // n
        out += fill[j:upto]; j = upto
    return out


SLOT = 36864
EXT = 4 * SLOT
ACC, Y, TX, T0, S1, S2, FR = 32, 64, 144, 164, 180, 182, 144
NFR = 6
C1, C3, RR = 20, 22, 24


def gelu_ops(acc, dst, kind, packed=False):
    ops = []
    for g in range(2):
        if packed:
            prs = range(4 * g, 4 * g + 4)
            pr = lambda b, j: f'v[{b+2*j}:{b+2*j+1}]'
            t = lambda j: f'v[{T0+2*(j%4)}:{T0+2*(j%4)+1}]'
            for j in prs: ops.append(f'v_pk_mul_f32 {t(j)}, {pr(acc,j)}, {pr(acc,j)}')
            for j in prs: ops.append(f'v_pk_fma_f32 {t(j)}, {t(j)}, v[{C3}:{C3+1}], v[{C1}:{C1+1}] op_sel_hi:[1,0,0]')
            for j in prs: ops.append(f'v_pk_mul_f32 {t(j)}, {t(j)}, {pr(acc,j)}')
            for j in range(8): ops.append(f'v_exp_f32 v{T0+j}, v{T0+j}')
            for j in prs: ops.append(f'v_pk_add_f32 {t(j)}, {t(j)}, 1.0 op_sel_hi:[1,0]')
            for j in range(8): ops.append(f'v_rcp_f32 v{T0+j}, v{T0+j}')
            for j in prs: ops.append(f'v_pk_mul_f32 {t(j)}, {t(j)}, {pr(acc,j)}')
            for j in prs: ops.append(f'v_pk_mul_f32 {t(j)}, {t(j)}, v[{RR}:{RR+1}] op_sel_hi:[1,0]')
            for j in prs: ops.append(f'v_cvt_pk_bf16_f32 v{dst+j}, v{T0+2*(j%4)}, v{T0+2*(j%4)+1}')
            ops.append(('store', g))
            continue
        stages = []
        for e in range(8):
            a = acc + 8 * g + e; t = T0 + 8 * g + e
            st = [f'v_mul_f32 v{t}, v{a}, v{a}', f'v_fma_f32 v{t}, v{t}, v{C3}, v{C1}', f'v_mul_f32 v{t}, v{t}, v{a}',
                  f'v_exp_f32 v{t}, v{t}', f'v_add_f32 v{t}, 1.0, v{t}', f'v_rcp_f32 v{t}, v{t}']
            if kind == 'z1':
                st += [f'v_mul_f32 v{t}, v{t}, v{a}', f'v_mul_f32 v{t}, v{t}, v{RR}']
            else:
                d = dst + 8 * g + e
                st += [f'v_mul_f32 v{d}, v{t}, v{a}', f'v_add_f32 v{S1+(e&1)}, v{S1+(e&1)}, v{d}', f'v_fmac_f32 v{S2+(e&1)}, v{d}, v{d}']
                if kind == 'both': st += [f'v_mul_f32 v{t}, v{d}, v{RR}']
            if kind != 'z2' and e & 1:
                st += [f'v_cvt_pk_bf16_f32 v{(dst if kind == "z1" else PK)+4*g+e//2}, v{t-1}, v{t}']
            stages.append(st)
        n = max(len(x) for x in stages)
        for step in range(n + 2 * 7):
            for e in range(8):
                q = step - 2 * e
                for qq in ((q,) if True else ()):
                    if 0 <= qq < len(stages[e]): ops.append(stages[e][qq])
        if kind != 'z2': ops.append(('store', g))
    return ops


PK = 148


def gen_k4(opt=(), k=None, mid_hook=None):
    fused = k is not None
    if not fused: k = K('k4_kernel', vgpr=224, agpr=168, sgpr=68)
    vm = VM(k)
    k(f'''s_cmp_ge_u32 s2, 256
s_cbranch_scc1 L_k4_end
s_load_dwordx2 s[16:17], s[0:1], {A_WS}''')
    if fused:
        k(f'''s_load_dwordx2 s[58:59], s[0:1], {A_BSP}
s_load_dwordx2 s[60:61], s[0:1], {A_OUT}''')
    waveid(k, 3, 1)
    map_8x4_16x16(k, 4, 5, 6)
    k(f'''v_and_b32 v1, 63, v0
v_lshlrev_b32 v2, 4, v1
v_and_b32 v5, 31, v1
v_lshrrev_b32 v6, 5, v1
s_and_b32 s6, s5, 1
s_lshr_b32 s7, s5, 1
s_mul_i32 s7, s7, 9
s_lshl_b32 s8, s4, 2
s_add_u32 s8, s8, s3
s_mul_i32 s9, s6, 5
s_add_u32 s9, s9, s7
s_add_u32 s9, s9, 72
s_mul_i32 s44, s9, 37888
s_add_u32 s45, s44, 37888
s_add_u32 s46, s45, 37888
s_add_u32 s47, s46, 37888
s_mul_i32 s9, s6, 76
s_add_u32 s9, s9, s7
s_mul_i32 s48, s9, 37888
s_lshl_b32 s53, s7, 10
s_cmp_eq_u32 s6, 1
s_cselect_b32 s53, {OOB}, s53
s_lshl_b32 s9, s6, 2
s_add_u32 s9, s9, s7
s_add_u32 s9, s9, 1
s_mul_i32 s49, s9, 37888
s_add_u32 s50, s49, 37888
s_add_u32 s51, s50, 37888
s_add_u32 s52, s51, 37888
s_lshl_b32 s54, s9, 10
s_add_u32 s55, s54, 1024
s_add_u32 s56, s55, 1024
s_add_u32 s57, s56, 1024
s_lshl_b32 s9, s8, 5
v_add_u32 v7, s9, v5
v_lshlrev_b32 v7, 6, v7
v_lshl_add_u32 v7, v6, 5, v7
s_mul_i32 s10, s3, 9216
s_waitcnt lgkmcnt(0)''')
    srd_ws(k, 20, 16, 'ST1')
    srd_ws(k, 24, 16, 'WIN')
    srd_ws(k, 28, 16, 'XG')
    srd_ws(k, 32, 16, 'Z1')
    vm.op('buffer_load_dwordx4 v[8:11], v7, s[20:23], 0 offen', 'st')
    vm.op('buffer_load_dwordx4 v[12:15], v7, s[20:23], 0 offen offset:16', 'st')
    k('''s_cmp_eq_u32 s3, 1
s_cselect_b32 s11, s45, s44
s_cselect_b32 s12, s49, s48
s_cmp_eq_u32 s3, 2
s_cselect_b32 s11, s46, s11
s_cselect_b32 s12, s50, s12
s_cmp_eq_u32 s3, 3
s_cselect_b32 s11, s47, s11
s_cselect_b32 s12, s51, s12
s_lshl_b32 s13, s3, 10''')
    k(f'''s_add_u32 s13, s13, {EXT}
s_add_u32 s11, s11, {SLOT}
s_mov_b32 m0, s13''')
    vm.op('buffer_load_dwordx4 v2, s[24:27], s11 offen lds', 'ext')
    k(f'''s_add_u32 s13, s13, 4096
s_add_u32 s12, s12, {SLOT}
s_mov_b32 m0, s13''')
    vm.op('buffer_load_dwordx4 v2, s[24:27], s12 offen lds', 'ext')
    k(f'''s_add_u32 s12, s52, {SLOT}
s_mov_b32 m0, {EXT+8192}''')
    vm.op('buffer_load_dwordx4 v2, s[24:27], s12 offen lds', 'ext')

    def dma_ops(j):
        ops = []
        for c in range(9):
            if c % 4 == 0:
                ops.append((f's_add_u32 s13, s10, {(j&3)*SLOT + c*1024}', None))
                ops.append((f's_add_u32 s14, s10, s{44+j}', None))
                ops.append(('s_mov_b32 m0, s13', None))
                if c: ops.append((f's_add_u32 s14, s14, {c*1024}', None))
                else: ops.append(('s_nop 0', None))
            ops.append((f'buffer_load_dwordx4 v2, s[24:27], s14 offen offset:{(c%4)*1024} lds', f'B{j}'))
        return ops

    def emit(o):
        if isinstance(o, tuple):
            if o[1] is None: k(o[0])
            else: vm.op(o[0], o[1])
        else: k(o)
    for o in dma_ops(0): emit(o)
    k(f's_mul_i32 s11, s8, {SLOT}')
    a_ops = []
    for st in range(36):
        if st % 4 == 0 and st: a_ops.append(('s_add_u32 s11, s11, 4096', None))
        a_ops.append((f'buffer_load_dwordx4 a[{4*st}:{4*st+3}], v2, s[28:31], s11 offen offset:{(st%4)*1024}', f'A{st}'))
    NPRE = 12
    pre = [o for o in a_ops]
    cnt = 0
    while cnt < NPRE:
        o = pre.pop(0); emit(o)
        if o[1]: cnt += 1
    if 'tstamp' not in opt: k.stamp(0)
    vm.wait('st')
    k('''v_pk_add_f32 v[8:9], v[8:9], v[10:11]
v_pk_add_f32 v[12:13], v[12:13], v[14:15]
v_pk_add_f32 v[8:9], v[8:9], v[12:13]''')
    xadd32(k, 8, 10); xadd32(k, 9, 11)
    k(f'''v_mul_f32 v8, {fhex(-1/576)}, v8
v_mul_f32 v9, {fhex(1/576)}, v9
v_fma_f32 v9, -v8, v8, v9
v_max_f32 v9, 0, v9
v_add_f32 v9, {fhex(1e-5)}, v9
v_rsq_f32 v{RR}, v9
v_sqrt_f32 v9, v9
v_mul_f32 v{C1}, {fhex(GA_)}, v{RR}
v_mul_f32 v{C3}, v{RR}, v{RR}
v_mul_f32 v{C3}, v{C3}, v{RR}
v_mul_f32 v{C3}, {fhex(GB_)}, v{C3}
v_cvt_pk_bf16_f32 v10, v8, v9
v_lshlrev_b32 v11, 16, v10
v_and_b32 v12, 0xffff0000, v10
v_sub_f32 v13, v8, v11
v_sub_f32 v14, v9, v12
v_cvt_pk_bf16_f32 v13, v13, v14
v_and_b32 v{TX}, 0xffff, v10
v_lshl_or_b32 v{TX}, v13, 16, v{TX}
v_mov_b32 v{TX+1}, v10
v_lshrrev_b32 v{TX+2}, 16, v13
v_or_b32 v{TX+2}, v{TX+2}, v12
v_mov_b32 v{TX+3}, 0
v_mov_b32 v{S1}, 0
v_mov_b32 v{S1+1}, 0
v_mov_b32 v{S2}, 0
v_mov_b32 v{S2+1}, 0
v_add_u32 v3, {SLOT}, v2
v_add_u32 v4, {2*SLOT}, v2
v_add_u32 v16, {3*SLOT}, v2
v_add_u32 v17, {EXT}, v2
v_bfe_u32 v18, v1, 4, 1
s_lshl_b32 s9, s8, 1
v_add_u32 v18, s9, v18
v_mul_u32_u24 v18, {72*1024}, v18
v_and_b32 v19, 15, v1
v_lshl_add_u32 v18, v19, 4, v18
v_lshl_add_u32 v18, v6, 8, v18
v_lshlrev_b32 v26, 3, v5
v_cmp_eq_u32 vcc, 0, v6
v_mov_b32 v27, {OOB}
v_cndmask_b32 v27, v27, v26, vcc
v_lshl_add_u32 v26, v6, 13, v26
s_mul_i32 s9, s3, {2*32*80}
s_add_u32 s9, s9, {SLOT}
v_mul_u32_u24 v14, 80, v5
v_lshl_add_u32 v14, v6, 4, v14
v_add_u32 v14, s9, v14
v_lshrrev_b32 v15, 4, v1
v_lshlrev_b32 v15, 3, v15
v_bfe_u32 v19, v1, 2, 2
v_add_u32 v15, v15, v19
v_mul_u32_u24 v15, 80, v15
v_and_b32 v19, 3, v1
v_lshl_add_u32 v15, v19, 4, v15
v_add_u32 v15, s9, v15''')
    base = [2, 3, 4, 16]

    def rd(j, s):
        r = FR + 4 * ((37 * j + s) % NFR)
        if s == 36: return f'ds_read_b128 a[{r}:{r+3}], v17 offset:{j*1024}'
        return f'ds_read_b128 a[{r}:{r+3}], v{base[j&3]} offset:{s*1024}'
    vm.wait('B0')
    k('s_barrier')
    AH = 5
    dsl_ = []

    def ds(text, tag):
        k(text); dsl_.append(tag)

    def dwait(tag):
        idx = max(i for i, t in enumerate(dsl_) if t == tag)
        k(f's_waitcnt lgkmcnt({min(15, len(dsl_) - 1 - idx)})')
    for s in range(AH): ds(rd(0, s), f'F{s}')
    if 'tstamp' not in opt: k.stamp(1)

    def grp(d):
        groups = []; cur = []
        for o in d:
            cur.append(o)
            if o[1] is not None: groups.append(cur); cur = []
        return groups
    RS = 80
    PL, NPK, NFO, SC, SH = 204, 188, 196, 28, 29

    def poll_ops():
        o = []
        for i in range(8):
            if i == 4: o.append(('s_add_u32 s12, s11, 4096', None))
            o.append((f'buffer_load_dwordx2 v[{PL+2*i}:{PL+2*i+1}], v26, s[36:39], {"s11" if i<4 else "s12"} offen offset:{(i%4)*1024} sc1', 'poll'))
        return o

    def norm_ops(j):
        y = Y + 16 * j; o = (j & 1) * 32 * RS
        ops = []
        for g in range(2):
            for i in range(8 * g, 8 * g + 8): ops.append(f'v_fma_f32 v{y+i}, v{y+i}, v{SC}, v{SH}')
            for i in range(4 * g, 4 * g + 4): ops.append(f'v_cvt_pk_bf16_f32 v{NPK+i}, v{y+2*i}, v{y+2*i+1}')
            ops.append(('DS', f'ds_write_b128 v14, v[{NPK+4*g}:{NPK+4*g+3}] offset:{o+32*g}', f'W{j}'))
        return ops

    def norm_rd(j):
        o = (j & 1) * 32 * RS
        return [('DW', f'W{j}'),
                ('DS', f'ds_read_b64_tr_b16 v[{NFO}:{NFO+1}], v15 offset:{o}', f'R{j}'),
                ('DS', f'ds_read_b64_tr_b16 v[{NFO+2}:{NFO+3}], v15 offset:{o+4*RS}', f'R{j}'),
                ('DS', f'ds_read_b64_tr_b16 v[{NFO+4}:{NFO+5}], v15 offset:{o+8}', f'R{j}'),
                ('DS', f'ds_read_b64_tr_b16 v[{NFO+6}:{NFO+7}], v15 offset:{o+4*RS+8}', f'R{j}')]

    def norm_st(j):
        if j < 4:
            so = 's64' if j < 2 else 's65'
            a = f'{so} offen offset:{(j&1)*2048}'; b = f'{so} offen offset:{(j&1)*2048+1024}'
        else:
            a = 's67 offen'; b = 's66 offen'
        return [('DW', f'R{j}'), (f'buffer_store_dwordx4 v[{NFO}:{NFO+3}], v2, s[20:23], {a}', 'z2st'),
                (f'buffer_store_dwordx4 v[{NFO+4}:{NFO+7}], v2, s[20:23], {b}', 'z2st')]

    def emit2(o):
        if isinstance(o, tuple) and o[0] == 'DS': ds(o[1], o[2])
        elif isinstance(o, tuple) and o[0] == 'DW': dwait(o[1])
        else: emit(o)

    def merge(a, b):
        out = []; j = 0
        for i, o in enumerate(a):
            out.append(o)
            upto = (i + 1) * len(b) // len(a)
            out += b[j:upto]; j = upto
        return out
    for j in range(9):
        acc = ACC + 16 * (j & 1)
        fill = []
        if j >= 1:
            pj = j - 1
            kind = 'z2' if pj < 4 else 'both' if pj == 4 else 'z1'
            pacc = ACC + 16 * (pj & 1)
            if pj == 4:
                fill += [f'v_mov_b32 v{184+i}, v{S1+i}' for i in range(4)]
            for o in gelu_ops(pacc, Y + 16 * pj if pj <= 4 else PK, kind):
                if isinstance(o, tuple):
                    g = o[1]
                    fill.append((f'buffer_store_dwordx4 v[{PK+4*g}:{PK+4*g+3}], v18, s[32:35], s{53+pj-4} offen offset:{512*g}', 'z1st'))
                else: fill.append(o)
        if j == 7:
            fill = merge(fill, norm_ops(0) + norm_ops(1)[:8] + norm_rd(0) + norm_ops(1)[8:20] + norm_st(0) + norm_ops(1)[20:]
                         + norm_ops(2)[:8] + norm_rd(1) + norm_ops(2)[8:13])
        if j == 8:
            fill = merge(fill, norm_ops(2)[13:20] + norm_st(1) + norm_ops(2)[20:] + norm_ops(3)[:8] + norm_rd(2) + norm_ops(3)[8:20] + norm_st(2)
                         + norm_ops(3)[20:] + norm_ops(4)[:8] + norm_rd(3) + norm_ops(4)[8:20] + norm_st(3) + norm_ops(4)[20:])
        if 'nogelu' in opt: fill = []
        per = [[] for _ in range(37)]
        mem = [[] for _ in range(37)]
        if j == 0:
            ga = grp(pre); gb = grp(dma_ops(1)); gc = grp(dma_ops(2))
            for i, g in enumerate(ga): mem[i] += g
            for i, g in enumerate(gb): mem[12 + 2 * i if i < 5 else 19 + i] += g
            for i, g in enumerate(gc): mem[min(36, 28 + i)] += g
        elif j + 2 < 9:
            for i, g in enumerate(grp(dma_ops(j + 2))): mem[1 + 3 * i] += g
        if j == 6:
            for i, g in enumerate(grp(poll_ops())): mem[27 + i] += g
        cost = lambda o: 1 if isinstance(o, tuple) else (2 if o.startswith(('v_exp', 'v_rcp')) else 1)
        tot = sum(cost(o) for o in fill); run = 0
        for o in fill:
            per[2 + (run * 35) // max(tot, 1)].append(o); run += cost(o)
        for s in range(37):
            g = 37 * j + s
            if j == 0 and s < 36: vm.wait(f'A{s}')
            if g % 2 == 0: dwait(f'F{min(g + 1, 9 * 37 - 1)}')
            bop = f'a[{4*s}:{4*s+3}]' if s < 36 else f'v[{TX}:{TX+3}]'
            r = FR + 4 * (g % NFR)
            cc = '0' if s == 0 else f'v[{acc}:{acc+15}]'
            k(f'v_mfma_f32_32x32x16_bf16 v[{acc}:{acc+15}], a[{r}:{r+3}], {bop}, {cc}')
            if s + AH < 37: ds(rd(j, s + AH), f'F{g+AH}')
            elif j < 8:
                if s + AH == 37:
                    vm.wait(f'B{j+1}'); k('s_barrier')
                ds(rd(j + 1, s + AH - 37), f'F{g+AH}')
            for o in mem[s]: emit(o)
            if j == 7 and s == 1:
                vm.wait('poll')
                k(f'''s_mov_b32 s13, 0
L_k4_chk:
v_max_u32 v8, v{PL+1}, v{PL+3}
v_max3_u32 v8, v8, v{PL+5}, v{PL+7}
v_max3_u32 v8, v8, v{PL+9}, v{PL+11}
v_max3_u32 v8, v8, v{PL+13}, v{PL+15}
v_cmp_eq_u32 vcc, -1, v8
s_cbranch_vccz L_k4_rdy
s_add_u32 s13, s13, 1
s_cmp_ge_u32 s13, 0x40000
s_cbranch_scc1 L_k4_rdy''')
                for o in poll_ops(): k(o[0])
                k('''s_waitcnt vmcnt(0)
s_branch L_k4_chk
L_k4_rdy:''')
                if 'tstamp' in opt: k.stamp(6)
                for h in range(2):
                    k(f'''v_add_f32 v{8+h}, v{PL+h}, v{PL+2+h}
v_add_f32 v{10+h}, v{PL+4+h}, v{PL+6+h}
v_add_f32 v{12+h}, v{PL+8+h}, v{PL+10+h}
v_add_f32 v{PL+h}, v{PL+12+h}, v{PL+14+h}
v_add_f32 v{8+h}, v{8+h}, v{10+h}
v_add_f32 v{12+h}, v{12+h}, v{PL+h}
v_add_f32 v{8+h}, v{8+h}, v{12+h}''')
                k(f'''v_mov_b32 v10, v8
v_mov_b32 v11, v9
v_mul_f32 v12, v{RR}, v{RR}
v_mov_b32 v13, {fhex(1e-5)}
v_permlane32_swap_b32 v8, v10
v_permlane32_swap_b32 v9, v11
v_add_f32 v8, v8, v10
v_add_f32 v9, v9, v11
v_mul_f32 v8, {fhex(1/2304)}, v8
v_mul_f32 v9, {fhex(1/2304)}, v9
v_fma_f32 v9, -v8, v8, v9
v_max_f32 v9, 0, v9
v_fma_f32 v9, v9, v12, v13
v_rsq_f32 v9, v9
v_mul_f32 v{SC}, v9, v{RR}
v_mul_f32 v{SH}, -v8, v{SC}''')
            for o in per[s]: emit2(o)
        if 'tstamp' in opt and j in (0,4,5,6,7): k.stamp({0:0,4:1,5:4,6:5,7:7}[j])
        if j == 5:
            srd_ws(k, 36, 16, 'ST2')
            k(f'''s_cmp_eq_u32 s6, 1
s_cbranch_scc1 L_k4_odd
v_mov_b32 v{S1}, v184
v_mov_b32 v{S1+1}, v185
v_mov_b32 v{S2}, v186
v_mov_b32 v{S2+1}, v187
L_k4_odd:
v_add_f32 v{S1}, v{S1}, v{S1+1}
v_add_f32 v{S1+1}, v{S2}, v{S2+1}''')
            xadd32(k, S1, S2); xadd32(k, S1 + 1, S2 + 1)
            k(f'''s_lshl_b32 s12, s5, 10
s_add_u32 s12, s12, s11''')
            vm.op(f'buffer_store_dwordx2 v[{S1}:{S1+1}], v27, s[36:39], s12 offen sc1', 'pub')
        if j == 0:
            srd_ws(k, 20, 16, 'Z2')
            k(f'''s_lshl_b32 s11, s4, 14
s_lshl_b32 s12, s3, 8
s_add_u32 s11, s11, s12
s_lshl_b32 s64, s5, 6
s_add_u32 s64, s64, s8
s_mul_i32 s64, s64, 9216
s_add_u32 s65, s64, 4096
s_add_u32 s66, s64, 8192
s_sub_u32 s67, s66, {64*9216}
s_cmp_eq_u32 s6, 0
s_cselect_b32 s66, {OOB}, s66
s_cselect_b32 s67, {OOB}, s67''')
    k.stamp(7 if fused else 2)
    for o in norm_rd(4): emit2(o)
    first = True
    for o in gelu_ops(ACC, PK, 'z1', packed=True):
        if isinstance(o, tuple):
            g = o[1]
            k(f'buffer_store_dwordx4 v[{PK+4*g}:{PK+4*g+3}], v18, s[32:35], s57 offen offset:{512*g}')
        else:
            k(o)
            if first and o.startswith('v_exp'):
                first = False
                for oo in norm_st(4): emit2(oo)
    k.stamp(3)
    if not fused: code_prefetch(k, 'k5_kernel', 1, 190, 40, swave=3)
    if fused:
        k('L_k4_done:')
        return
    k('''L_k4_end:
s_endpgm''')
    return k, f'; @launch kernel=k4_kernel grid=(256,1,1) block=(256,1,1) lds={EXT+9216}'
```

```python
from dsl import K
from common import *
from k4 import map_8x4_16x16, VM
from k1 import map_8x4_32x8
from k3 import lane_consts, epi_addr, load_modvec

SLOT = 36864
NEXT6 = 'k6_kernel'
LATE_N = 17 + 5


def ring_gemm(k, R, NST, SPS, NB, NA, a_load, b_rd, acc, areg, breg, pre_ops, npre, late_ops=None, opt=(), preA=False, preB=False, ldmod=''):
    assert NST % R == 0

    def stage_ops(slot):
        al = a_load(slot)
        head = [f's_cmp_lt_u32 s15, {NST}', f's_cselect_b32 s40, s11, {OOB}', f's_cselect_b32 s41, s12, {OOB}']
        if SPS == 8: head.append('s_add_u32 s42, s40, 4096')
        d = []
        for c in range(9):
            g = []
            if c % 4 == 0:
                g.append(f's_add_u32 m0, s10, {slot*SLOT + c*1024}')
                g.append('s_add_u32 s41, s41, 4096' if c else f's_add_u32 s11, s11, {SPS*1024}')
            g.append(f'buffer_load_dwordx4 v2, s[28:31], s41 offen offset:{(c%4)*1024} {ldmod} lds')
            d.append(g)
        d[0] = head + d[0]
        d[1] = [f's_add_u32 s12, s12, {SLOT}', 's_add_u32 s15, s15, 1'] + d[1]
        groups = []
        for i in range(9):
            groups.append(d[i])
            if i < 8: groups.append([al[i]])
        return groups
    for s in range(R - 1):
        for g in stage_ops(s):
            for o in g:
                if o.startswith('buffer_load') and ((preA and ' lds' not in o) or (preB and ' lds' in o)): continue
                k(o)
    pre_ops()
    k.stamp(0)
    per = 9 if preA else 8 if preB else 17
    k(f's_waitcnt vmcnt({per*(R-2)+npre})\ns_barrier')
    for o in b_rd(0, 0, 0): k(o)
    nm = SPS * NB * NA
    per_step = NB * NA
    pos = [(g * nm) // 17 for g in range(17)]
    first = [g for g in range(17) if pos[g] < per_step]
    g0 = stage_ops(R - 1)
    for g in first:
        for o in g0[g]: k(o)
    lab = k.newlabel('L_loop')
    k(f's_mov_b32 s43, 0\n.p2align 6\n{lab}:')
    for slot in range(R):
        cur = stage_ops((slot + R - 1) % R)
        nxt = stage_ops(slot)
        for st in range(SPS):
            par = st & 1
            lastst = st == SPS - 1
            k('s_waitcnt lgkmcnt(0)')
            if lastst:
                if late_ops and slot == R - 2:
                    lz = k.newlabel('L_late')
                    k(f's_cmp_lg_u32 s43, {NST//R-1}\ns_cbranch_scc1 {lz}')
                    late_ops()
                    k(f'{lz}:')
                if per != 17 and slot < R - 3:
                    lz = k.newlabel('L_fst')
                    k(f's_cmp_lg_u32 s43, 0\ns_cbranch_scc1 {lz}\ns_waitcnt vmcnt({17*(slot+1)+per*(R-3-slot)})\n{lz}:')
                k(f's_waitcnt vmcnt({17*(R-2)})')
                if 'nobar' not in opt: k('s_barrier')
                rds = b_rd((slot + 1) % R, 0, par ^ 1)
            else:
                rds = b_rd(slot, st + 1, par ^ 1)
            ri = 0; mi = 0
            for j in range(NB):
                for m in range(NA):
                    a = acc(j, m)
                    if 'nomfma' not in opt: k(f'v_mfma_f32_16x16x32_bf16 {a}, {breg(par, j)}, {areg(slot, st, m)}, {a}')
                    if ri < len(rds) and (m == 0) and 'nods' not in opt: k(rds[ri]); ri += 1
                    w = mi if lastst else (st + 1) * per_step + mi
                    for g in range(17):
                        if pos[g] == w:
                            for o in (nxt if lastst else cur)[g]: k(o)
                    mi += 1
    k(f'''s_add_u32 s43, s43, 1
s_cmp_lt_u32 s43, {NST//R}
s_cbranch_scc1 {lab}''')


def k5_a_load(slot, so='s40'):
    return [f'buffer_load_dwordx4 a[{32*slot+8*st+4*m}:{32*slot+8*st+4*m+3}], v{2+m}, s[24:27], {so} offen offset:{st*1024}'
            for st in range(4) for m in range(2)]


def k5_prefetch_a(k):
    srd_ws(k, 24, 16, 'WSP')
    k('''v_add_u32 v3, 0x10000, v2
s_lshl_b32 s62, s4, 3
s_lshl_b32 s63, s3, 1
s_add_u32 s62, s62, s63
s_lshl_b32 s62, s62, 16''')
    for s in range(3):
        for o in k5_a_load(s, 's62'): k(o)
        k('s_add_u32 s62, s62, 4096')
    return 24


def gen_k5(opt=(), k=None):
    fused = k is not None
    ACC, Z = 64, 136
    if not fused:
        k = K('k5_kernel', vgpr=176, agpr=200, sgpr=64)
        k(f'''s_cmp_ge_u32 s2, 256
s_cbranch_scc1 L_k5_end
s_load_dwordx2 s[16:17], s[0:1], {A_WS}
s_load_dwordx2 s[58:59], s[0:1], {A_BSP}''')
        waveid(k, 3, 1)
        map_8x4_16x16(k, 4, 5, 6)
        k('''v_and_b32 v1, 63, v0
v_lshlrev_b32 v2, 4, v1''')
    k(f'''v_add_u32 v3, 0x10000, v2
v_add_u32 v4, {SLOT}, v2
v_add_u32 v5, {2*SLOT}, v2
v_add_u32 v6, {3*SLOT}, v2
s_lshl_b32 s8, s4, 3
s_lshl_b32 s9, s3, 1
s_add_u32 s8, s8, s9
s_lshl_b32 s11, s8, 16
s_mul_i32 s10, s3, 9216
s_mul_i32 s12, s5, {64*9216}
s_add_u32 s12, s12, s10
s_mov_b32 s15, 0
v_and_b32 v7, 15, v1
s_lshl_b32 s9, s8, 4
v_add_u32 v7, s9, v7
v_lshlrev_b32 v7, 1, v7
s_waitcnt lgkmcnt(0)''')
    srd_ws(k, 24, 16, 'WSP')
    srd_ws(k, 28, 16, 'Z2')
    srd_ws(k, 32, 16, 'Z1')
    srd_in(k, 36, 58, S * 2)
    k('''buffer_load_ushort v8, v7, s[36:39], 0 offen
buffer_load_ushort v9, v7, s[36:39], 0 offen offset:32''')
    acc_init = []
    for m in range(2):
        for i in range(36): acc_init.append(f'v_mov_b32 v{ACC+36*m+i}, v{8+m}')
    if fused:
        srd_ws(k, 20, 16, 'CNT')
        k('s_mov_b32 s13, s5')
        n = k5_prefetch_a(k)
        signal(k, 20, 13, 10, young=n)
        k('v_lshlrev_b32 v8, 16, v8\nv_lshlrev_b32 v9, 16, v9')
        for o in acc_init: k(o)
        k('s_and_b32 s13, s5, 14')
        k.stamp(5)
        await_(k, 20, 13, 2, 16, 10, 14)
        k.stamp(6)
    base = [2, 4, 5, 6]
    ld = ' sc1' if fused else ''

    def b_rd(slot, st, par):
        return [f'ds_read_b128 a[{128+36*par+4*j}:{128+36*par+4*j+3}], v{base[slot]} offset:{st*9216+j*1024}' for j in range(9)]

    def pre_ops():
        k(f'''s_mul_i32 s44, s5, 9
s_add_u32 s44, s44, 1
s_lshr_b32 s44, s44, 1
s_and_b32 s45, s5, 1
s_cmp_eq_u32 s45, 1
s_cselect_b32 s46, -1, 4
s_add_u32 s46, s46, s44
s_mul_i32 s47, s8, 72
s_add_u32 s44, s44, s47
s_lshl_b32 s44, s44, 10
s_add_u32 s46, s46, s47
s_lshl_b32 s46, s46, 10
s_lshl_b32 s45, s45, 3
s_add_u32 s46, s46, s45
s_add_u32 s45, s44, {72*1024}
s_add_u32 s47, s46, {72*1024}''')
        if not fused:
            k('''s_waitcnt vmcnt(51)
v_lshlrev_b32 v8, 16, v8
v_lshlrev_b32 v9, 16, v9''')
            for o in acc_init: k(o)

    def late_ops():
        for m in range(2):
            for b in range(4):
                k(f'buffer_load_dwordx4 v[{Z+18*m+4*b}:{Z+18*m+4*b+3}], v2, s[32:35], s{44+m} offen offset:{b*1024}{ld}')
            k(f'buffer_load_dwordx2 v[{Z+18*m+16}:{Z+18*m+17}], v2, s[32:35], s{46+m} offen{ld}')
    ring_gemm(k, 4, 16, 4, 9, 2, k5_a_load, b_rd,
              lambda j, m: f'v[{ACC+36*m+4*j}:{ACC+36*m+4*j+3}]',
              lambda slot, st, m: f'a[{32*slot+8*st+4*m}:{32*slot+8*st+4*m+3}]',
              lambda par, j: f'a[{128+36*par+4*j}:{128+36*par+4*j+3}]', pre_ops, 0, late_ops, opt,
              preA=fused, ldmod=ld.strip())
    k.stamp(1)
    if fused:
        k(f's_waitcnt vmcnt({LATE_N}) lgkmcnt(0)')
    else:
        k(f's_waitcnt vmcnt({LATE_N}) lgkmcnt(0)')
        code_prefetch(k, NEXT6, 1, 20, 48, swave=3)
    for m in range(2):
        for i in range(18):
            t = 10 + 2 * (i & 3)
            a = ACC + 36 * m + 2 * i
            unpack(k, t, Z + 18 * m + i)
            k(f'''v_pk_mul_f32 v[{a}:{a+1}], v[{a}:{a+1}], v[{t}:{t+1}]
v_cvt_pk_bf16_f32 v{Z+18*m+i}, v{a}, v{a+1}''')
            if i % 4 == 3: k(f'buffer_store_dwordx4 v[{Z+18*m+i-3}:{Z+18*m+i}], v2, s[32:35], s{44+m} offen offset:{(i//4)*1024}')
        k(f'buffer_store_dwordx2 v[{Z+18*m+16}:{Z+18*m+17}], v2, s[32:35], s{46+m} offen')
    if fused: return
    k('''L_k5_end:
s_endpgm''')
    return k, f'; @launch kernel=k5_kernel grid=(256,1,1) block=(256,1,1) lds={4*SLOT}'
```

```python
from dsl import K
from common import *
from k1 import map_8x4_32x8
from k3 import lane_consts, epi_addr, modvec_load, modvec_spread
from k5 import ring_gemm, SLOT


def k6_prefetch_b(k):
    map_8x4_32x8(k, 48, 49, 50)
    srd_ws(k, 52, 16, 'WOUT')
    k(f'''s_mul_i32 s50, s49, {72*4608}
s_add_u32 s50, s50, s10''')
    for s in range(2):
        for c in range(9):
            if c % 4 == 0:
                k(f's_add_u32 m0, s10, {s*SLOT+c*1024}\ns_add_u32 s51, s50, {s*SLOT+c*1024}')
            k(f'buffer_load_dwordx4 v2, s[52:55], s51 offen offset:{(c%4)*1024} lds')


def gen_k6(k=None):
    fused = k is not None
    ACC, XR, GB, AR, BF, MV = 40, 20, 208, 64, 160, 32
    if not fused:
        k = K('k6_kernel', vgpr=232, sgpr=64)
        k(f'''s_cmp_ge_u32 s2, 256
s_cbranch_scc1 L_k6_end
s_load_dwordx2 s[16:17], s[0:1], {A_WS}
s_load_dwordx2 s[60:61], s[0:1], {A_OUT}''')
        waveid(k, 3, 1)
        map_8x4_32x8(k, 4, 5, 6)
    else:
        k('s_add_u32 s13, s4, 16')
        k6_prefetch_b(k)
        signal(k, 20, 13, 10, young=18)
        k('s_mov_b32 s4, s48\ns_mov_b32 s5, s49')
    lane_consts(k)
    k('''s_lshl_b32 s8, s4, 2
s_add_u32 s8, s8, s3''')
    epi_addr(k, 8, 5)
    k(f'''v_add_u32 v3, {SLOT}, v2
v_add_u32 v4, {2*SLOT}, v2
v_add_u32 v6, {SLOT}, v5
v_add_u32 v16, {2*SLOT}, v5
s_mul_i32 s11, s8, {72*1024}
s_mul_i32 s10, s3, 9216
s_mul_i32 s12, s5, {72*4608}
s_add_u32 s12, s12, s10
s_mov_b32 s15, 0
s_waitcnt lgkmcnt(0)''')
    srd_ws(k, 24, 16, 'Z1')
    srd_ws(k, 28, 16, 'WOUT')
    srd_ws(k, 32, 16, 'MODF')
    srd_ws(k, 36, 16, 'X1')
    full = [2, 3, 4]; half = [5, 6, 16]
    ld = ' sc1' if fused else ''

    def extras():
        k(f'''buffer_load_dwordx4 v[{XR}:{XR+3}], v12, s[36:39], 0 offen
buffer_load_dwordx4 v[{XR+4}:{XR+7}], v12, s[36:39], 0 offen offset:2048
buffer_load_dwordx2 v[{XR+8}:{XR+9}], v13, s[36:39], 0 offen''')
        modvec_load(k, 32, (5, 5), 5, 36, MV)
        for i in range(20): k(f'v_mov_b32 v{ACC+i}, 0')
    if fused:
        extras()
        k('s_lshr_b32 s13, s4, 1\ns_add_u32 s13, s13, 16')
        k.stamp(2)
        await_(k, 20, 13, 1, 16, 38, 14)
        k.stamp(3)

    def a_load(slot):
        return [f'buffer_load_dwordx4 v[{AR+32*slot+4*st}:{AR+32*slot+4*st+3}], v2, s[24:27], {"s40" if st<4 else "s42"} offen offset:{(st%4)*1024}{ld}'
                for st in range(8)]

    def b_rd(slot, st, par):
        return [f'ds_read_b128 v[{BF+20*par+4*j}:{BF+20*par+4*j+3}], v{(full if j<4 else half)[slot]} offset:{st*4608+j*1024}' for j in range(5)]
    ring_gemm(k, 3, 9, 8, 5, 1, a_load, b_rd,
              lambda j, m: f'v[{ACC+4*j}:{ACC+4*j+3}]',
              lambda slot, st, m: f'v[{AR+32*slot+4*st}:{AR+32*slot+4*st+3}]',
              lambda par, j: f'v[{BF+20*par+4*j}:{BF+20*par+4*j+3}]', (lambda: None) if fused else extras, 0 if fused else 4,
              preB=fused)
    k.stamp(4 if fused else 1)
    k('s_waitcnt lgkmcnt(0)')
    modvec_spread(k, MV, 3 * SLOT, (GB,), 36)
    srd_in(k, 24, 60, S * D * 2)
    U = 208 - 24
    for j in range(10): unpack(k, U + 2 * j, XR + j)
    k('s_waitcnt lgkmcnt(0)')
    for j in range(10):
        k(f'v_pk_fma_f32 v[{U+2*j}:{U+2*j+1}], v[{ACC+2*j}:{ACC+2*j+1}], v[{GB+2*j}:{GB+2*j+1}], v[{U+2*j}:{U+2*j+1}]')
    for j in range(10): k(f'v_cvt_pk_bf16_f32 v{XR+j}, v{U+2*j}, v{U+2*j+1}')
    k(f'''buffer_store_dwordx4 v[{XR}:{XR+3}], v10, s[24:27], 0 offen ;plain
buffer_store_dwordx4 v[{XR+4}:{XR+7}], v10, s[24:27], 0 offen offset:64 ;plain
buffer_store_dwordx2 v[{XR+8}:{XR+9}], v11, s[24:27], 0 offen ;plain''')
    if fused: return
    k('''L_k6_end:
s_endpgm''')
    return k, f'; @launch kernel=k6_kernel grid=(256,1,1) block=(256,1,1) lds={3*SLOT+4096}'


def gen_k456(view=0, pa=True):
    import k4, k5
    k = K('k4_kernel', vgpr=232, agpr=200, sgpr=68)
    k.smap = {7: 0, 3: 1, 4: 2} if view == 0 else {}
    k4.gen_k4(k=k)
    k.smap = {10: 3, 11: 4, 5: 5, 6: 6, 0: 7} if view == 0 else {1: 0}
    k5.gen_k5(k=k)
    k.smap = {} if view == 0 else {10: 1, 11: 2, 2: 3, 3: 4, 0: 5, 4: 6}
    gen_k6(k=k)
    k('''L_k4_end:
s_endpgm''')
    return k, f'; @launch kernel=k4_kernel grid=(256,1,1) block=(256,1,1) lds={4*SLOT+9216}'
```

```python
import re, sys

TRANS = ('v_exp_f32', 'v_log_f32', 'v_rcp_f32', 'v_rsq_f32', 'v_sqrt_f32', 'v_sin_f32', 'v_cos_f32',
         'v_exp_f16', 'v_rcp_f16', 'v_rcp_iflag_f32')
NODST_S = ('s_cmp', 's_cbranch', 's_branch', 's_waitcnt', 's_nop', 's_barrier', 's_setprio', 's_sleep',
           's_endpgm', 's_bitcmp')


def parse_reg(tok):
    tok = tok.strip()
    tok = tok.lstrip('-')
    m = re.fullmatch(r'abs\((.*)\)', tok) or re.fullmatch(r'\|(.*)\|', tok)
    if m: tok = m.group(1)
    m = re.fullmatch(r'([vas])(\d+)', tok)
    if m: return {(m.group(1), int(m.group(2)))}
    m = re.fullmatch(r'([vas])\[(\d+):(\d+)\]', tok)
    if m: return {(m.group(1), i) for i in range(int(m.group(2)), int(m.group(3)) + 1)}
    if tok == 'vcc': return {('vcc', 0), ('vcc', 1)}
    if tok == 'vcc_lo': return {('vcc', 0)}
    if tok == 'vcc_hi': return {('vcc', 1)}
    if tok == 'exec': return {('exec', 0), ('exec', 1)}
    if tok == 'exec_lo': return {('exec', 0)}
    if tok == 'exec_hi': return {('exec', 1)}
    if tok == 'm0': return {('m0', 0)}
    return set()


class Ins:
    __slots__ = ('text', 'mn', 'ops', 'mods', 'kind', 'rd', 'wr', 'label', 'target', 'states', 'passes',
                 'mA', 'mB', 'mC', 'mD', 'dpp', 'sdwa', 'lds', 'data', 'sread')

    def __init__(self, text):
        self.text = text
        t = text.split(';')[0].strip()
        self.label = None; self.target = None; self.states = 1; self.passes = 0
        self.rd = set(); self.wr = set(); self.dpp = False; self.sdwa = False; self.lds = False
        self.mA = self.mB = self.mC = self.mD = set(); self.data = set(); self.sread = set()
        self.ops = []; self.mods = ''
        if not t or t.startswith('.'):
            self.kind = 'dir'; self.mn = ''; self.states = 0; return
        if t.endswith(':'):
            self.kind = 'label'; self.label = t[:-1]; self.mn = ''; self.states = 0; return
        parts = t.split(None, 1)
        mn = parts[0]; self.mn = mn
        rest = parts[1] if len(parts) > 1 else ''
        ops = []; cur = ''; depth = 0
        for ch in rest:
            if ch in '[(': depth += 1
            if ch in '])': depth -= 1
            if ch == ',' and depth == 0:
                ops.append(cur.strip()); cur = ''
            else:
                cur += ch
        if cur.strip(): ops.append(cur.strip())
        mods = ''
        if ops:
            last = ops[-1].split(None, 1)
            if len(last) > 1:
                ops[-1] = last[0]; mods = last[1]
        self.ops = ops; self.mods = mods
        R = [parse_reg(o) for o in ops]
        base = re.sub(r'_(e32|e64|dpp|sdwa)$', '', mn)
        if mn.startswith('v_mfma'):
            self.kind = 'mfma'
            self.mD, self.mA, self.mB, self.mC = R[0], R[1], R[2], R[3]
            self.wr = R[0]; self.rd = R[1] | R[2] | R[3]
            self.passes = 8 if '32x32x16' in mn else 4 if '16x16x32' in mn else 16
        elif mn.startswith('v_'):
            self.kind = 'valu'
            self.dpp = bool(re.search(r'row_|quad_perm|wave_', mods)) or mn.endswith('_dpp')
            self.sdwa = 'dst_sel' in mods or 'op_sel' in mods and not mn.startswith('v_pk_')
            if base in ('v_swap_b32', 'v_permlane32_swap_b32', 'v_permlane16_swap_b32'):
                self.wr = R[0] | R[1]; self.rd = R[0] | R[1]
            elif re.match(r'v_(add|sub|subrev)_co_u32|v_addc_co|v_subb_co|v_subbrev_co|v_mad_u64', base):
                self.wr = R[0] | R[1]; self.rd = set().union(*R[2:])
            else:
                self.wr = R[0]; self.rd = set().union(*R[1:]) if len(R) > 1 else set()
                if base.startswith(('v_fmac', 'v_mac', 'v_pk_fmac', 'v_dot2c', 'v_writelane')) or self.dpp or 'UNUSED_PRESERVE' in mods:
                    self.rd |= R[0]
            if base == 'v_nop': self.wr = set()
            self.sread = {r for r in self.rd if r[0] in ('s', 'vcc')}
        elif mn.startswith('ds_'):
            self.kind = 'ds'
            if mn.startswith(('ds_read', 'ds_bpermute', 'ds_permute', 'ds_swizzle')):
                self.wr = R[0]; self.rd = set().union(*R[1:])
            else:
                self.rd = set().union(*R)
        elif mn.startswith(('buffer_', 'global_')):
            self.kind = 'vmem'
            words = (mods + ' ').split()
            self.lds = 'lds' in words or '_lds_' in mn
            if mn.startswith(('buffer_wbl2', 'buffer_inv')):
                pass
            elif mn.startswith('buffer_load') or mn.startswith('global_load'):
                if self.lds:
                    self.rd = set().union(*R) | {('m0', 0)}
                else:
                    self.wr = R[0]; self.rd = set().union(*R[1:])
                    if 'd16' in mn: self.rd |= R[0]
            elif mn.startswith('buffer_store'):
                self.rd = set().union(*R); self.data = R[0]
            elif mn.startswith('global_store'):
                self.rd = set().union(*R); self.data = R[1]
            elif 'atomic' in mn:
                self.rd = set().union(*R)
                if 'sc0' in words: self.wr = R[0]
            else:
                raise ValueError('unknown vmem ' + t)
            self.sread = {r for r in self.rd if r[0] in ('s', 'vcc')}
        elif mn.startswith('s_'):
            if mn.startswith(('s_load', 's_buffer_load', 's_memtime', 's_memrealtime')):
                self.kind = 'smem'; self.wr = R[0]; self.rd = set().union(*R[1:]) if len(R) > 1 else set()
            else:
                self.kind = 'salu'
                if mn.startswith(NODST_S):
                    self.rd = set().union(*R) if R else set()
                else:
                    self.wr = R[0]; self.rd = set().union(*R[1:]) if len(R) > 1 else set()
                    if 'saveexec' in mn:
                        self.wr = self.wr | {('exec', 0), ('exec', 1)}
                    if mn in ('s_addk_i32', 's_mulk_i32'): self.rd |= R[0]
                if mn == 's_nop': self.states = int(ops[0], 0) + 1
                if mn.startswith(('s_cbranch', 's_branch')): self.target = ops[0]
        else:
            raise ValueError('unknown instr ' + t)

    def is_trans(self): return re.sub(r'_(e32|e64)$', '', self.mn) in TRANS


def need(p, c):
    n = 0
    vp = {r for r in p.wr if r[0] in 'va'}
    if p.kind == 'valu':
        if c.kind == 'mfma' and vp & c.rd: n = max(n, 2)
        sw = {r for r in p.wr if r[0] in ('s', 'vcc')}
        if sw:
            if c.kind == 'vmem' and sw & c.rd: n = max(n, 5)
            if c.kind == 'valu' and sw & c.rd:
                n = max(n, 4 if c.mn.startswith(('v_readlane', 'v_writelane')) else 2)
            if c.kind in ('salu', 'smem') and sw & c.rd: n = max(n, 2)
            if c.kind == 'salu' and c.mn.startswith('s_cbranch_vcc') and ('vcc', 0) in sw: n = max(n, 2)
        if c.kind == 'valu' and vp & c.rd:
            if c.mn.startswith(('v_readfirstlane', 'v_readlane')): n = max(n, 1)
            if c.mn.startswith('v_permlane') or c.dpp: n = max(n, 2)
            if p.is_trans() and not c.is_trans(): n = max(n, 1)
            if p.is_trans() and c.is_trans(): n = max(n, 1)
        if p.sdwa and c.kind in ('valu',) and vp & (c.rd | c.wr): n = max(n, 1)
        if p.is_trans() and c.kind in ('vmem', 'ds') and vp & c.rd: n = max(n, 1)
        if any(r[0] == 'exec' for r in p.wr):
            if c.kind in ('valu', 'mfma'): n = max(n, 5)
    if p.kind == 'mfma':
        big = p.passes
        t_rw = {4: 8, 8: 12, 16: 20}[big]
        t_c = {4: 6, 8: 10, 16: 18}[big]
        t_war = {4: 3, 8: 7, 16: 15}[big]
        D = p.mD
        if c.kind == 'mfma':
            if D & (c.mA | c.mB): n = max(n, t_rw)
            if D & c.mC and not (D == c.mC and p.passes == c.passes): n = max(n, t_c)
            if D & c.mD and not (D == c.mD and p.passes == c.passes) and not (D & c.mC): n = max(n, t_c)
        elif c.kind in ('valu', 'vmem', 'ds'):
            if D & (c.rd | c.wr): n = max(n, t_rw)
            if c.kind == 'valu' and p.mC & c.wr: n = max(n, t_war)
            if c.kind in ('vmem', 'ds') and p.mC & c.wr: n = max(n, t_war)
    if p.kind == 'salu' and ('m0', 0) in p.wr:
        if c.kind == 'vmem' and c.lds: n = max(n, 1)
    if p.kind == 'salu' and any(r[0] == 'exec' for r in p.wr):
        if c.kind == 'valu' and (c.dpp or c.mn.startswith('v_permlane')): n = max(n, 2)
    if p.kind == 'vmem' and len(p.data) >= 3:
        if c.kind == 'valu' and p.data & c.wr: n = max(n, 2)
        elif c.kind in ('ds', 'vmem', 'mfma') and p.data & c.wr: n = max(n, 1)
    return n


def build_cfg(ins):
    labels = {x.label: i for i, x in enumerate(ins) if x.kind == 'label'}
    preds = [[] for _ in ins]
    for i, x in enumerate(ins):
        if i + 1 < len(ins) and not (x.mn == 's_branch' or x.mn == 's_endpgm'):
            preds[i + 1].append(i)
        if x.target is not None:
            preds[labels[x.target]].append(i)
    return labels, preds


def hazard_pass(lines, verbose=False):
    ins = [Ins(l) for l in lines]
    total = 0
    i = 0
    labels, preds = build_cfg(ins)
    while i < len(ins):
        c = ins[i]
        if c.kind in ('dir', 'label'):
            i += 1; continue
        worst = 0; why = None
        stack = [(p, 0) for p in preds[i]]
        seen = {}
        while stack:
            j, dist = stack.pop()
            if dist >= 20: continue
            if seen.get(j, 99) <= dist: continue
            seen[j] = dist
            p = ins[j]
            if p.kind not in ('dir', 'label'):
                n = need(p, c)
                if n - dist > worst: worst = n - dist; why = p.text
            for q in preds[j]: stack.append((q, dist + p.states))
        if worst > 0:
            k = worst
            new = []
            while k > 0:
                m = min(k, 16); new.append(Ins(f'  s_nop {m - 1}')); k -= m
            if verbose: print(f'hazard: +{worst} before [{c.text.strip()}] after [{why.strip()}]', file=sys.stderr)
            ins[i:i] = new
            total += worst
            labels, preds = build_cfg(ins)
            i += len(new)
        i += 1
    return [x.text for x in ins], total


def wait_check(lines, name=''):
    ins = [Ins(l) for l in lines]
    labels = {x.label: i for i, x in enumerate(ins) if x.kind == 'label'}
    errs = set()
    sys.setrecursionlimit(100000)
    work = [(0, (), (), ())]
    seen = set()
    steps = 0
    while work:
        i, vm, lg, visits = work.pop()
        vm = list(vm); lg = list(lg); visits = dict(visits)
        while i < len(ins):
            steps += 1
            if steps > 3000000:
                print('wait_check: too many steps', name, file=sys.stderr); return errs
            x = ins[i]
            if x.kind == 'label':
                visits[i] = visits.get(i, 0) + 1
                if visits[i] > 3: break
                key = (i, tuple(vm), tuple(lg))
                if key in seen: break
                seen.add(key)
            if x.kind in ('dir', 'label'):
                i += 1; continue
            touched = x.rd | x.wr
            for q, qn in ((vm, 'vm'), (lg, 'lgkm')):
                for (regs, txt, sm) in q:
                    if regs & touched:
                        errs.add(f'{name}: [{x.text.strip()}] touches pending {qn} dest of [{txt.strip()}]')
            if x.mn == 's_waitcnt':
                t = x.text.split(';')[0]
                m = re.search(r'vmcnt\((\d+)\)', t)
                if m:
                    n = int(m.group(1)); vm = vm[len(vm) - n:] if n < len(vm) and n > 0 else ([] if n == 0 else vm)
                m = re.search(r'lgkmcnt\((\d+)\)', t)
                if m:
                    n = int(m.group(1))
                    if n == 0: lg = []
                    elif not any(e[2] for e in lg):
                        if n < len(lg): lg = lg[len(lg) - n:]
            elif x.kind == 'vmem':
                vm.append((frozenset(x.wr), x.text, False))
                if len(vm) > 63: errs.add(f'{name}: vmcnt overflow (>63 outstanding) at [{x.text.strip()}]')
            elif x.kind == 'ds':
                lg.append((frozenset(x.wr), x.text, False))
            elif x.kind == 'smem':
                lg.append((frozenset(x.wr), x.text, True))
            if x.mn == 's_endpgm': break
            if x.target is not None:
                t = labels[x.target]
                if x.mn == 's_branch':
                    i = t; continue
                work.append((t, tuple(vm), tuple(lg), tuple(visits.items())))
            i += 1
    return errs


WT = {'k2_kernel': 'sc1', 'k34': 'sc1', 'k4_kernel': 'sc1', 'k5_kernel': 'sc1'}


class K:
    def __init__(self, name, vgpr, agpr=0, sgpr=96):
        self.name = name; self.lines = []; self.vgpr = vgpr; self.agpr = agpr; self.sgpr = sgpr
        self._lab = 0

    def __call__(self, s):
        for l in s.strip('\n').split('\n'):
            l = l.strip()
            if not l: continue
            if l.startswith('buffer_store') and 'sc1' not in l and ';plain' not in l and WT.get(getattr(self, 'wtname', self.name)):
                l = l + ' ' + WT[getattr(self, 'wtname', self.name)]
            self.lines.append(l if l.endswith(':') else '  ' + l)

    def stamp(self, i):
        m = getattr(self, 'smap', None)
        if m is not None:
            if i not in m: return
            i = m[i]
        self.lines.append(f'  ;STAMP {i}')

    def newlabel(self, p='L'):
        self._lab += 1
        return f'{p}_{self.name}_{self._lab}'

    def instrument(self, kidx):
        self.sgpr = 102
        head = ['  s_memrealtime s[92:93]', '  v_readfirstlane_b32 s91, v0', '  s_memtime s[84:85]', '  s_waitcnt lgkmcnt(0)']
        tail = f'''s_waitcnt vmcnt(0) lgkmcnt(0)
s_memrealtime s[94:95]
s_memtime s[86:87]
s_load_dwordx2 s[96:97], s[0:1], 112
s_lshr_b32 s91, s91, 6
s_and_b32 s91, s91, 15
s_lshl_b32 s90, s2, 4
s_add_u32 s91, s91, s90
s_add_u32 s91, s91, {kidx*16384}
s_lshl_b32 s91, s91, 4
s_waitcnt lgkmcnt(0)
s_add_u32 s96, s96, 0x3800000
s_addc_u32 s97, s97, 0
s_and_b32 s97, s97, 0xffff
s_mov_b32 s98, 0x400000
s_mov_b32 s99, 0x20000
s_sub_u32 s86, s86, s84
s_mov_b64 exec, 1
v_mov_b32 v0, s92
v_mov_b32 v1, s94
v_mov_b32 v2, s86
v_mov_b32 v3, 1
v_mov_b32 v4, 0
buffer_store_dwordx4 v[0:3], v4, s[96:99], s91 offen
s_add_u32 s96, s96, 0x400000
s_addc_u32 s97, s97, 0
s_mov_b32 s98, 0x800000
s_lshl_b32 s91, s91, 1
''' + ''.join(f's_sub_u32 s{68+2*i}, s{68+2*i}, s84\nv_mov_b32 v{8+i}, s{68+2*i}\n' for i in range(8)) + '''buffer_store_dwordx4 v[8:11], v4, s[96:99], s91 offen
buffer_store_dwordx4 v[12:15], v4, s[96:99], s91 offen offset:16
s_endpgm'''
        tail = tail.split('\n')
        new = list(head) + [f'  s_mov_b32 s{68+2*i}, s84' for i in range(8)]
        for l in self.lines:
            if l.strip().startswith(';RSTAMP'):
                sr = l.split()[1]
                new += ['  s_memrealtime s[88:89]', '  s_waitcnt lgkmcnt(0)', '  s_sub_u32 s88, s88, s92', '  s_add_u32 s88, s88, s84']
                for q in range(8):
                    new += [f'  s_cmp_eq_u32 {sr}, {q}', f'  s_cselect_b32 s{68+2*q}, s88, s{68+2*q}']
            elif l.strip().startswith(';STAMP'):
                i = int(l.split()[1])
                new += [f'  s_memtime s[{68+2*i}:{69+2*i}]', '  s_waitcnt lgkmcnt(0)']
            elif l.strip() == 's_endpgm': new += ['  ' + t for t in tail]
            else: new.append(l)
        self.lines = new

    def finish(self, verbose=False):
        lines, n = hazard_pass(self.lines, verbose)
        errs = wait_check(lines, self.name)
        for e in sorted(errs):
            if not (self.name=='k0_kernel' and 'v14' in e): print('WAITCHK', e, file=sys.stderr)
        mv = ma = ms = -1
        for l in lines:
            x = Ins(l)
            for r in x.rd | x.wr:
                if r[0] == 'v': mv = max(mv, r[1])
                if r[0] == 'a': ma = max(ma, r[1])
                if r[0] == 's': ms = max(ms, r[1])
        acc = (self.vgpr + 3) // 4 * 4
        assert mv < acc, (self.name, 'vgpr', mv)
        assert ma < self.agpr or ma < 0, (self.name, 'agpr', ma)
        assert ms < self.sgpr, (self.name, 'sgpr', ms)
        nfv = acc + self.agpr if self.agpr else self.vgpr
        head = f'.text\n.globl {self.name}\n.p2align 8\n.type {self.name},@function\n{self.name}:\n'
        tail = f'''.section .rodata,"a"
.p2align 6
.amdhsa_kernel {self.name}
  .amdhsa_next_free_vgpr {nfv}
  .amdhsa_next_free_sgpr {self.sgpr}
  .amdhsa_accum_offset {acc}
  .amdhsa_group_segment_fixed_size 0
  .amdhsa_kernarg_size 120
  .amdhsa_user_sgpr_count 2
  .amdhsa_user_sgpr_kernarg_segment_ptr 1
  .amdhsa_system_sgpr_workgroup_id_x 1
  .amdhsa_float_denorm_mode_32 3
.end_amdhsa_kernel
'''
        print(f'{self.name}: {len(lines)} lines, nops inserted {n}, maxv {mv} maxa {ma} maxs {ms}', file=sys.stderr)
        return head + '\n'.join(lines) + '\n' + tail
```

```python
from dsl import K
from common import *
from k4 import map_8x4_16x16, VM
from k1 import map_8x4_32x8
from k3 import lane_consts, epi_addr, load_modvec

SLOT = 36864
NEXT6 = 'k6_kernel'
LATE_N = 0


def ring_gemm(k, R, NST, SPS, NB, NA, a_load, b_rd, acc, areg, breg, pre_ops, npre, late_ops=None, opt=(), preA=False, preB=False, ldmod=''):
    assert NST % R == 0

    def stage_ops(slot):
        al = a_load(slot)
        head = ['s_mov_b32 s40, s11', 's_mov_b32 s41, s12']
        if SPS == 8: head.append('s_add_u32 s42, s40, 4096')
        d = []
        for c in range(9):
            g = []
            if c % 4 == 0:
                g.append(f's_add_u32 m0, s10, {slot*SLOT + c*1024}')
                g.append('s_add_u32 s41, s41, 4096' if c else f's_add_u32 s11, s11, {SPS*1024}')
            g.append(f'buffer_load_dwordx4 v2, s[28:31], s41 offen offset:{(c%4)*1024} {ldmod} lds')
            d.append(g)
        d[0] = head + d[0]
        d[1] = [f's_add_u32 s12, s12, {SLOT}'] + d[1]
        groups = []
        for i in range(9):
            groups.append(d[i])
            if i < 8: groups.append([al[i]])
        return groups
    for s in range(R - 1):
        for g in stage_ops(s):
            for o in g:
                if o.startswith('buffer_load') and ((preA and ' lds' not in o) or (preB and ' lds' in o)): continue
                k(o)
    pre_ops()
    k.stamp(0)
    per = 9 if preA else 8 if preB else 17
    k(f's_waitcnt vmcnt({per*(R-2)+npre})\ns_barrier')
    for o in b_rd(0, 0, 0): k(o)
    nm = SPS * NB * NA
    per_step = NB * NA
    pos = [(g * nm) // 17 for g in range(17)]
    first = [g for g in range(17) if pos[g] < per_step]
    g0 = stage_ops(R - 1)
    for g in first:
        for o in g0[g]: k(o)
    lab = k.newlabel('L_loop')
    k(f's_mov_b32 s43, 0\n.p2align 6\n{lab}:')
    nit = NST // R
    nlate = 0
    for it in ('loop', 'last'):
        for slot in range(R):
            stage = (nit - 1) * R + slot if it == 'last' else None
            cur = stage_ops((slot + R - 1) % R)
            nxt = stage_ops(slot)
            if it == 'last':
                if stage + R - 1 >= NST: cur = None
                nxt = None
            for st in range(SPS):
                par = st & 1
                lastst = st == SPS - 1
                k('s_waitcnt lgkmcnt(0)')
                if lastst:
                    if it == 'loop':
                        if per != 17 and slot < R - 3:
                            lz = k.newlabel('L_fst')
                            k(f's_cmp_lg_u32 s43, 0\ns_cbranch_scc1 {lz}\ns_waitcnt vmcnt({17*(slot+1)+per*(R-3-slot)})\n{lz}:')
                        k(f's_waitcnt vmcnt({17*(R-2)})')
                        k('s_barrier')
                        rds = b_rd((slot + 1) % R, 0, par ^ 1)
                    elif slot < R - 1:
                        k(f's_waitcnt vmcnt({17*(R-2-slot)+nlate})\ns_barrier')
                        rds = b_rd(slot + 1, 0, par ^ 1)
                    else:
                        rds = []
                else:
                    rds = b_rd(slot, st + 1, par ^ 1)
                late = []
                if it == 'last' and slot == 1 and st == 0 and late_ops:
                    late = late_ops(); nlate = len(late)
                ri = 0; mi = 0
                for j in range(NB):
                    for m in range(NA):
                        a = acc(j, m)
                        if 'nomfma' not in opt: k(f'v_mfma_f32_16x16x32_bf16 {a}, {breg(par, j)}, {areg(slot, st, m)}, {a}')
                        if ri < len(rds) and (m == 0) and 'nods' not in opt: k(rds[ri]); ri += 1
                        if late and m == NA - 1: k(late.pop(0))
                        w = mi if lastst else (st + 1) * per_step + mi
                        src = nxt if lastst else cur
                        for g in range(17):
                            if pos[g] == w and src is not None:
                                for o in src[g]: k(o)
                        mi += 1
                for o in late: k(o)
        if it == 'loop':
            k(f'''s_add_u32 s43, s43, 1
s_cmp_lt_u32 s43, {nit-1}
s_cbranch_scc1 {lab}''')


def k5_a_load(slot, so='s40'):
    return [f'buffer_load_dwordx4 a[{32*slot+8*st+4*m}:{32*slot+8*st+4*m+3}], v{2+m}, s[24:27], {so} offen offset:{st*1024}'
            for st in range(4) for m in range(2)]


def k5_prefetch_a(k):
    srd_ws(k, 24, 16, 'WSP')
    k('''v_add_u32 v3, 0x10000, v2
s_lshl_b32 s62, s4, 3
s_lshl_b32 s63, s3, 1
s_add_u32 s62, s62, s63
s_lshl_b32 s62, s62, 16''')
    for s in range(3):
        for o in k5_a_load(s, 's62'): k(o)
        k('s_add_u32 s62, s62, 4096')
    return 24


def gen_k5(opt=(), k=None):
    fused = k is not None
    ACC, Z = 64, 136
    if not fused:
        k = K('k5_kernel', vgpr=176, agpr=200, sgpr=64)
        k(f'''s_cmp_ge_u32 s2, 256
s_cbranch_scc1 L_k5_end
s_load_dwordx2 s[16:17], s[0:1], {A_WS}
s_load_dwordx2 s[58:59], s[0:1], {A_BSP}''')
        waveid(k, 3, 1)
        map_8x4_16x16(k, 4, 5, 6)
        k('''v_and_b32 v1, 63, v0
v_lshlrev_b32 v2, 4, v1''')
    k(f'''v_add_u32 v3, 0x10000, v2
v_add_u32 v4, {SLOT}, v2
v_add_u32 v5, {2*SLOT}, v2
v_add_u32 v6, {3*SLOT}, v2
s_lshl_b32 s8, s4, 3
s_lshl_b32 s9, s3, 1
s_add_u32 s8, s8, s9
s_lshl_b32 s11, s8, 16
s_mul_i32 s10, s3, 9216
s_mul_i32 s12, s5, {64*9216}
s_add_u32 s12, s12, s10
s_mov_b32 s15, 0
v_and_b32 v7, 15, v1
s_lshl_b32 s9, s8, 4
v_add_u32 v7, s9, v7
v_lshlrev_b32 v7, 1, v7
s_waitcnt lgkmcnt(0)''')
    srd_ws(k, 24, 16, 'WSP')
    srd_ws(k, 28, 16, 'Z2')
    srd_ws(k, 32, 16, 'Z1')
    srd_in(k, 36, 58, S * 2)
    k('''buffer_load_ushort v8, v7, s[36:39], 0 offen
buffer_load_ushort v9, v7, s[36:39], 0 offen offset:32''')
    acc_init = []
    for m in range(2):
        for i in range(36): acc_init.append(f'v_mov_b32 v{ACC+36*m+i}, v{8+m}')
    if fused:
        srd_ws(k, 20, 16, 'CNT')
        k('s_mov_b32 s13, s5')
        n = k5_prefetch_a(k)
        signal(k, 20, 13, 10, young=n)
        k('v_lshlrev_b32 v8, 16, v8\nv_lshlrev_b32 v9, 16, v9')
        for o in acc_init: k(o)
        k('s_and_b32 s13, s5, 14')
        k.stamp(5)
        await_(k, 20, 13, 2, 16, 10, 14)
        k.stamp(6)
    base = [2, 4, 5, 6]
    ld = ' sc1' if fused else ''

    def b_rd(slot, st, par):
        return [f'ds_read_b128 a[{128+36*par+4*j}:{128+36*par+4*j+3}], v{base[slot]} offset:{st*9216+j*1024}' for j in range(9)]

    def pre_ops():
        k(f'''s_mul_i32 s44, s5, 9
s_add_u32 s44, s44, 1
s_lshr_b32 s44, s44, 1
s_and_b32 s45, s5, 1
s_cmp_eq_u32 s45, 1
s_cselect_b32 s46, -1, 4
s_add_u32 s46, s46, s44
s_mul_i32 s47, s8, 72
s_add_u32 s44, s44, s47
s_lshl_b32 s44, s44, 10
s_add_u32 s46, s46, s47
s_lshl_b32 s46, s46, 10
s_lshl_b32 s45, s45, 3
s_add_u32 s46, s46, s45
s_add_u32 s45, s44, {72*1024}
s_add_u32 s47, s46, {72*1024}''')
        if not fused:
            k('''s_waitcnt vmcnt(51)
v_lshlrev_b32 v8, 16, v8
v_lshlrev_b32 v9, 16, v9''')
            for o in acc_init: k(o)

    def late_ops():
        o = []
        for m in range(2):
            for b in range(4):
                o.append(f'buffer_load_dwordx4 v[{Z+18*m+4*b}:{Z+18*m+4*b+3}], v2, s[32:35], s{44+m} offen offset:{b*1024}{ld}')
            o.append(f'buffer_load_dwordx2 v[{Z+18*m+16}:{Z+18*m+17}], v2, s[32:35], s{46+m} offen{ld}')
        return o
    ring_gemm(k, 4, 16, 4, 9, 2, k5_a_load, b_rd,
              lambda j, m: f'v[{ACC+36*m+4*j}:{ACC+36*m+4*j+3}]',
              lambda slot, st, m: f'a[{32*slot+8*st+4*m}:{32*slot+8*st+4*m+3}]',
              lambda par, j: f'a[{128+36*par+4*j}:{128+36*par+4*j+3}]', pre_ops, 0, late_ops, opt,
              preA=fused, ldmod=ld.strip())
    k.stamp(1)
    if fused:
        k(f's_waitcnt vmcnt({LATE_N}) lgkmcnt(0)')
    else:
        k(f's_waitcnt vmcnt({LATE_N}) lgkmcnt(0)')
        code_prefetch(k, NEXT6, 1, 20, 48, swave=3)
    for m in range(2):
        for i in range(18):
            t = 10 + 2 * (i & 3)
            a = ACC + 36 * m + 2 * i
            unpack(k, t, Z + 18 * m + i)
            k(f'''v_pk_mul_f32 v[{a}:{a+1}], v[{a}:{a+1}], v[{t}:{t+1}]
v_cvt_pk_bf16_f32 v{Z+18*m+i}, v{a}, v{a+1}''')
            if i % 4 == 3: k(f'buffer_store_dwordx4 v[{Z+18*m+i-3}:{Z+18*m+i}], v2, s[32:35], s{44+m} offen offset:{(i//4)*1024}')
        k(f'buffer_store_dwordx2 v[{Z+18*m+16}:{Z+18*m+17}], v2, s[32:35], s{46+m} offen')
    if fused: return
    k('''L_k5_end:
s_endpgm''')
    return k, f'; @launch kernel=k5_kernel grid=(256,1,1) block=(256,1,1) lds={4*SLOT}'
```

```python
from dsl import K
from common import *
from k1 import map_8x4_32x8
from k3 import lane_consts, epi_addr, modvec_load, modvec_spread
from k5 import ring_gemm, SLOT


def k6_prefetch_b(k):
    map_8x4_32x8(k, 48, 49, 50)
    srd_ws(k, 52, 16, 'WOUT')
    k(f'''s_mul_i32 s50, s49, {72*4608}
s_add_u32 s50, s50, s10''')
    for s in range(2):
        for c in range(9):
            if c % 4 == 0:
                k(f's_add_u32 m0, s10, {s*SLOT+c*1024}\ns_add_u32 s51, s50, {s*SLOT+c*1024}')
            k(f'buffer_load_dwordx4 v2, s[52:55], s51 offen offset:{(c%4)*1024} lds')


def gen_k6(k=None):
    fused = k is not None
    ACC, XR, GB, AR, BF, MV = 40, 20, 208, 64, 160, 32
    if not fused:
        k = K('k6_kernel', vgpr=232, sgpr=64)
        k(f'''s_cmp_ge_u32 s2, 256
s_cbranch_scc1 L_k6_end
s_load_dwordx2 s[16:17], s[0:1], {A_WS}
s_load_dwordx2 s[60:61], s[0:1], {A_OUT}''')
        waveid(k, 3, 1)
        map_8x4_32x8(k, 4, 5, 6)
    else:
        k('s_add_u32 s13, s4, 16')
        k6_prefetch_b(k)
        signal(k, 20, 13, 10, young=18)
        k('s_mov_b32 s4, s48\ns_mov_b32 s5, s49')
    lane_consts(k)
    k('''s_lshl_b32 s8, s4, 2
s_add_u32 s8, s8, s3''')
    epi_addr(k, 8, 5)
    k(f'''v_add_u32 v3, {SLOT}, v2
v_add_u32 v4, {2*SLOT}, v2
v_add_u32 v6, {SLOT}, v5
v_add_u32 v16, {2*SLOT}, v5
s_mul_i32 s11, s8, {72*1024}
s_mul_i32 s10, s3, 9216
s_mul_i32 s12, s5, {72*4608}
s_add_u32 s12, s12, s10
s_mov_b32 s15, 0
s_waitcnt lgkmcnt(0)''')
    srd_ws(k, 24, 16, 'Z1')
    srd_ws(k, 28, 16, 'WOUT')
    srd_ws(k, 32, 16, 'MODF')
    srd_ws(k, 36, 16, 'X1')
    full = [2, 3, 4]; half = [5, 6, 16]
    ld = ' sc1' if fused else ''

    def extras():
        k(f'''buffer_load_dwordx4 v[{XR}:{XR+3}], v12, s[36:39], 0 offen
buffer_load_dwordx4 v[{XR+4}:{XR+7}], v12, s[36:39], 0 offen offset:2048
buffer_load_dwordx2 v[{XR+8}:{XR+9}], v13, s[36:39], 0 offen''')
        modvec_load(k, 32, (5, 5), 5, 36, MV)
        for i in range(20): k(f'v_mov_b32 v{ACC+i}, 0')
    if fused:
        extras()
        k('s_lshr_b32 s13, s4, 1\ns_add_u32 s13, s13, 16')
        k.stamp(2)
        await_(k, 20, 13, 1, 16, 38, 14)
        k.stamp(3)

    def a_load(slot):
        return [f'buffer_load_dwordx4 v[{AR+32*slot+4*st}:{AR+32*slot+4*st+3}], v2, s[24:27], {"s40" if st<4 else "s42"} offen offset:{(st%4)*1024}{ld}'
                for st in range(8)]

    def b_rd(slot, st, par):
        return [f'ds_read_b128 v[{BF+20*par+4*j}:{BF+20*par+4*j+3}], v{(full if j<4 else half)[slot]} offset:{st*4608+j*1024}' for j in range(5)]
    ring_gemm(k, 3, 9, 8, 5, 1, a_load, b_rd,
              lambda j, m: f'v[{ACC+4*j}:{ACC+4*j+3}]',
              lambda slot, st, m: f'v[{AR+32*slot+4*st}:{AR+32*slot+4*st+3}]',
              lambda par, j: f'v[{BF+20*par+4*j}:{BF+20*par+4*j+3}]', (lambda: None) if fused else extras, 0 if fused else 4,
              preB=fused)
    k.stamp(4 if fused else 1)
    k('s_waitcnt lgkmcnt(0)')
    modvec_spread(k, MV, 3 * SLOT, (GB,), 36)
    srd_in(k, 24, 60, S * D * 2)
    U = 208 - 24
    for j in range(10): unpack(k, U + 2 * j, XR + j)
    k('s_waitcnt lgkmcnt(0)')
    for j in range(10):
        k(f'v_pk_fma_f32 v[{U+2*j}:{U+2*j+1}], v[{ACC+2*j}:{ACC+2*j+1}], v[{GB+2*j}:{GB+2*j+1}], v[{U+2*j}:{U+2*j+1}]')
    for j in range(10): k(f'v_cvt_pk_bf16_f32 v{XR+j}, v{U+2*j}, v{U+2*j+1}')
    k(f'''buffer_store_dwordx4 v[{XR}:{XR+3}], v10, s[24:27], 0 offen ;plain
buffer_store_dwordx4 v[{XR+4}:{XR+7}], v10, s[24:27], 0 offen offset:64 ;plain
buffer_store_dwordx2 v[{XR+8}:{XR+9}], v11, s[24:27], 0 offen ;plain''')
    if fused: return
    k('''L_k6_end:
s_endpgm''')
    return k, f'; @launch kernel=k6_kernel grid=(256,1,1) block=(256,1,1) lds={3*SLOT+4096}'


def gen_k45(view=0):
    import k4, k5
    k = K('k4_kernel', vgpr=232, agpr=200, sgpr=68)
    k.smap = {7: 0, 3: 1}
    k4.gen_k4(k=k)
    k.smap = {10: 3, 11: 4, 5: 5, 6: 6, 0: 7, 1: 2}
    k5.gen_k5(k=k)
    code_prefetch(k, 'k6_kernel', 1, 20, 48, swave=3)
    k('''L_k4_end:
s_endpgm''')
    return k, f'; @launch kernel=k4_kernel grid=(256,1,1) block=(256,1,1) lds={4*SLOT+9216}'


def gen_k456(view=0, pa=True):
    import k4, k5
    k = K('k4_kernel', vgpr=232, agpr=200, sgpr=68)
    k.smap = {7: 0, 3: 1, 4: 2} if view == 0 else {}
    k4.gen_k4(k=k)
    k.smap = {10: 3, 11: 4, 5: 5, 6: 6, 0: 7} if view == 0 else {1: 0}
    k5.gen_k5(k=k)
    k.smap = {} if view == 0 else {10: 1, 11: 2, 2: 3, 3: 4, 0: 5, 4: 6}
    gen_k6(k=k)
    k('''L_k4_end:
s_endpgm''')
    return k, f'; @launch kernel=k4_kernel grid=(256,1,1) block=(256,1,1) lds={4*SLOT+9216}'
```

```python
import sys
sys.path.insert(0,'gen')
from build import build
import k0,k1,kp,k2,k3,k4,k5,k6
build([k0.gen_k0(),k1.gen_k1(),k2.gen_k2(kp.helpers),k3.gen_k3(),k4.gen_k4(),k5.gen_k5(),k6.gen_k6()],'v5.s')
build([k0.gen_k0(),k1.gen_k1(),k2.gen_k2(kp.helpers),k3.gen_k3(),k6.gen_k45(),k6.gen_k6()],'v5a.s')
build([k0.gen_k0(),k1.gen_k1(),k2.gen_k2(kp.helpers),k3.gen_k3(),k6.gen_k456(1)],'v5b.s')
```

```python
import struct
S = 2048; D = 576; FH = 2304
A_X, A_WQ, A_WK, A_WV, A_WO, A_BX, A_WIN, A_WSP, A_BSP, A_WOUT, A_C, A_WMOD, A_OUT, A_DBG, A_WS = [8 * i for i in range(15)]
WS = dict(
    MODP=(0x00000, 3 * 3456 * 4),
    MODF=(0x10000, 3456 * 4),
    MODB=(0x14000, 2 * 576 * 2),
    KMAX=(0x18000, 128 * 4 * 4),
    CNT=(0x1A000, 128 * 128),
    KV=(0x20000, 64 * 2368),
    ST1=(0x80000, 2048 * 8 * 8),
    ST2=(0xC0000, 16 * 16 * 128 * 8),
    XN=(0x100000, S * D * 2),
    Q=(0x400000, S * D * 2),
    O=(0x700000, S * D * 2),
    X1=(0xA00000, S * D * 2),
    XG=(0xD00000, S * D * 2),
    WQKV=(0x1000000, 8 * 18 * 5 * 1024),
    WO=(0x1100000, 8 * 18 * 4608),
    WIN=(0x1200000, 144 * 37 * 1024),
    WOUT=(0x1800000, 8 * 72 * 4608),
    WSP=(0x1B00000, S * S * 2),
    Z1=(0x2400000, S * FH * 2),
    Z2=(0x2D00000, S * FH * 2),
)
OOB = 0x7ff00000


def f2u(x): return struct.unpack('<I', struct.pack('<f', x))[0]
def fhex(x): return hex(f2u(x))


def srd_in(k, s, ptr, nbytes):
    k(f'''s_mov_b32 s{s}, s{ptr}
s_and_b32 s{s+1}, s{ptr+1}, 0xffff
s_mov_b32 s{s+2}, {nbytes}
s_mov_b32 s{s+3}, 0x20000''')


def srd_ws(k, s, ptr, region):
    off, n = WS[region]
    k(f'''s_add_u32 s{s}, s{ptr}, {off}
s_addc_u32 s{s+1}, s{ptr+1}, 0
s_and_b32 s{s+1}, s{s+1}, 0xffff
s_mov_b32 s{s+2}, {n}
s_mov_b32 s{s+3}, 0x20000''')


def waveid(k, sdst, vtmp):
    k(f'''v_lshrrev_b32 v{vtmp}, 6, v0
v_readfirstlane_b32 s{sdst}, v{vtmp}''')


def unpack(k, dlo, src):
    k(f'''v_lshlrev_b32 v{dlo}, 16, v{src}
v_and_b32 v{dlo+1}, 0xffff0000, v{src}''')


def sum16(k, v):
    for r in (8, 4, 2, 1):
        k(f'v_add_f32_dpp v{v}, v{v}, v{v} row_ror:{r} row_mask:0xf bank_mask:0xf')


def xadd16(k, v, t, op='add'):
    k(f'''v_mov_b32 v{t}, v{v}
v_permlane16_swap_b32 v{v}, v{t}
v_{op}_f32 v{v}, v{v}, v{t}''')


def xadd32(k, v, t, op='add'):
    k(f'''v_mov_b32 v{t}, v{v}
v_permlane32_swap_b32 v{v}, v{t}
v_{op}_f32 v{v}, v{v}, v{t}''')


PREFETCH = True


def code_prefetch(k, target, vlane, vt, s0, nwg=16, swave=None):
    if not PREFETCH: return
    lab = k.newlabel('L_pf'); skip = k.newlabel('L_pfs')
    k(f's_cmp_ge_u32 s2, {nwg}\ns_cbranch_scc1 {skip}')
    if swave is not None: k(f's_cmp_lg_u32 s{swave}, 0\ns_cbranch_scc1 {skip}')
    k(f'''s_getpc_b64 s[{s0}:{s0+1}]
{lab}:
s_add_u32 s{s0}, s{s0}, {target}-{lab}
s_addc_u32 s{s0+1}, s{s0+1}, SIGN_{target}_{k.name}
s_and_b32 s{s0+1}, s{s0+1}, 0xffff
s_mov_b32 s{s0+2}, L_end_{target}-{target}
s_mov_b32 s{s0+3}, 0x20000
v_lshlrev_b32 v{vt}, 7, v{vlane}''')
    k(f'buffer_load_dword v{vt+1}, v{vt}, s[{s0}:{s0+3}], 0 offen')
    k(f'{skip}:')


def signal(k, srd, sline, vt, wait=True, young=0):
    lab = k.newlabel('L_sig')
    k.stamp(10)
    if wait: k(f's_waitcnt vmcnt({young})')
    k.stamp(11)
    k(f'''s_barrier
s_cmp_lg_u32 s3, 0
s_cbranch_scc1 {lab}
s_lshl_b32 s{sline}, s{sline}, 7
v_mov_b32 v{vt}, 1
v_mov_b32 v{vt+1}, 0
s_mov_b64 exec, 1
buffer_atomic_add v{vt}, v{vt+1}, s[{srd}:{srd+3}], s{sline} offen
s_mov_b64 exec, -1
{lab}:''')


def await_(k, srd, sline, n, target, vt, st, barrier=True):
    lab = k.newlabel('L_aw'); lp = k.newlabel('L_awl')
    k(f'''s_cmp_lg_u32 s3, 0
s_cbranch_scc1 {lab}
s_lshl_b32 s{sline}, s{sline}, 7
v_lshlrev_b32 v{vt}, 7, v1
s_mov_b32 s{st}, 0
s_mov_b64 exec, {(1 << n) - 1}
{lp}:
s_sleep {AWSLP}
buffer_load_dword v{vt+1}, v{vt}, s[{srd}:{srd+3}], s{sline} offen sc1
s_add_u32 s{st}, s{st}, 1
s_waitcnt vmcnt(0)
v_cmp_gt_u32 vcc, {target}, v{vt+1}
s_cmp_lt_u32 s{st}, 0x80000
s_cselect_b64 vcc, vcc, 0
s_cbranch_vccnz {lp}
s_mov_b64 exec, -1
{lab}:''')
    if barrier: k('s_barrier')


AWSLP = 12
```

```python
from dsl import K
from common import *

LOG2E = 1.4426950408889634
N_MOD, N_LN, N_WQ = 162, 256, 36
K0_GRID = N_MOD + N_LN + N_WQ
TP_RS = 176
TP_WAVE = 32 * TP_RS


def tprep_lane(k, vlane, vsrc, vlds, vt, sldsbase, wo_step=None):
    for i in range(5):
        k(f'''v_add_u32 v{vt}, {64*i}, v{vlane}
v_mul_u32_u24 v{vt+1}, 57, v{vt}
v_lshrrev_b32 v{vt+1}, 9, v{vt+1}
v_mul_u32_u24 v{vt+2}, 9, v{vt+1}
v_sub_u32 v{vt+2}, v{vt}, v{vt+2}
v_lshlrev_b32 v{vt+2}, 4, v{vt+2}
v_mul_u32_u24 v{vlds+i}, {TP_RS}, v{vt+1}
v_add3_u32 v{vlds+i}, v{vlds+i}, v{vt+2}, s{sldsbase}''')
        if wo_step is not None:
            k(f'''v_lshrrev_b32 v{vt+3}, 4, v{vt+1}
v_mul_u32_u24 v{vt+3}, 18, v{vt+3}
v_and_b32 v{vt+4}, 15, v{vt+1}
v_add_u32 v{vt+3}, v{vt+3}, v{vt+4}
s_mul_i32 s{wo_step+1}, s{wo_step}, 36
v_add_u32 v{vt+3}, s{wo_step+1}, v{vt+3}
v_lshrrev_b32 v{vt+4}, 1, v{vt+1}
s_sub_u32 s{wo_step+1}, s{wo_step}, 16
s_lshl_b32 s{wo_step+1}, s{wo_step+1}, 4
v_add_u32 v{vt+4}, s{wo_step+1}, v{vt+4}
v_mul_u32_u24 v{vt+4}, 18, v{vt+4}
v_and_b32 v{vt+5}, 1, v{vt+1}
v_add3_u32 v{vt+4}, v{vt+4}, v{vt+5}, 16
s_cmp_ge_u32 s{wo_step}, 16
s_cselect_b64 vcc, -1, 0
v_cndmask_b32 v{vt+1}, v{vt+3}, v{vt+4}, vcc''')
        k(f'''v_mul_u32_u24 v{vsrc+i}, 1152, v{vt+1}
v_add_u32 v{vsrc+i}, v{vsrc+i}, v{vt+2}''')
    k(f'''v_cmp_gt_u32 vcc, 32, v{vlane}
v_mov_b32 v{vt}, {OOB}
v_cndmask_b32 v{vsrc+4}, v{vt}, v{vsrc+4}, vcc
v_and_b32 v{vt}, 31, v{vlane}
v_mul_u32_u24 v{vt}, {TP_RS}, v{vt}
v_add_u32 v{vt}, 160, v{vt}
v_add_u32 v{vt}, s{sldsbase}, v{vt}
v_cndmask_b32 v{vlds+4}, v{vt}, v{vlds+4}, vcc''')


def tprep_rdaddr(k, vlane, vxy, vnat, vt, sldsbase):
    k(f'''v_lshrrev_b32 v{vt}, 4, v{vlane}
v_lshlrev_b32 v{vt}, 3, v{vt}
v_bfe_u32 v{vt+1}, v{vlane}, 2, 2
v_add_u32 v{vt}, v{vt}, v{vt+1}
v_mul_u32_u24 v{vt}, {TP_RS}, v{vt}
v_add_u32 v{vt}, s{sldsbase}, v{vt}
v_and_b32 v{vt+1}, 3, v{vlane}
v_lshl_add_u32 v{vxy}, v{vt+1}, 4, v{vt}
v_lshl_add_u32 v{vnat}, v{vt+1}, 3, v{vt}''')


def tprep_read(k, vxy, vnat, vd):
    for j in range(4):
        o = (j >> 1) * 64 + (j & 1) * 8
        k(f'''ds_read_b64_tr_b16 v[{vd+4*j}:{vd+4*j+1}], v{vxy} offset:{o}
ds_read_b64_tr_b16 v[{vd+4*j+2}:{vd+4*j+3}], v{vxy} offset:{o+4*TP_RS}''')
    k(f'''ds_read_b64_tr_b16 v[{vd+16}:{vd+17}], v{vnat} offset:128
ds_read_b64_tr_b16 v[{vd+18}:{vd+19}], v{vnat} offset:{128+4*TP_RS}''')


def gen_k0(tlb=False, stride=20):
    k = K('k0_kernel', vgpr=64, sgpr=48)
    k(f'''s_cmp_ge_u32 s2, {K0_GRID}
s_cbranch_scc1 L_k0_end
s_load_dwordx8 s[4:11], s[0:1], 0
s_load_dwordx4 s[12:15], s[0:1], {A_C}
s_load_dwordx2 s[16:17], s[0:1], {A_WS}''')
    waveid(k, 3, 1)
    k('v_and_b32 v1, 63, v0')
    code_prefetch(k, 'k0_kernel', 1, 60, 40, nwg=1024, swave=3)
    code_prefetch(k, 'k1_kernel', 1, 62, 40, nwg=16, swave=3)
    if tlb:
        k(f'''s_cmp_ge_u32 s2, 16
s_cbranch_scc1 L_k0_notlb
s_cmp_lg_u32 s3, 1
s_cbranch_scc1 L_k0_notlb
s_load_dwordx2 s[20:21], s[0:1], {A_WO}
s_load_dwordx4 s[24:27], s[0:1], {A_WIN}
s_load_dwordx4 s[28:31], s[0:1], {A_BSP}
s_load_dwordx2 s[32:33], s[0:1], {A_OUT}
v_lshlrev_b32 v58, {stride}, v1
s_waitcnt lgkmcnt(0)''')
        for ptr, n in ((16, 0x3600000), (20, 576*576*2), (24, 576*4608*2), (26, S*S*2), (28, S*2), (30, 2304*576*2), (32, S*D*2)):
            srd_in(k, 40, ptr, n)
            k('buffer_load_dword v59, v58, s[40:43], 0 offen')
        k('L_k0_notlb:')
    k(f'''s_waitcnt lgkmcnt(0)
s_cmp_ge_u32 s2, {N_MOD}
s_cbranch_scc1 L_k0_ln''')
    srd_in(k, 20, 14, 576 * 3456 * 2)
    srd_in(k, 24, 12, 576 * 2)
    srd_ws(k, 28, 16, 'MODP')
    k(f'''s_cmp_ge_u32 s2, 54
s_cselect_b32 s18, 1, 0
s_cmp_ge_u32 s2, 108
s_cselect_b32 s18, 2, s18
s_mul_i32 s19, s18, 54
s_sub_u32 s19, s2, s19
s_mul_i32 s32, s18, 192
s_mul_i32 s33, s3, 48
s_add_u32 s32, s32, s33
v_lshrrev_b32 v2, 3, v1
v_add_u32 v2, s32, v2
v_lshlrev_b32 v3, 1, v2
s_movk_i32 s33, 6912
v_mul_lo_u32 v2, v2, s33
v_and_b32 v4, 7, v1
s_lshl_b32 s33, s19, 7
v_lshl_add_u32 v4, v4, 4, s33
v_add_u32 v2, v2, v4''')
    for i in range(6):
        k(f'buffer_load_ushort v{8+i}, v3, s[24:27], 0 offen offset:{16*i}')
    for i in range(6):
        k(f'''s_mov_b32 s33, {i*8*6912}
buffer_load_dwordx4 v[{16+4*i}:{19+4*i}], v2, s[20:23], s33 offen''')
    for j in range(8): k(f'v_mov_b32 v{40+j}, 0')
    k('s_waitcnt vmcnt(6)')
    for i in range(6):
        k(f'''v_lshlrev_b32 v{8+i}, 16, v{8+i}
v_mul_f32 v5, {fhex(-LOG2E)}, v{8+i}
v_exp_f32 v5, v5
v_add_f32 v5, 1.0, v5
v_rcp_f32 v5, v5
v_mul_f32 v5, v5, v{8+i}
v_cvt_pk_bf16_f32 v5, v5, v5
v_lshlrev_b32 v{8+i}, 16, v5''')
    for i in range(6):
        k(f's_waitcnt vmcnt({5-i})')
        for j in range(4):
            unpack(k, 6, 16 + 4 * i + j)
            k(f'''v_fmac_f32 v{40+2*j}, v{8+i}, v6
v_fmac_f32 v{41+2*j}, v{8+i}, v7''')
    for j in range(8):
        k(f'v_add_f32_dpp v{40+j}, v{40+j}, v{40+j} row_ror:8 row_mask:0xf bank_mask:0xf')
    for j in range(8): xadd16(k, 40 + j, 48 + j)
    for j in range(8): xadd32(k, 40 + j, 48 + j)
    k(f'''s_lshl_b32 s33, s3, 8
v_lshl_add_u32 v5, v1, 5, s33
s_mov_b64 exec, 0xff
ds_write_b128 v5, v[40:43]
ds_write_b128 v5, v[44:47] offset:16
s_mov_b64 exec, -1
s_waitcnt lgkmcnt(0)
s_barrier
s_cmp_lg_u32 s3, 0
s_cbranch_scc1 L_k0_end
v_lshlrev_b32 v5, 2, v1
ds_read_b32 v8, v5
ds_read_b32 v9, v5 offset:256
ds_read_b32 v10, v5 offset:512
ds_read_b32 v11, v5 offset:768
s_mul_i32 s33, s18, {3456*4}
s_lshl_b32 s34, s19, 8
s_add_u32 s33, s33, s34
s_waitcnt lgkmcnt(0)
v_add_f32 v8, v8, v9
v_add_f32 v10, v10, v11
v_add_f32 v8, v8, v10
buffer_store_dword v8, v5, s[28:31], s33 offen
s_endpgm''')
    k(f'''L_k0_ln:
s_cmp_ge_u32 s2, {N_MOD+N_LN}
s_cbranch_scc1 L_k0_wq
s_sub_u32 s18, s2, {N_MOD}''')
    srd_in(k, 20, 4, S * D * 2)
    srd_ws(k, 24, 16, 'XN')
    k(f'''s_lshl_b32 s19, s18, 3
s_lshl_b32 s32, s3, 1
s_add_u32 s19, s19, s32
v_lshrrev_b32 v2, 5, v1
v_add_u32 v2, s19, v2
v_and_b32 v3, 31, v1
v_mul_u32_u24 v4, 1152, v2
v_lshl_add_u32 v4, v3, 4, v4
v_cmp_gt_u32 vcc, 24, v3
v_mov_b32 v5, {OOB}
v_cndmask_b32 v4, v5, v4, vcc
buffer_load_dwordx4 v[8:11], v4, s[20:23], 0 offen
buffer_load_dwordx4 v[12:15], v4, s[20:23], 0 offen offset:384
buffer_load_dwordx4 v[16:19], v4, s[20:23], 0 offen offset:768
v_lshrrev_b32 v6, 4, v2
v_mul_u32_u24 v6, 18, v6
v_lshrrev_b32 v7, 2, v3
v_add_u32 v6, v6, v7
v_lshlrev_b32 v6, 6, v6
v_and_b32 v7, 3, v3
v_lshl_add_u32 v6, v7, 4, v6
v_and_b32 v7, 15, v2
v_add_u32 v6, v6, v7
v_lshlrev_b32 v6, 4, v6
v_cndmask_b32 v6, v5, v6, vcc''')
    srd_ws(k, 28, 16, 'ST2')
    srd_ws(k, 32, 16, 'KV')
    k(f'''s_cmp_lg_u32 s3, 0
s_cbranch_scc1 L_k0_nos
v_mov_b32 v20, -1
v_mov_b32 v21, -1
v_mov_b32 v22, -1
v_mov_b32 v23, -1
v_lshlrev_b32 v7, 4, v1
s_lshl_b32 s36, s18, 10
buffer_store_dwordx4 v[20:23], v7, s[28:31], s36 offen
L_k0_nos:
s_cmp_lg_u32 s3, 1
s_cbranch_scc1 L_k0_noo
v_mov_b32 v24, 0x3f803f80
v_mov_b32 v25, 0x3f803f80
v_mov_b32 v26, 0x3f803f80
v_mov_b32 v27, 0x3f803f80
s_lshr_b32 s36, s18, 4
s_mul_i32 s36, s36, 9472
s_bfe_u32 s37, s18, 0x20002
s_mul_i32 s37, s37, 2240
s_add_u32 s36, s36, s37
s_and_b32 s37, s18, 3
s_mul_i32 s37, s37, 304
s_add_u32 s36, s36, s37
s_add_u32 s36, s36, {1024+18*16}
v_cmp_eq_u32 vcc, 0, v1
v_cndmask_b32 v7, v5, v1, vcc
buffer_store_dwordx4 v[24:27], v7, s[32:35], s36 offen
L_k0_noo:
s_cmp_lg_u32 s3, 2
s_cbranch_scc1 L_k0_noc
s_cmp_ge_u32 s18, 16
s_cbranch_scc1 L_k0_noc''')
    srd_ws(k, 28, 16, 'CNT')
    k('''v_mov_b32 v20, 0
v_mov_b32 v21, 0
v_mov_b32 v22, 0
v_mov_b32 v23, 0
v_lshlrev_b32 v7, 4, v1
s_lshl_b32 s36, s18, 10
buffer_store_dwordx4 v[20:23], v7, s[28:31], s36 offen
L_k0_noc:
s_cmp_lg_u32 s3, 3
s_cbranch_scc1 L_k0_nod
s_cmp_ge_u32 s18, 128
s_cbranch_scc1 L_k0_nod''')
    srd_ws(k, 28, 16, 'ST1')
    k('''v_mov_b32 v20, -1
v_mov_b32 v21, -1
v_mov_b32 v22, -1
v_mov_b32 v23, -1
v_lshlrev_b32 v7, 4, v1
s_lshl_b32 s36, s18, 10
buffer_store_dwordx4 v[20:23], v7, s[28:31], s36 offen
L_k0_nod:
s_waitcnt vmcnt(0)''')
    for j in range(12): unpack(k, 32 + 2 * j, 8 + j)
    k('''v_pk_add_f32 v[20:21], v[32:33], v[34:35]
v_pk_mul_f32 v[22:23], v[32:33], v[32:33]
v_pk_fma_f32 v[22:23], v[34:35], v[34:35], v[22:23]''')
    for j in range(2, 12):
        k(f'''v_pk_add_f32 v[20:21], v[20:21], v[{32+2*j}:{33+2*j}]
v_pk_fma_f32 v[22:23], v[{32+2*j}:{33+2*j}], v[{32+2*j}:{33+2*j}], v[22:23]''')
    k('''v_add_f32 v20, v20, v21
v_add_f32 v22, v22, v23''')
    for r in (8, 4, 2, 1):
        k(f'''v_add_f32_dpp v20, v20, v20 row_ror:{r} row_mask:0xf bank_mask:0xf
v_add_f32_dpp v22, v22, v22 row_ror:{r} row_mask:0xf bank_mask:0xf''')
    xadd16(k, 20, 21); xadd16(k, 22, 23)
    k(f'''v_mul_f32 v20, {fhex(1/576)}, v20
v_mul_f32 v22, {fhex(1/576)}, v22
v_fma_f32 v22, -v20, v20, v22
v_max_f32 v22, 0, v22
v_add_f32 v22, {fhex(1e-5)}, v22
v_rsq_f32 v22, v22
v_mul_f32 v20, v20, v22
v_sub_f32 v20, 0, v20''')
    for j in range(12):
        k(f'''v_pk_fma_f32 v[{32+2*j}:{33+2*j}], v[{32+2*j}:{33+2*j}], v[22:23], v[20:21] op_sel_hi:[1,0,0]
v_cvt_pk_bf16_f32 v{8+j}, v{32+2*j}, v{33+2*j}''')
    k('''s_movk_i32 s36, 6144
s_movk_i32 s37, 12288
buffer_store_dwordx4 v[8:11], v6, s[24:27], 0 offen
buffer_store_dwordx4 v[12:15], v6, s[24:27], s36 offen
buffer_store_dwordx4 v[16:19], v6, s[24:27], s37 offen
s_endpgm''')
    k(f'''L_k0_wq:
s_sub_u32 s18, s2, {N_MOD+N_LN}
s_lshl_b32 s18, s18, 2
s_add_u32 s18, s18, s3
s_mul_i32 s19, s18, 57
s_lshr_b32 s19, s19, 10
s_mul_i32 s36, s19, 18
s_sub_u32 s36, s18, s36
s_mul_i32 s37, s3, {TP_WAVE}''')
    srd_in(k, 20, 6, 576 * 576 * 2)
    srd_in(k, 24, 8, 576 * 18 * 2)
    srd_in(k, 28, 10, 576 * 18 * 2)
    srd_ws(k, 32, 16, 'WQKV')
    tprep_lane(k, 1, 2, 8, 14, 37)
    k(f'''s_mul_i32 s38, s36, {32*1152}
s_mul_i32 s39, s19, 144
s_add_u32 s38, s38, s39''')
    for i in range(5):
        k(f'buffer_load_dwordx4 v[{20+4*i}:{23+4*i}], v{2+i}, s[20:23], s38 offen')
    k(f'''v_mul_u32_u24 v14, 36, v1
v_mov_b32 v15, {OOB}
v_cmp_gt_u32 vcc, 32, v1
v_cndmask_b32 v14, v15, v14, vcc
v_and_b32 v15, 31, v1
v_mul_u32_u24 v15, {TP_RS}, v15
v_lshrrev_b32 v16, 5, v1
v_lshl_add_u32 v15, v16, 4, v15
v_add_u32 v15, s37, v15
s_mul_i32 s38, s36, {32*36}
v_mov_b32 v40, 0
v_mov_b32 v41, 0
v_mov_b32 v42, 0
v_mov_b32 v43, 0
s_cmp_eq_u32 s19, 0
s_cbranch_scc0 L_k0_kv1
buffer_load_dwordx4 v[40:43], v14, s[24:27], s38 offen
L_k0_kv1:
s_cmp_eq_u32 s19, 1
s_cbranch_scc0 L_k0_kv2
buffer_load_dwordx4 v[40:43], v14, s[24:27], s38 offen offset:16
L_k0_kv2:
s_cmp_eq_u32 s19, 2
s_cbranch_scc0 L_k0_kv3
buffer_load_dword v40, v14, s[24:27], s38 offen offset:32
buffer_load_dword v42, v14, s[28:31], s38 offen offset:32
L_k0_kv3:
s_cmp_eq_u32 s19, 3
s_cbranch_scc0 L_k0_kv4
buffer_load_dwordx4 v[40:43], v14, s[28:31], s38 offen
L_k0_kv4:
s_cmp_eq_u32 s19, 4
s_cbranch_scc0 L_k0_kv5
buffer_load_dwordx4 v[40:43], v14, s[28:31], s38 offen offset:16
L_k0_kv5:''')
    tprep_rdaddr(k, 1, 16, 17, 18, 37)
    k('s_waitcnt vmcnt(0)')
    for i in range(5):
        k(f'ds_write_b128 v{8+i}, v[{20+4*i}:{23+4*i}]')
    k('''ds_write_b128 v15, v[40:43] offset:144
s_waitcnt lgkmcnt(0)''')
    tprep_read(k, 16, 17, 44)
    k('''v_lshlrev_b32 v2, 4, v1
s_mul_i32 s38, s18, 5120
s_add_u32 s39, s38, 4096
s_waitcnt lgkmcnt(0)''')
    for j in range(4):
        k(f'buffer_store_dwordx4 v[{44+4*j}:{47+4*j}], v2, s[32:35], s38 offen offset:{1024*j}')
    k('''buffer_store_dwordx4 v[60:63], v2, s[32:35], s39 offen
L_k0_end:
s_endpgm''')
    return k, f'; @launch kernel=k0_kernel grid=({K0_GRID},1,1) block=(256,1,1) lds={4*TP_WAVE}'
```

```python
from dsl import K
from common import *
from k1 import map_8x4_32x8


def lane_consts(k):
    k('''v_and_b32 v1, 63, v0
v_lshlrev_b32 v2, 4, v1
v_and_b32 v8, 15, v1
v_lshrrev_b32 v9, 4, v1
v_and_b32 v5, 7, v1
v_lshlrev_b32 v5, 4, v5
v_lshl_add_u32 v5, v9, 7, v5''')


def epi_addr(k, stb16, sbn):
    k(f'''s_lshl_b32 s40, s{stb16}, 4
v_add_u32 v8, s40, v8
v_mov_b32 v7, {OOB}
v_cmp_gt_u32 vcc, 2, v9
v_mul_u32_u24 v10, 1152, v8
s_mul_i32 s40, s{sbn}, 144
v_add_u32 v10, s40, v10
v_lshl_add_u32 v11, v9, 3, v10
v_add_u32 v11, 128, v11
v_cndmask_b32 v11, v7, v11, vcc
v_lshl_add_u32 v10, v9, 4, v10
v_lshrrev_b32 v12, 5, v8
v_mul_u32_u24 v12, 36864, v12
v_and_b32 v13, 31, v8
v_lshl_add_u32 v12, v13, 4, v12
s_mul_i32 s40, s{sbn}, 4608
v_add_u32 v12, s40, v12
v_lshl_add_u32 v13, v9, 3, v12
v_add_u32 v13, 4096, v13
v_cndmask_b32 v13, v7, v13, vcc
v_lshl_add_u32 v12, v9, 9, v12
s_mul_i32 s40, s{sbn}, 288
v_lshlrev_b32 v14, 5, v9
v_add_u32 v14, s40, v14
v_lshlrev_b32 v15, 4, v9
v_add_u32 v15, s40, v15
v_add_u32 v15, 256, v15
v_cndmask_b32 v15, v7, v15, vcc''')


def load_modvec(k, r, srd, soff):
    k(f'''buffer_load_dwordx4 v[{r}:{r+3}], v14, s[{srd}:{srd+3}], {soff} offen
buffer_load_dwordx4 v[{r+4}:{r+7}], v14, s[{srd}:{srd+3}], {soff} offen offset:16
buffer_load_dwordx4 v[{r+8}:{r+11}], v14, s[{srd}:{srd+3}], {soff} offen offset:128
buffer_load_dwordx4 v[{r+12}:{r+15}], v14, s[{srd}:{srd+3}], {soff} offen offset:144
buffer_load_dwordx4 v[{r+16}:{r+19}], v15, s[{srd}:{srd+3}], {soff} offen''')


def skinny_loader(k, region, nchunks, bounds, sbn, label, tail=None):
    k(f'''{label}:
s_sub_u32 s3, s3, 4
s_lshl_b32 s13, s3, 10
s_mul_i32 s12, s{sbn}, {nchunks*1024}
s_waitcnt lgkmcnt(0)''')
    srd_ws(k, 28, 16, region)
    n = (nchunks + 3) // 4
    marks = [b // 4 for b in bounds]
    issued = 0; pend = list(marks)
    AHEAD = 6
    for j in range(n):
        if j == n - 1 and nchunks % 4: k(f's_min_u32 s13, s13, {(nchunks-1)*1024}')
        k(f'''s_mov_b32 m0, s13
s_add_u32 s14, s13, s12
buffer_load_dwordx4 v2, s[28:31], s14 offen lds
s_add_u32 s13, s13, 4096''')
        issued += 1
        while pend and ((len(pend) == len(marks) and issued - pend[0] >= AHEAD) or issued == n):
            k(f's_waitcnt vmcnt({issued-pend[0]})\ns_barrier'); pend.pop(0)
    if tail: tail()
    k('s_endpgm')


def modvec_load(k, srd, secs, sbn, vaddr, vdst):
    k(f'''v_and_b32 v{vaddr}, 31, v1
v_lshrrev_b32 v{vdst}, 5, v1
v_mul_u32_u24 v{vdst}, {(secs[1]-secs[0])*2304}, v{vdst}
v_cmp_gt_u32 vcc, 18, v{vaddr}
v_lshl_add_u32 v{vaddr}, v{vaddr}, 4, v{vdst}
v_cndmask_b32 v{vaddr}, v7, v{vaddr}, vcc
s_mul_i32 s41, s{sbn}, 288
s_add_u32 s41, s41, {secs[0]*2304}
buffer_load_dwordx4 v[{vdst}:{vdst+3}], v{vaddr}, s[{srd}:{srd+3}], s41 offen''')


def modvec_spread(k, vsrc, lbase, dsts, vt):
    k(f'''s_lshl_b32 s41, s3, 10
s_add_u32 s41, s41, {lbase}
v_add_u32 v{vt}, s41, v2
ds_write_b128 v{vt}, v[{vsrc}:{vsrc+3}]
v_lshlrev_b32 v{vt}, 5, v9
v_add_u32 v{vt}, s41, v{vt}
v_lshlrev_b32 v{vt+1}, 4, v9
v_add_u32 v{vt+1}, s41, v{vt+1}
s_waitcnt lgkmcnt(0)''')
    for h, r in enumerate(dsts):
        k(f'''ds_read_b128 v[{r}:{r+3}], v{vt} offset:{512*h}
ds_read_b128 v[{r+4}:{r+7}], v{vt} offset:{512*h+16}
ds_read_b128 v[{r+8}:{r+11}], v{vt} offset:{512*h+128}
ds_read_b128 v[{r+12}:{r+15}], v{vt} offset:{512*h+144}
ds_read_b128 v[{r+16}:{r+19}], v{vt+1} offset:{512*h+256}''')


def gen_k3():
    k = K('k3_kernel', vgpr=232, sgpr=64)
    from k4 import VM
    vm = VM(k)
    A0, ACC, BF, XR, GA, G2, MV = 64, 40, 140, 20, 184, 208, 32
    LB = 81 * 1024
    k(f'''s_cmp_ge_u32 s2, 256
s_cbranch_scc1 L_k3_end
s_load_dwordx2 s[16:17], s[0:1], {A_WS}
s_load_dwordx2 s[18:19], s[0:1], {A_X}''')
    waveid(k, 3, 1)
    map_8x4_32x8(k, 4, 5, 6)
    lane_consts(k)
    k('''s_cmp_ge_u32 s3, 4
s_cbranch_scc1 L_k3_ld
s_lshl_b32 s10, s4, 2
s_add_u32 s10, s10, s3''')
    k(f'''s_mul_i32 s11, s10, {18*1024}
s_waitcnt lgkmcnt(0)''')
    srd_ws(k, 24, 16, 'O')

    def a_load(st):
        if st % 4 == 0 and st: k('s_add_u32 s11, s11, 4096')
        vm.op(f'buffer_load_dwordx4 v[{A0+4*st}:{A0+4*st+3}], v2, s[24:27], s11 offen offset:{(st%4)*1024}', f'A{st}')
    NPRE = 11
    for st in range(NPRE): a_load(st)
    epi_addr(k, 10, 5)
    srd_ws(k, 32, 16, 'MODF')
    srd_in(k, 36, 18, S * D * 2)
    for j in range(20): k(f'v_mov_b32 v{ACC+j}, 0')
    k('''v_add_u32 v3, 0x10000, v2
v_add_u32 v4, 0x10000, v5''')
    k.stamp(0)

    def b_read(st):
        b = BF + 20 * (st & 1)
        o = []
        for j in range(5):
            off = st * 4608 + j * 1024
            lo, hi = (2, 3) if j < 4 else (5, 4)
            o.append(f'ds_read_b128 v[{b+4*j}:{b+4*j+3}], v{lo} offset:{off}' if off < 65536 else
                     f'ds_read_b128 v[{b+4*j}:{b+4*j+3}], v{hi} offset:{off-65536}')
        return o
    bar = (0, 4, 8, 12, 16)
    k('s_barrier')
    k.stamp(2)
    for o in b_read(0): k(o)
    for st in range(18):
        if st + 1 in bar:
            k('s_barrier')
        vm.wait(f'A{st}')
        k('s_waitcnt lgkmcnt(0)')
        rds = b_read(st + 1) if st + 1 < 18 else []
        b = BF + 20 * (st & 1)
        for j in range(5):
            k(f'v_mfma_f32_16x16x32_bf16 v[{ACC+4*j}:{ACC+4*j+3}], v[{b+4*j}:{b+4*j+3}], v[{A0+4*st}:{A0+4*st+3}], v[{ACC+4*j}:{ACC+4*j+3}]')
            if rds: k(rds[j])
        if st + NPRE < 18: a_load(st + NPRE)
        if st == 3:
            vm.op(f'buffer_load_dwordx4 v[{XR}:{XR+3}], v10, s[36:39], 0 offen', 'x')
            vm.op(f'buffer_load_dwordx4 v[{XR+4}:{XR+7}], v10, s[36:39], 0 offen offset:64', 'x')
            vm.op(f'buffer_load_dwordx2 v[{XR+8}:{XR+9}], v11, s[36:39], 0 offen', 'x')
            modvec_load(k, 32, (2, 4), 5, 36, MV); vm.log.append('mv')
    k.stamp(1)
    k('s_waitcnt vmcnt(0)')
    k.stamp(3)
    modvec_spread(k, MV, LB, (GA, G2), 36)
    code_prefetch(k, 'k4_kernel', 1, 108, 44, swave=3)
    srd_ws(k, 24, 16, 'X1')
    srd_ws(k, 28, 16, 'XG')
    srd_ws(k, 32, 16, 'ST1')
    U = 64
    for j in range(10): unpack(k, U + 2 * j, XR + j)
    k(f'''v_cmp_gt_u32 vcc, 2, v9
s_waitcnt lgkmcnt(5)
v_cndmask_b32 v{GA+16}, 0, v{GA+16}, vcc
v_cndmask_b32 v{GA+17}, 0, v{GA+17}, vcc
v_cndmask_b32 v{GA+18}, 0, v{GA+18}, vcc
v_cndmask_b32 v{GA+19}, 0, v{GA+19}, vcc''')
    for j in range(10):
        k(f'v_pk_fma_f32 v[{U+2*j}:{U+2*j+1}], v[{ACC+2*j}:{ACC+2*j+1}], v[{GA+2*j}:{GA+2*j+1}], v[{U+2*j}:{U+2*j+1}]')
    for j in range(10): k(f'v_cvt_pk_bf16_f32 v{84+j}, v{U+2*j}, v{U+2*j+1}')
    k('''buffer_store_dwordx4 v[84:87], v12, s[24:27], 0 offen
buffer_store_dwordx4 v[88:91], v12, s[24:27], 0 offen offset:2048
buffer_store_dwordx2 v[92:93], v13, s[24:27], 0 offen''')
    for j in range(10): unpack(k, U + 2 * j, 84 + j)
    k(f'''v_pk_add_f32 v[16:17], v[{U}:{U+1}], v[{U+2}:{U+3}]
v_pk_mul_f32 v[18:19], v[{U}:{U+1}], v[{U}:{U+1}]
v_pk_fma_f32 v[18:19], v[{U+2}:{U+3}], v[{U+2}:{U+3}], v[18:19]''')
    for j in range(2, 10):
        k(f'''v_pk_add_f32 v[16:17], v[16:17], v[{U+2*j}:{U+2*j+1}]
v_pk_fma_f32 v[18:19], v[{U+2*j}:{U+2*j+1}], v[{U+2*j}:{U+2*j+1}], v[18:19]''')
    k('s_waitcnt lgkmcnt(0)')
    for j in range(10):
        k(f'''v_pk_mul_f32 v[{U+2*j}:{U+2*j+1}], v[{U+2*j}:{U+2*j+1}], v[{G2+2*j}:{G2+2*j+1}]
v_cvt_pk_bf16_f32 v{96+j}, v{U+2*j}, v{U+2*j+1}''')
    k('''buffer_store_dwordx4 v[96:99], v12, s[28:31], 0 offen
buffer_store_dwordx4 v[100:103], v12, s[28:31], 0 offen offset:2048
buffer_store_dwordx2 v[104:105], v13, s[28:31], 0 offen
v_add_f32 v16, v16, v17
v_add_f32 v17, v18, v19''')
    xadd16(k, 16, 18); xadd16(k, 17, 19); xadd32(k, 16, 18); xadd32(k, 17, 19)
    k.stamp(6)
    k('''v_lshlrev_b32 v18, 3, v1
v_cmp_eq_u32 vcc, 0, v9
v_cndmask_b32 v18, v7, v18, vcc
s_lshl_b32 s11, s10, 3
s_add_u32 s11, s11, s5
s_lshl_b32 s11, s11, 7
buffer_store_dwordx2 v[16:17], v18, s[32:35], s11 offen
L_k3_end:
s_endpgm''')
    skinny_loader(k, 'WO', 81, (20, 36, 56, 72, 84), 5, 'L_k3_ld')
    return k, f'; @launch kernel=k3_kernel grid=(256,1,1) block=(512,1,1) lds={LB+4096}'


def k3_front(k, dma_ops):
    from k4 import VM
    vm = VM(k)
    A0, ACC, BF, XR, GA, G2, MV = 64, 40, 140, 20, 184, 208, 32
    LW = 2 * 36864
    map_8x4_32x8(k, 60, 61, 62)
    lane_consts(k)
    k(f'''s_lshl_b32 s62, s60, 2
s_add_u32 s62, s62, s3
s_mul_i32 s63, s62, {18*1024}
s_mul_i32 s58, s61, {81*1024}
s_waitcnt lgkmcnt(0)''')
    srd_ws(k, 20, 16, 'O')
    srd_ws(k, 28, 16, 'WO')

    def a_ld(st):
        o = []
        if st % 4 == 0 and st: o.append(('s_add_u32 s63, s63, 4096', None))
        o.append((f'buffer_load_dwordx4 v[{A0+4*st}:{A0+4*st+3}], v2, s[20:23], s63 offen offset:{(st%4)*1024}', f'A{st}'))
        return o

    def b_ld(g):
        n, last = (5, 17) if g < 4 else (3, 8)
        o = [(f's_mul_i32 s59, s3, {(n-1)*1024 if g == 4 else 4608}', None)]
        if g < 4: o.append(('s_and_b32 s59, s59, 0xfc00', None))
        o.append((f's_add_u32 s59, s59, {g*18*1024}', None))
        for c in range(n):
            if c % 4 == 0:
                if c: o.append(('s_add_u32 s59, s59, 4096', None))
                o.append((f's_add_u32 m0, s59, {LW}', None))
                o.append(('s_add_u32 s15, s59, s58', None))
            o.append((f'buffer_load_dwordx4 v2, s[28:31], s15 offen offset:{(c%4)*1024} lds', f'W{g}'))
        return o

    def emit(o):
        if o[1] is None: k(o[0])
        else: vm.op(o[0], o[1])

    def group(g):
        o = b_ld(g)
        for st in range(4 * g, min(18, 4 * g + 4)): o += a_ld(st)
        return o
    for g in range(3):
        for o in group(g): emit(o)
    srd_ws(k, 24, 16, 'WIN')
    k(f'''s_mov_b32 s4{0}, 0''')
    epi_addr(k, 62, 61)
    srd_ws(k, 32, 16, 'MODF')
    srd_in(k, 36, 18, S * D * 2)
    for j in range(20): k(f'v_mov_b32 v{ACC+j}, 0')
    k(f'''v_add_u32 v3, {LW}, v2
v_add_u32 v4, {LW+0x10000}, v2
v_add_u32 v6, {LW+0x10000}, v5
v_add_u32 v5, {LW}, v5''')
    k.stamp(0)

    def b_read(st):
        b = BF + 20 * (st & 1)
        o = []
        for j in range(5):
            off = st * 4608 + j * 1024
            lo, hi = (3, 4) if j < 4 else (5, 6)
            o.append(f'ds_read_b128 v[{b+4*j}:{b+4*j+3}], v{lo} offset:{off}' if off < 65536 else
                     f'ds_read_b128 v[{b+4*j}:{b+4*j+3}], v{hi} offset:{off-65536}')
        return o
    extra = group(3) + group(4)
    xo = [(f'buffer_load_dwordx4 v[{XR}:{XR+3}], v10, s[36:39], 0 offen', 'x'),
          (f'buffer_load_dwordx4 v[{XR+4}:{XR+7}], v10, s[36:39], 0 offen offset:64', 'x'),
          (f'buffer_load_dwordx2 v[{XR+8}:{XR+9}], v11, s[36:39], 0 offen', 'x')]
    later = xo + dma_ops(0) + dma_ops(1)
    vm.wait('W0'); k('s_barrier')
    for o in b_read(0): k(o)
    for st in range(18):
        if (st + 1) % 4 == 0:
            vm.wait(f'W{(st+1)//4}'); k('s_barrier')
        vm.wait(f'A{st}')
        k('s_waitcnt lgkmcnt(0)')
        rds = b_read(st + 1) if st + 1 < 18 else []
        b = BF + 20 * (st & 1)
        for j in range(5):
            k(f'v_mfma_f32_16x16x32_bf16 v[{ACC+4*j}:{ACC+4*j+3}], v[{b+4*j}:{b+4*j+3}], v[{A0+4*st}:{A0+4*st+3}], v[{ACC+4*j}:{ACC+4*j+3}]')
            if rds: k(rds[j])
        src = extra if extra else later
        n = 0
        while src and n < (4 if src is extra else 2):
            o = src.pop(0); emit(o)
            if o[1]: n += 1
        if st == 4:
            modvec_load(k, 32, (2, 4), 61, 36, MV); vm.log.append('mv')
    for o in later: emit(o)
    k.stamp(1)
    vm.wait('x')
    k('s_barrier')
    modvec_spread(k, MV, LW, (GA, G2), 36)
    srd_ws(k, 32, 16, 'X1')
    srd_ws(k, 28, 16, 'XG')
    srd_ws(k, 20, 16, 'ST1')
    U = 64
    for j in range(10): unpack(k, U + 2 * j, XR + j)
    k('s_waitcnt lgkmcnt(5)')
    for j in range(10):
        k(f'v_pk_fma_f32 v[{U+2*j}:{U+2*j+1}], v[{ACC+2*j}:{ACC+2*j+1}], v[{GA+2*j}:{GA+2*j+1}], v[{U+2*j}:{U+2*j+1}]')
    for j in range(10): k(f'v_cvt_pk_bf16_f32 v{84+j}, v{U+2*j}, v{U+2*j+1}')
    for j in range(10): unpack(k, U + 2 * j, 84 + j)
    k('s_waitcnt lgkmcnt(0)')
    for j in range(10):
        k(f'''v_pk_mul_f32 v[{108+2*j}:{109+2*j}], v[{U+2*j}:{U+2*j+1}], v[{G2+2*j}:{G2+2*j+1}]
v_cvt_pk_bf16_f32 v{96+j}, v{108+2*j}, v{109+2*j}''')
    k('''buffer_store_dwordx4 v[96:99], v12, s[28:31], 0 offen sc1
buffer_store_dwordx4 v[100:103], v12, s[28:31], 0 offen offset:2048 sc1
buffer_store_dwordx2 v[104:105], v13, s[28:31], 0 offen sc1
buffer_store_dwordx4 v[84:87], v12, s[32:35], 0 offen sc1
buffer_store_dwordx4 v[88:91], v12, s[32:35], 0 offen offset:2048 sc1
buffer_store_dwordx2 v[92:93], v13, s[32:35], 0 offen sc1''')
    k(f'''v_pk_add_f32 v[16:17], v[{U}:{U+1}], v[{U+2}:{U+3}]
v_pk_mul_f32 v[18:19], v[{U}:{U+1}], v[{U}:{U+1}]
v_pk_fma_f32 v[18:19], v[{U+2}:{U+3}], v[{U+2}:{U+3}], v[18:19]''')
    for j in range(2, 10):
        k(f'''v_pk_add_f32 v[16:17], v[16:17], v[{U+2*j}:{U+2*j+1}]
v_pk_fma_f32 v[18:19], v[{U+2*j}:{U+2*j+1}], v[{U+2*j}:{U+2*j+1}], v[18:19]''')
    k('''v_add_f32 v16, v16, v17
v_add_f32 v17, v18, v19''')
    xadd16(k, 16, 18); xadd16(k, 17, 19); xadd32(k, 16, 18); xadd32(k, 17, 19)
    k('''v_lshlrev_b32 v18, 3, v1
v_cmp_eq_u32 vcc, 0, v9
v_cndmask_b32 v18, v7, v18, vcc
s_lshl_b32 s15, s62, 3
s_add_u32 s15, s15, s61
s_lshl_b32 s15, s15, 7''')
    k.stamp(2)
    k('s_waitcnt vmcnt(3)')
    k.stamp(4)
    k.smap = {5: 5, 1: 6, 3: 7}
    k('''buffer_store_dwordx2 v[16:17], v18, s[20:23], s15 offen sc1
s_barrier
L_k3_done:''')


def gen_k34(opt=()):
    import k4
    return k4.gen_k4(opt=opt, front=k3_front)
```

```python
from dsl import K
from common import *
import math

LOG2E = 1.4426950408889634
GA_ = -2.0 * LOG2E * math.sqrt(2.0 / math.pi)
GB_ = GA_ * 0.044715


def map_8x4_16x16(k, sbm, sbn, t):
    k(f'''s_and_b32 s{t}, s2, 7
s_lshr_b32 s{t+1}, s2, 3
s_and_b32 s{sbm}, s{t}, 1
s_lshl_b32 s{sbm}, s{sbm}, 3
s_and_b32 s{sbn}, s{t+1}, 7
s_add_u32 s{sbm}, s{sbm}, s{sbn}
s_lshr_b32 s{sbn}, s{t}, 1
s_lshl_b32 s{sbn}, s{sbn}, 2
s_lshr_b32 s{t+1}, s{t+1}, 3
s_add_u32 s{sbn}, s{sbn}, s{t+1}''')


class VM:
    def __init__(self, k): self.k = k; self.log = []
    def op(self, text, tag): self.k(text); self.log.append(tag)
    def n_after(self, tag):
        idx = max(i for i, t in enumerate(self.log) if t == tag)
        return len(self.log) - 1 - idx
    def wait(self, tag): self.k(f's_waitcnt vmcnt({min(63, self.n_after(tag))})')


def interleave(main, fill):
    out = []; n = len(main); m = len(fill); j = 0
    for i, g in enumerate(main):
        out.append(g)
        upto = (i + 1) * m // n
        out += fill[j:upto]; j = upto
    return out


SLOT = 36864
EXT = 4 * SLOT
ACC, Y, TX, T0, S1, S2, FR = 32, 64, 144, 164, 180, 182, 144
NFR = 6
C1, C3, RR = 20, 22, 24


def gelu_ops(acc, dst, kind, packed=False):
    ops = []
    for g in range(2):
        if packed:
            prs = range(4 * g, 4 * g + 4)
            pr = lambda b, j: f'v[{b+2*j}:{b+2*j+1}]'
            t = lambda j: f'v[{T0+2*(j%4)}:{T0+2*(j%4)+1}]'
            for j in prs: ops.append(f'v_pk_mul_f32 {t(j)}, {pr(acc,j)}, {pr(acc,j)}')
            for j in prs: ops.append(f'v_pk_fma_f32 {t(j)}, {t(j)}, v[{C3}:{C3+1}], v[{C1}:{C1+1}] op_sel_hi:[1,0,0]')
            for j in prs: ops.append(f'v_pk_mul_f32 {t(j)}, {t(j)}, {pr(acc,j)}')
            for j in range(8): ops.append(f'v_exp_f32 v{T0+j}, v{T0+j}')
            for j in prs: ops.append(f'v_pk_add_f32 {t(j)}, {t(j)}, 1.0 op_sel_hi:[1,0]')
            for j in range(8): ops.append(f'v_rcp_f32 v{T0+j}, v{T0+j}')
            for j in prs: ops.append(f'v_pk_mul_f32 {t(j)}, {t(j)}, {pr(acc,j)}')
            for j in prs: ops.append(f'v_pk_mul_f32 {t(j)}, {t(j)}, v[{RR}:{RR+1}] op_sel_hi:[1,0]')
            for j in prs: ops.append(f'v_cvt_pk_bf16_f32 v{dst+j}, v{T0+2*(j%4)}, v{T0+2*(j%4)+1}')
            ops.append(('store', g))
            continue
        stages = []
        for e in range(8):
            a = acc + 8 * g + e; t = T0 + 8 * g + e
            st = [f'v_mul_f32 v{t}, v{a}, v{a}', f'v_fma_f32 v{t}, v{t}, v{C3}, v{C1}', f'v_mul_f32 v{t}, v{t}, v{a}',
                  f'v_exp_f32 v{t}, v{t}', f'v_add_f32 v{t}, 1.0, v{t}', f'v_rcp_f32 v{t}, v{t}']
            if kind == 'z1':
                st += [f'v_mul_f32 v{t}, v{t}, v{a}', f'v_mul_f32 v{t}, v{t}, v{RR}']
            else:
                d = dst + 8 * g + e
                st += [f'v_mul_f32 v{d}, v{t}, v{a}', f'v_add_f32 v{S1+(e&1)}, v{S1+(e&1)}, v{d}', f'v_fmac_f32 v{S2+(e&1)}, v{d}, v{d}']
                if kind == 'both': st += [f'v_mul_f32 v{t}, v{d}, v{RR}']
            if kind != 'z2' and e & 1:
                st += [f'v_cvt_pk_bf16_f32 v{(dst if kind == "z1" else PK)+4*g+e//2}, v{t-1}, v{t}']
            stages.append(st)
        n = max(len(x) for x in stages)
        for step in range(n + 2 * 7):
            for e in range(8):
                q = step - 2 * e
                for qq in ((q,) if True else ()):
                    if 0 <= qq < len(stages[e]): ops.append(stages[e][qq])
        if kind != 'z2': ops.append(('store', g))
    return ops


SLP = 8
PK = 148


def gen_k4(opt=(), k=None, mid_hook=None, front=None):
    fused = k is not None
    if not fused: k = K('k3_kernel' if front else 'k4_kernel', vgpr=232, agpr=168, sgpr=68)
    if front: k.wtname = 'k34'
    vm = VM(k)
    k(f'''s_cmp_ge_u32 s2, 256
s_cbranch_scc1 L_k4_end
s_load_dwordx2 s[16:17], s[0:1], {A_WS}''')
    if front: k(f's_load_dwordx2 s[18:19], s[0:1], {A_X}')

    waveid(k, 3, 1)
    map_8x4_16x16(k, 4, 5, 6)
    k(f'''v_and_b32 v1, 63, v0
v_lshlrev_b32 v2, 4, v1
s_and_b32 s6, s5, 1
s_lshr_b32 s7, s5, 1
s_mul_i32 s7, s7, 9
s_lshl_b32 s8, s4, 2
s_add_u32 s8, s8, s3
s_mul_i32 s9, s6, 5
s_add_u32 s9, s9, s7
s_add_u32 s9, s9, 72
s_mul_i32 s44, s9, 37888
s_add_u32 s45, s44, 37888
s_add_u32 s46, s45, 37888
s_add_u32 s47, s46, 37888
s_mul_i32 s9, s6, 76
s_add_u32 s9, s9, s7
s_mul_i32 s48, s9, 37888
s_lshl_b32 s53, s7, 10
s_cmp_eq_u32 s6, 1
s_cselect_b32 s53, {OOB}, s53
s_lshl_b32 s9, s6, 2
s_add_u32 s9, s9, s7
s_add_u32 s9, s9, 1
s_mul_i32 s49, s9, 37888
s_add_u32 s50, s49, 37888
s_add_u32 s51, s50, 37888
s_add_u32 s52, s51, 37888
s_lshl_b32 s54, s9, 10
s_add_u32 s55, s54, 1024
s_add_u32 s56, s55, 1024
s_add_u32 s57, s56, 1024
s_mul_i32 s10, s3, 9216''')

    def dma_ops(j):
        ops = []
        for c in range(9):
            if c % 4 == 0:
                ops.append((f's_add_u32 s13, s10, {(j&3)*SLOT + c*1024}', None))
                ops.append((f's_add_u32 s14, s10, s{44+j}', None))
                ops.append(('s_mov_b32 m0, s13', None))
                if c: ops.append((f's_add_u32 s14, s14, {c*1024}', None))
                else: ops.append(('s_nop 0', None))
            ops.append((f'buffer_load_dwordx4 v2, s[24:27], s14 offen offset:{(c%4)*1024} lds', f'B{j}'))
        return ops
    if front:
        front(k, dma_ops)
        vm.log += ['B0', 'B1']
    k(f'''v_and_b32 v5, 31, v1
v_lshrrev_b32 v6, 5, v1
s_lshl_b32 s9, s8, 11
v_and_b32 v7, 15, v1
v_lshlrev_b32 v7, 3, v7
v_bfe_u32 v8, v1, 4, 1
v_lshl_add_u32 v7, v8, 10, v7
v_lshl_add_u32 v7, v6, 9, v7
v_add_u32 v7, s9, v7''')
    if not front:
        k('s_waitcnt lgkmcnt(0)')
        srd_ws(k, 20, 16, 'ST1')
        srd_ws(k, 24, 16, 'WIN')
        srd_ws(k, 28, 16, 'XG')
    srd_ws(k, 32, 16, 'Z1')
    if not front:
        for i in range(4): vm.op(f'buffer_load_dwordx2 v[{8+2*i}:{9+2*i}], v7, s[20:23], 0 offen offset:{128*i}', 'st')
    def ext_dma():
        k('''s_cmp_eq_u32 s3, 1
s_cselect_b32 s11, s45, s44
s_cselect_b32 s12, s49, s48
s_cmp_eq_u32 s3, 2
s_cselect_b32 s11, s46, s11
s_cselect_b32 s12, s50, s12
s_cmp_eq_u32 s3, 3
s_cselect_b32 s11, s47, s11
s_cselect_b32 s12, s51, s12
s_lshl_b32 s13, s3, 10''')
        k(f'''s_add_u32 s13, s13, {EXT}
s_add_u32 s11, s11, {SLOT}
s_mov_b32 m0, s13''')
        vm.op('buffer_load_dwordx4 v2, s[24:27], s11 offen lds', 'ext')
        k(f'''s_add_u32 s13, s13, 4096
s_add_u32 s12, s12, {SLOT}
s_mov_b32 m0, s13''')
        vm.op('buffer_load_dwordx4 v2, s[24:27], s12 offen lds', 'ext')
        k(f'''s_add_u32 s12, s52, {SLOT}
s_mov_b32 m0, {EXT+8192}''')
        vm.op('buffer_load_dwordx4 v2, s[24:27], s12 offen lds', 'ext')


    if not front: ext_dma()

    def emit(o):
        if isinstance(o, tuple):
            if o[1] is None: k(o[0])
            else: vm.op(o[0], o[1])
        else: k(o)
    if front:
        k(f'''s_mov_b32 s13, 0
L_k34_poll:
s_sleep {SLP}
buffer_load_dwordx2 v[8:9], v7, s[20:23], 0 offen sc1
buffer_load_dwordx2 v[10:11], v7, s[20:23], 0 offen offset:128 sc1
buffer_load_dwordx2 v[12:13], v7, s[20:23], 0 offen offset:256 sc1
buffer_load_dwordx2 v[14:15], v7, s[20:23], 0 offen offset:384 sc1
s_add_u32 s13, s13, 1
s_waitcnt vmcnt(0)
v_max_u32 v16, v9, v11
v_max3_u32 v16, v16, v13, v15
v_cmp_eq_u32 vcc, -1, v16
s_cmp_lt_u32 s13, 0x40000
s_cselect_b64 vcc, vcc, 0
s_cbranch_vccnz L_k34_poll''')
        vm.log.append('st')
        k.stamp(5)
    else:
        for o in dma_ops(0): emit(o)
    k(f's_mul_i32 s11, s8, {SLOT}')
    ldm = ' sc1' if front else ''
    a_ops = []
    for st in range(36):
        if st % 4 == 0 and st: a_ops.append(('s_add_u32 s11, s11, 4096', None))
        a_ops.append((f'buffer_load_dwordx4 a[{4*st}:{4*st+3}], v2, s[28:31], s11 offen offset:{(st%4)*1024}{ldm}', f'A{st}'))
    NPRE = 12

    def ext_dma2():
        k('s_mov_b32 s15, s11')
        ext_dma()
        k('s_mov_b32 s11, s15')
    pre = [o for o in a_ops]
    cnt = 0
    while cnt < NPRE:
        o = pre.pop(0); emit(o)
        if o[1]: cnt += 1
    if front: ext_dma2()
    if 'tstamp' not in opt: k.stamp(0)
    vm.wait('st')
    k('''v_pk_add_f32 v[8:9], v[8:9], v[10:11]
v_pk_add_f32 v[12:13], v[12:13], v[14:15]
v_pk_add_f32 v[8:9], v[8:9], v[12:13]''')
    xadd32(k, 8, 10); xadd32(k, 9, 11)
    k(f'''v_mul_f32 v8, {fhex(-1/576)}, v8
v_mul_f32 v9, {fhex(1/576)}, v9
v_fma_f32 v9, -v8, v8, v9
v_max_f32 v9, 0, v9
v_add_f32 v9, {fhex(1e-5)}, v9
v_rsq_f32 v{RR}, v9
v_sqrt_f32 v9, v9
v_mul_f32 v{C1}, {fhex(GA_)}, v{RR}
v_mul_f32 v{C3}, v{RR}, v{RR}
v_mul_f32 v{C3}, v{C3}, v{RR}
v_mul_f32 v{C3}, {fhex(GB_)}, v{C3}
v_cvt_pk_bf16_f32 v10, v8, v9
v_lshlrev_b32 v11, 16, v10
v_and_b32 v12, 0xffff0000, v10
v_sub_f32 v13, v8, v11
v_sub_f32 v14, v9, v12
v_cvt_pk_bf16_f32 v13, v13, v14
v_and_b32 v{TX}, 0xffff, v10
v_lshl_or_b32 v{TX}, v13, 16, v{TX}
v_mov_b32 v{TX+1}, v10
v_lshrrev_b32 v{TX+2}, 16, v13
v_or_b32 v{TX+2}, v{TX+2}, v12
v_mov_b32 v{TX+3}, 0
v_mov_b32 v{S1}, 0
v_mov_b32 v{S1+1}, 0
v_mov_b32 v{S2}, 0
v_mov_b32 v{S2+1}, 0
v_add_u32 v3, {SLOT}, v2
v_add_u32 v4, {2*SLOT}, v2
v_add_u32 v16, {3*SLOT}, v2
v_add_u32 v17, {EXT}, v2
v_bfe_u32 v18, v1, 4, 1
s_lshl_b32 s9, s8, 1
v_add_u32 v18, s9, v18
v_mul_u32_u24 v18, {72*1024}, v18
v_and_b32 v19, 15, v1
v_lshl_add_u32 v18, v19, 4, v18
v_lshl_add_u32 v18, v6, 8, v18
v_lshlrev_b32 v26, 3, v5
v_cmp_eq_u32 vcc, 0, v6
v_mov_b32 v27, {OOB}
v_cndmask_b32 v27, v27, v26, vcc
v_lshl_add_u32 v26, v6, 13, v26
s_mul_i32 s9, s3, {2*32*80}
s_add_u32 s9, s9, {SLOT}
v_mul_u32_u24 v14, 80, v5
v_lshl_add_u32 v14, v6, 4, v14
v_add_u32 v14, s9, v14
v_lshrrev_b32 v15, 4, v1
v_lshlrev_b32 v15, 3, v15
v_bfe_u32 v19, v1, 2, 2
v_add_u32 v15, v15, v19
v_mul_u32_u24 v15, 80, v15
v_and_b32 v19, 3, v1
v_lshl_add_u32 v15, v19, 4, v15
v_add_u32 v15, s9, v15''')
    base = [2, 3, 4, 16]

    def rd(j, s):
        r = FR + 4 * ((37 * j + s) % NFR)
        if s == 36: return f'ds_read_b128 a[{r}:{r+3}], v17 offset:{j*1024}'
        return f'ds_read_b128 a[{r}:{r+3}], v{base[j&3]} offset:{s*1024}'
    vm.wait('B0')
    k('s_barrier')
    AH = 5
    dsl_ = []

    def ds(text, tag):
        k(text); dsl_.append(tag)

    def dwait(tag):
        idx = max(i for i, t in enumerate(dsl_) if t == tag)
        k(f's_waitcnt lgkmcnt({min(15, len(dsl_) - 1 - idx)})')
    for s in range(AH): ds(rd(0, s), f'F{s}')
    if 'tstamp' not in opt: k.stamp(1)

    def grp(d):
        groups = []; cur = []
        for o in d:
            cur.append(o)
            if o[1] is not None: groups.append(cur); cur = []
        return groups
    RS = 80
    PL, NPK, NFO, SC, SH = 204, 188, 196, 28, 29

    def poll_ops():
        o = []
        for i in range(8):
            if i == 4: o.append(('s_add_u32 s12, s11, 4096', None))
            o.append((f'buffer_load_dwordx2 v[{PL+2*i}:{PL+2*i+1}], v26, s[36:39], {"s11" if i<4 else "s12"} offen offset:{(i%4)*1024} sc1', 'poll'))
        return o

    def norm_ops(j):
        y = Y + 16 * j; o = (j & 1) * 32 * RS
        ops = []
        for g in range(2):
            for i in range(8 * g, 8 * g + 8): ops.append(f'v_fma_f32 v{y+i}, v{y+i}, v{SC}, v{SH}')
            for i in range(4 * g, 4 * g + 4): ops.append(f'v_cvt_pk_bf16_f32 v{NPK+i}, v{y+2*i}, v{y+2*i+1}')
            ops.append(('DS', f'ds_write_b128 v14, v[{NPK+4*g}:{NPK+4*g+3}] offset:{o+32*g}', f'W{j}'))
        return ops

    def norm_rd(j):
        o = (j & 1) * 32 * RS
        return [('DW', f'W{j}'),
                ('DS', f'ds_read_b64_tr_b16 v[{NFO}:{NFO+1}], v15 offset:{o}', f'R{j}'),
                ('DS', f'ds_read_b64_tr_b16 v[{NFO+2}:{NFO+3}], v15 offset:{o+4*RS}', f'R{j}'),
                ('DS', f'ds_read_b64_tr_b16 v[{NFO+4}:{NFO+5}], v15 offset:{o+8}', f'R{j}'),
                ('DS', f'ds_read_b64_tr_b16 v[{NFO+6}:{NFO+7}], v15 offset:{o+4*RS+8}', f'R{j}')]

    def norm_st(j):
        if j < 4:
            so = 's64' if j < 2 else 's65'
            a = f'{so} offen offset:{(j&1)*2048}'; b = f'{so} offen offset:{(j&1)*2048+1024}'
        else:
            a = 's67 offen'; b = 's66 offen'
        return [('DW', f'R{j}'), (f'buffer_store_dwordx4 v[{NFO}:{NFO+3}], v2, s[20:23], {a}', 'z2st'),
                (f'buffer_store_dwordx4 v[{NFO+4}:{NFO+7}], v2, s[20:23], {b}', 'z2st')]

    def emit2(o):
        if isinstance(o, tuple) and o[0] == 'DS': ds(o[1], o[2])
        elif isinstance(o, tuple) and o[0] == 'DW': dwait(o[1])
        else: emit(o)

    def merge(a, b):
        out = []; j = 0
        for i, o in enumerate(a):
            out.append(o)
            upto = (i + 1) * len(b) // len(a)
            out += b[j:upto]; j = upto
        return out
    for j in range(9):
        acc = ACC + 16 * (j & 1)
        fill = []
        if j >= 1:
            pj = j - 1
            kind = 'z2' if pj < 4 else 'both' if pj == 4 else 'z1'
            pacc = ACC + 16 * (pj & 1)
            if pj == 4:
                fill += [f'v_mov_b32 v{184+i}, v{S1+i}' for i in range(4)]
            for o in gelu_ops(pacc, Y + 16 * pj if pj <= 4 else PK, kind):
                if isinstance(o, tuple):
                    g = o[1]
                    fill.append((f'buffer_store_dwordx4 v[{PK+4*g}:{PK+4*g+3}], v18, s[32:35], s{53+pj-4} offen offset:{512*g}', 'z1st'))
                else: fill.append(o)
        if j == 7:
            fill = merge(fill, norm_ops(0) + norm_ops(1)[:8] + norm_rd(0) + norm_ops(1)[8:20] + norm_st(0) + norm_ops(1)[20:]
                         + norm_ops(2)[:8] + norm_rd(1) + norm_ops(2)[8:13])
        if j == 8:
            fill = merge(fill, norm_ops(2)[13:20] + norm_st(1) + norm_ops(2)[20:] + norm_ops(3)[:8] + norm_rd(2) + norm_ops(3)[8:20] + norm_st(2)
                         + norm_ops(3)[20:] + norm_ops(4)[:8] + norm_rd(3) + norm_ops(4)[8:20] + norm_st(3) + norm_ops(4)[20:])
        if 'nogelu' in opt: fill = []
        per = [[] for _ in range(37)]
        mem = [[] for _ in range(37)]
        if j == 0:
            ga = grp(pre); gb = grp(dma_ops(1)) if not front else []; gc = grp(dma_ops(2))
            for i, g in enumerate(ga): mem[i] += g
            for i, g in enumerate(gb): mem[12 + 2 * i if i < 5 else 19 + i] += g
            for i, g in enumerate(gc): mem[min(36, (25 if front else 28) + i)] += g
        elif j + 2 < 9:
            for i, g in enumerate(grp(dma_ops(j + 2))): mem[1 + 3 * i] += g
        if j == 6:
            for i, g in enumerate(grp(poll_ops())): mem[27 + i] += g
        if j == 8 and mid_hook:
            for i, g in enumerate(grp(mid_hook())): mem[max(9 + i, 8 * (i // 8 + 1) + 1)] += g
        cost = lambda o: 1 if isinstance(o, tuple) else (2 if o.startswith(('v_exp', 'v_rcp')) else 1)
        tot = sum(cost(o) for o in fill); run = 0
        for o in fill:
            per[2 + (run * 35) // max(tot, 1)].append(o); run += cost(o)
        for s in range(37):
            g = 37 * j + s
            if j == 0 and s < 36: vm.wait(f'A{s}')
            if g % 2 == 0: dwait(f'F{min(g + 1, 9 * 37 - 1)}')
            bop = f'a[{4*s}:{4*s+3}]' if s < 36 else f'v[{TX}:{TX+3}]'
            r = FR + 4 * (g % NFR)
            cc = '0' if s == 0 else f'v[{acc}:{acc+15}]'
            k(f'v_mfma_f32_32x32x16_bf16 v[{acc}:{acc+15}], a[{r}:{r+3}], {bop}, {cc}')
            if front and j == 0 and s + AH == 36:
                vm.wait('ext'); k('s_barrier')
            if s + AH < 37: ds(rd(j, s + AH), f'F{g+AH}')
            elif j < 8:
                if s + AH == 37:
                    vm.wait(f'B{j+1}'); k('s_barrier')
                ds(rd(j + 1, s + AH - 37), f'F{g+AH}')
            for o in mem[s]: emit(o)
            if j == 7 and s == 1:
                vm.wait('poll')
                k(f'''s_mov_b32 s13, 0
L_k4_chk:
v_max_u32 v8, v{PL+1}, v{PL+3}
v_max3_u32 v8, v8, v{PL+5}, v{PL+7}
v_max3_u32 v8, v8, v{PL+9}, v{PL+11}
v_max3_u32 v8, v8, v{PL+13}, v{PL+15}
v_cmp_eq_u32 vcc, -1, v8
s_cbranch_vccz L_k4_rdy
s_add_u32 s13, s13, 1
s_cmp_ge_u32 s13, 0x40000
s_cbranch_scc1 L_k4_rdy
s_sleep 8''')
                for o in poll_ops(): k(o[0])
                k('''s_waitcnt vmcnt(0)
s_branch L_k4_chk
L_k4_rdy:''')
                if 'tstamp' in opt: k.stamp(6)
                for h in range(2):
                    k(f'''v_add_f32 v{8+h}, v{PL+h}, v{PL+2+h}
v_add_f32 v{10+h}, v{PL+4+h}, v{PL+6+h}
v_add_f32 v{12+h}, v{PL+8+h}, v{PL+10+h}
v_add_f32 v{PL+h}, v{PL+12+h}, v{PL+14+h}
v_add_f32 v{8+h}, v{8+h}, v{10+h}
v_add_f32 v{12+h}, v{12+h}, v{PL+h}
v_add_f32 v{8+h}, v{8+h}, v{12+h}''')
                k(f'''v_mov_b32 v10, v8
v_mov_b32 v11, v9
v_mul_f32 v12, v{RR}, v{RR}
v_mov_b32 v13, {fhex(1e-5)}
v_permlane32_swap_b32 v8, v10
v_permlane32_swap_b32 v9, v11
v_add_f32 v8, v8, v10
v_add_f32 v9, v9, v11
v_mul_f32 v8, {fhex(1/2304)}, v8
v_mul_f32 v9, {fhex(1/2304)}, v9
v_fma_f32 v9, -v8, v8, v9
v_max_f32 v9, 0, v9
v_fma_f32 v9, v9, v12, v13
v_rsq_f32 v9, v9
v_mul_f32 v{SC}, v9, v{RR}
v_mul_f32 v{SH}, -v8, v{SC}''')
            for o in per[s]: emit2(o)
        if 'tstamp' in opt and j in (0,4,5,6,7): k.stamp({0:0,4:1,5:4,6:5,7:7}[j])
        if j == 5:
            srd_ws(k, 36, 16, 'ST2')
            k(f'''s_cmp_eq_u32 s6, 1
s_cbranch_scc1 L_k4_odd
v_mov_b32 v{S1}, v184
v_mov_b32 v{S1+1}, v185
v_mov_b32 v{S2}, v186
v_mov_b32 v{S2+1}, v187
L_k4_odd:
v_add_f32 v{S1}, v{S1}, v{S1+1}
v_add_f32 v{S1+1}, v{S2}, v{S2+1}''')
            xadd32(k, S1, S2); xadd32(k, S1 + 1, S2 + 1)
            k(f'''s_lshl_b32 s12, s5, 10
s_add_u32 s12, s12, s11''')
            vm.op(f'buffer_store_dwordx2 v[{S1}:{S1+1}], v27, s[36:39], s12 offen sc1', 'pub')
        if j == 0:
            srd_ws(k, 20, 16, 'Z2')
            k(f'''s_lshl_b32 s11, s4, 14
s_lshl_b32 s12, s3, 8
s_add_u32 s11, s11, s12
s_lshl_b32 s64, s5, 6
s_lshl_b32 s65, s3, 4
s_add_u32 s64, s64, s65
s_add_u32 s64, s64, s4
s_mul_i32 s64, s64, 9216
s_add_u32 s65, s64, 4096
s_add_u32 s66, s64, 8192
s_sub_u32 s67, s66, {64*9216}
s_cmp_eq_u32 s6, 0
s_cselect_b32 s66, {OOB}, s66
s_cselect_b32 s67, {OOB}, s67''')
    k.stamp(7 if fused else 2)
    for o in norm_rd(4): emit2(o)
    first = True
    for o in gelu_ops(ACC, PK, 'z1', packed=True):
        if isinstance(o, tuple):
            g = o[1]
            k(f'buffer_store_dwordx4 v[{PK+4*g}:{PK+4*g+3}], v18, s[32:35], s57 offen offset:{512*g}')
        else:
            k(o)
            if first and o.startswith('v_exp'):
                first = False
                for oo in norm_st(4): emit2(oo)
    k.stamp(3)
    if not fused: code_prefetch(k, 'k5_kernel', 1, 190, 40, swave=3)
    if fused:
        k('L_k4_done:')
        return
    k('''L_k4_end:
s_endpgm''')
    return k, f'; @launch kernel={k.name} grid=(256,1,1) block=(256,1,1) lds={EXT+9216}'
```

```python
from dsl import K
from common import *
from k4 import map_8x4_16x16, VM
from k1 import map_8x4_32x8
from k3 import lane_consts, epi_addr, load_modvec

SLOT = 36864
NEXT6 = 'k6_kernel'
LATE_N = 0


def ring_gemm(k, R, NST, SPS, NB, NA, ASTR, a_load, b_rd, acc, areg, breg, pre_ops, npre, late_ops=None, opt=(), late2=None, preA=False, preB=False, ldmod=''):
    assert NST % R == 0

    def stage_ops(slot):
        al = a_load(slot)
        head = ['s_mov_b32 s40, s11', 's_mov_b32 s41, s12']
        head.append('s_add_u32 s42, s40, 4096')
        d = []
        for c in range(9):
            g = []
            if c % 4 == 0:
                g.append(f's_add_u32 m0, s10, {slot*SLOT + c*1024}')
                g.append('s_add_u32 s41, s41, 4096' if c else f's_add_u32 s11, s11, {ASTR}')
            g.append(f'buffer_load_dwordx4 v2, s[28:31], s41 offen offset:{(c%4)*1024} {ldmod} lds')
            d.append(g)
        d[0] = head + d[0]
        d[1] = [f's_add_u32 s12, s12, 9216'] + d[1]
        groups = []
        for i in range(9):
            groups.append(d[i])
            if i < 8: groups.append([al[i]])
        return groups
    for s in range(R - 1):
        for g in stage_ops(s):
            for o in g:
                if o.startswith('buffer_load') and ((preA and ' lds' not in o) or (preB and ' lds' in o)): continue
                k(o)
    pre_ops()
    k.stamp(0)
    per = 9 if preA else 8 if preB else 17
    k(f's_waitcnt vmcnt({per*(R-2)+npre})\ns_barrier')
    for o in b_rd(0, 0, 0): k(o)
    nm = SPS * NB * NA
    per_step = NB * NA
    pos = [(g * nm) // 17 for g in range(17)]
    first = [g for g in range(17) if pos[g] < per_step]
    g0 = stage_ops(R - 1)
    for g in first:
        for o in g0[g]: k(o)
    lab = k.newlabel('L_loop')
    k(f's_mov_b32 s43, 0\n.p2align 6\n{lab}:')
    nit = NST // R
    nlate = 0
    for it in ('loop', 'last'):
        for slot in range(R):
            stage = (nit - 1) * R + slot if it == 'last' else None
            cur = stage_ops((slot + R - 1) % R)
            nxt = stage_ops(slot)
            if it == 'last':
                if stage + R - 1 >= NST: cur = None
                nxt = None
            for st in range(SPS):
                par = st & 1
                lastst = st == SPS - 1
                k('s_waitcnt lgkmcnt(0)')
                if lastst:
                    if it == 'loop':
                        if per != 17 and slot < R - 3:
                            lz = k.newlabel('L_fst')
                            k(f's_cmp_lg_u32 s43, 0\ns_cbranch_scc1 {lz}\ns_waitcnt vmcnt({17*(slot+1)+per*(R-3-slot)})\n{lz}:')
                        k(f's_waitcnt vmcnt({17*(R-2)})')
                        k('s_barrier')
                        rds = b_rd((slot + 1) % R, 0, par ^ 1)
                    elif slot < R - 1:
                        k(f's_waitcnt vmcnt({17*(R-2-slot)+nlate})\ns_barrier')
                        rds = b_rd(slot + 1, 0, par ^ 1)
                    else:
                        rds = []
                else:
                    rds = b_rd(slot, st + 1, par ^ 1)
                late = []
                if it == 'last' and slot == 1 and st == 0 and late_ops:
                    late = late_ops(); nlate = len(late)
                if it == 'last' and slot == 2 and st < 2 and late2:
                    late = late2(st); nlate += sum(1 for o in late if 'buffer_load' in o)
                ri = 0; mi = 0
                for j in range(NB):
                    for m in range(NA):
                        a = acc(j, m)
                        if 'nomfma' not in opt: k(f'v_mfma_f32_16x16x32_bf16 {a}, {breg(par, j)}, {areg(slot, st, m)}, {a}')
                        if ri < len(rds) and (m == 0) and 'nods' not in opt: k(rds[ri]); ri += 1
                        if late and m == NA - 1: k(late.pop(0))
                        w = mi if lastst else (st + 1) * per_step + mi
                        src = nxt if lastst else cur
                        for g in range(17):
                            if pos[g] == w and src is not None:
                                for o in src[g]: k(o)
                        mi += 1
                for o in late: k(o)
        if it == 'loop':
            k(f'''s_add_u32 s43, s43, 1
s_cmp_lt_u32 s43, {nit-1}
s_cbranch_scc1 {lab}''')


def k5_a_load(slot, so='s40'):
    return [f'buffer_load_dwordx4 a[{32*slot+4*i}:{32*slot+4*i+3}], v{2 if i<4 else 3}, s[24:27], {so} offen offset:{(i%4)*1024}'
            for i in range(8)]


def k5_prefetch_a():
    off, n = WS['WSP']
    o = [f's_add_u32 s40, s16, {off}', 's_addc_u32 s41, s17, 0', 's_and_b32 s41, s41, 0xffff', f's_mov_b32 s42, {n}', 's_mov_b32 s43, 0x20000',
         'v_add_u32 v30, 4096, v2', 's_lshl_b32 s62, s4, 3', 's_lshl_b32 s63, s3, 1', 's_add_u32 s62, s62, s63', 's_lshl_b32 s62, s62, 16']
    o = [(x, None) for x in o]
    for s in range(3):
        if s: o.append(('s_add_u32 s62, s62, 8192', None))
        for x in k5_a_load(s, 's62'): o.append((x.replace('s[24:27]', 's[40:43]').replace('v3,', 'v30,'), 'pa'))
    return o


def gen_k5(opt=(), k=None, late_extra=None):
    fused = k is not None
    ACC, Z = 64, 136
    if not fused:
        k = K('k5_kernel', vgpr=176, agpr=200, sgpr=64)
        k(f'''s_cmp_ge_u32 s2, 256
s_cbranch_scc1 L_k5_end
s_load_dwordx2 s[16:17], s[0:1], {A_WS}
s_load_dwordx2 s[58:59], s[0:1], {A_BSP}''')
        waveid(k, 3, 1)
        map_8x4_16x16(k, 4, 5, 6)
        k('''v_and_b32 v1, 63, v0
v_lshlrev_b32 v2, 4, v1''')
    else:
        k(f's_load_dwordx2 s[58:59], s[0:1], {A_BSP}')
    k(f'''v_add_u32 v3, 4096, v2
v_add_u32 v4, {SLOT}, v2
v_add_u32 v5, {2*SLOT}, v2
v_add_u32 v6, {3*SLOT}, v2
s_lshl_b32 s8, s4, 3
s_lshl_b32 s9, s3, 1
s_add_u32 s8, s8, s9
s_lshl_b32 s11, s8, 16
s_mul_i32 s10, s3, 9216
s_mul_i32 s12, s5, {64*9216}
s_lshl_b32 s13, s10, 4
s_add_u32 s12, s12, s13
s_mov_b32 s15, 0
v_and_b32 v7, 15, v1
s_lshl_b32 s9, s8, 4
v_add_u32 v7, s9, v7
v_lshlrev_b32 v7, 1, v7
s_waitcnt lgkmcnt(0)''')
    srd_ws(k, 24, 16, 'WSP')
    srd_ws(k, 28, 16, 'Z2')
    srd_ws(k, 32, 16, 'Z1')
    srd_in(k, 36, 58, S * 2)
    k('''buffer_load_ushort v8, v7, s[36:39], 0 offen
buffer_load_ushort v9, v7, s[36:39], 0 offen offset:32''')
    acc_init = []
    for m in range(2):
        for i in range(36): acc_init.append(f'v_mov_b32 v{ACC+36*m+i}, v{8+m}')
    if fused:
        srd_ws(k, 20, 16, 'CNT')
        k('s_mov_b32 s13, s5')
        signal(k, 20, 13, 10)
        k('v_lshlrev_b32 v8, 16, v8\nv_lshlrev_b32 v9, 16, v9')
        for o in acc_init: k(o)
        k('s_and_b32 s13, s5, 14')
        k.stamp(5)
        await_(k, 20, 13, 2, 16, 10, 14)
        k.stamp(6)
    base = [2, 4, 5, 6]
    ld = ' sc1' if fused else ''

    def b_rd(slot, st, par):
        return [f'ds_read_b128 a[{128+36*par+4*j}:{128+36*par+4*j+3}], v{base[slot]} offset:{st*9216+j*1024}' for j in range(9)]

    def pre_ops():
        k(f'''s_mul_i32 s44, s5, 9
s_add_u32 s44, s44, 1
s_lshr_b32 s44, s44, 1
s_and_b32 s45, s5, 1
s_cmp_eq_u32 s45, 1
s_cselect_b32 s46, -1, 4
s_add_u32 s46, s46, s44
s_mul_i32 s47, s8, 72
s_add_u32 s44, s44, s47
s_lshl_b32 s44, s44, 10
s_add_u32 s46, s46, s47
s_lshl_b32 s46, s46, 10
s_lshl_b32 s45, s45, 3
s_add_u32 s46, s46, s45
s_add_u32 s45, s44, {72*1024}
s_add_u32 s47, s46, {72*1024}''')
        if not fused:
            k('''s_waitcnt vmcnt(51)
v_lshlrev_b32 v8, 16, v8
v_lshlrev_b32 v9, 16, v9''')
            for o in acc_init: k(o)

    def late_ops():
        o = []
        for m in range(2):
            for b in range(4):
                o.append(f'buffer_load_dwordx4 v[{Z+18*m+4*b}:{Z+18*m+4*b+3}], v2, s[32:35], s{44+m} offen offset:{b*1024}{ld}')
            o.append(f'buffer_load_dwordx2 v[{Z+18*m+16}:{Z+18*m+17}], v2, s[32:35], s{46+m} offen{ld}')
        return o
    ring_gemm(k, 4, 16, 4, 9, 2, 8192, k5_a_load, b_rd,
              lambda j, m: f'v[{ACC+36*m+4*j}:{ACC+36*m+4*j+3}]',
              lambda slot, st, m: f'a[{32*slot+8*st+4*m}:{32*slot+8*st+4*m+3}]',
              lambda par, j: f'a[{128+36*par+4*j}:{128+36*par+4*j+3}]', pre_ops, 0, late_ops, opt,
              late2=late_extra, preA=fused, ldmod=ld.strip())
    k.stamp(1)
    if fused:
        k(f's_waitcnt vmcnt({LATE_N}) lgkmcnt(0)')
    else:
        k(f's_waitcnt vmcnt({LATE_N}) lgkmcnt(0)')
        code_prefetch(k, NEXT6, 1, 20, 48, swave=3)
    for m in range(2):
        for i in range(18):
            t = 10 + 2 * (i & 3)
            a = ACC + 36 * m + 2 * i
            unpack(k, t, Z + 18 * m + i)
            k(f'''v_pk_mul_f32 v[{a}:{a+1}], v[{a}:{a+1}], v[{t}:{t+1}]
v_cvt_pk_bf16_f32 v{Z+18*m+i}, v{a}, v{a+1}''')
            if i % 4 == 3: k(f'buffer_store_dwordx4 v[{Z+18*m+i-3}:{Z+18*m+i}], v2, s[32:35], s{44+m} offen offset:{(i//4)*1024}')
        k(f'buffer_store_dwordx2 v[{Z+18*m+16}:{Z+18*m+17}], v2, s[32:35], s{46+m} offen')
    if fused: return
    k('''L_k5_end:
s_endpgm''')
    return k, f'; @launch kernel=k5_kernel grid=(256,1,1) block=(256,1,1) lds={4*SLOT}'
```

```python
from dsl import K
from common import *
from k1 import map_8x4_32x8
from k3 import lane_consts, epi_addr, modvec_load, modvec_spread
from k5 import ring_gemm, SLOT


def k6_prefetch_b(stage):
    o = []
    if stage == 0:
        t = K('tmp', 1)
        map_8x4_32x8(t, 48, 49, 50)
        srd_ws(t, 52, 16, 'WOUT')
        t(f'''s_mul_i32 s50, s49, {72*4608}
s_mul_i32 s51, s10, 9
s_add_u32 s50, s50, s51''')
        head = '\n'.join(t.lines) + '\n'
    else:
        head = ''
    for c in range(9):
        if c % 4 == 0:
            head += f's_add_u32 m0, s10, {stage*SLOT+c*1024}\ns_add_u32 s51, s50, {stage*9216+c*1024}\n'
        o.append(head + f'buffer_load_dwordx4 v2, s[52:55], s51 offen offset:{(c%4)*1024} lds')
        head = ''
    return o


def gen_k6(k=None):
    fused = k is not None
    ACC, XR, GB, AR, BF, MV = 40, 20, 208, 64, 160, 32
    if not fused:
        k = K('k6_kernel', vgpr=232, sgpr=64)
        k(f'''s_cmp_ge_u32 s2, 256
s_cbranch_scc1 L_k6_end
s_load_dwordx2 s[16:17], s[0:1], {A_WS}
s_load_dwordx2 s[60:61], s[0:1], {A_OUT}''')
        waveid(k, 3, 1)
        map_8x4_32x8(k, 4, 5, 6)
    else:
        k('s_add_u32 s13, s4, 16')
        k(f's_load_dwordx2 s[60:61], s[0:1], {A_OUT}')
        signal(k, 20, 13, 10)
        k('s_mov_b32 s4, s48\ns_mov_b32 s5, s49')
    lane_consts(k)
    k('''s_lshl_b32 s8, s4, 2
s_add_u32 s8, s8, s3''')
    epi_addr(k, 8, 5)
    k(f'''v_add_u32 v3, {SLOT}, v2
v_add_u32 v4, {2*SLOT}, v2
v_add_u32 v6, {SLOT}, v5
v_add_u32 v16, {2*SLOT}, v5
s_mul_i32 s11, s8, {72*1024}
s_mul_i32 s10, s3, 9216
s_mul_i32 s12, s5, {72*4608}
s_mul_i32 s13, s10, 9
s_add_u32 s12, s12, s13
s_waitcnt lgkmcnt(0)''')
    srd_ws(k, 24, 16, 'Z1')
    srd_ws(k, 28, 16, 'WOUT')
    srd_ws(k, 32, 16, 'MODF')
    srd_ws(k, 36, 16, 'X1')
    full = [2, 3, 4]; half = [5, 6, 16]
    ld = ' sc1' if fused else ''

    def extras():
        k(f'''buffer_load_dwordx4 v[{XR}:{XR+3}], v12, s[36:39], 0 offen
buffer_load_dwordx4 v[{XR+4}:{XR+7}], v12, s[36:39], 0 offen offset:2048
buffer_load_dwordx2 v[{XR+8}:{XR+9}], v13, s[36:39], 0 offen''')
        modvec_load(k, 32, (5, 5), 5, 36, MV)
        for i in range(20): k(f'v_mov_b32 v{ACC+i}, 0')
    if fused:
        extras()
        k('s_lshr_b32 s13, s4, 1\ns_add_u32 s13, s13, 16')
        k.stamp(2)
        await_(k, 20, 13, 1, 16, 38, 14)
        k.stamp(3)

    def a_load(slot):
        return [f'buffer_load_dwordx4 v[{AR+32*slot+4*st}:{AR+32*slot+4*st+3}], v2, s[24:27], {"s40" if st<4 else "s42"} offen offset:{(st%4)*1024}{ld}'
                for st in range(8)]

    def b_rd(slot, st, par):
        return [f'ds_read_b128 v[{BF+20*par+4*j}:{BF+20*par+4*j+3}], v{(full if j<4 else half)[slot]} offset:{st*4608+j*1024}' for j in range(5)]
    ring_gemm(k, 3, 9, 8, 5, 1, 8192, a_load, b_rd,
              lambda j, m: f'v[{ACC+4*j}:{ACC+4*j+3}]',
              lambda slot, st, m: f'v[{AR+32*slot+4*st}:{AR+32*slot+4*st+3}]',
              lambda par, j: f'v[{BF+20*par+4*j}:{BF+20*par+4*j+3}]', (lambda: None) if fused else extras, 0 if fused else 4,
              preB=fused)
    k.stamp(4 if fused else 1)
    k('s_waitcnt lgkmcnt(0)')
    modvec_spread(k, MV, 3 * SLOT, (GB,), 36)
    srd_in(k, 24, 60, S * D * 2)
    U = 208 - 24
    for j in range(10): unpack(k, U + 2 * j, XR + j)
    k('s_waitcnt lgkmcnt(0)')
    for j in range(10):
        k(f'v_pk_fma_f32 v[{U+2*j}:{U+2*j+1}], v[{ACC+2*j}:{ACC+2*j+1}], v[{GB+2*j}:{GB+2*j+1}], v[{U+2*j}:{U+2*j+1}]')
    for j in range(10): k(f'v_cvt_pk_bf16_f32 v{XR+j}, v{U+2*j}, v{U+2*j+1}')
    k(f'''buffer_store_dwordx4 v[{XR}:{XR+3}], v10, s[24:27], 0 offen ;plain
buffer_store_dwordx4 v[{XR+4}:{XR+7}], v10, s[24:27], 0 offen offset:64 ;plain
buffer_store_dwordx2 v[{XR+8}:{XR+9}], v11, s[24:27], 0 offen ;plain''')
    if fused: return
    k('''L_k6_end:
s_endpgm''')
    return k, f'; @launch kernel=k6_kernel grid=(256,1,1) block=(256,1,1) lds={3*SLOT+4096}'


def gen_fused(front=False, with5=True, with6=True, view=0):
    import k3, k4, k5
    k = K('k3_kernel' if front else 'k4_kernel', vgpr=232, agpr=200, sgpr=68)
    k.wtname = 'k34'
    k4.gen_k4(k=k, front=k3.k3_front if front else None, mid_hook=k5.k5_prefetch_a)
    k.smap = {10: 0, 11: 1, 5: 2, 6: 3, 0: 4, 1: 5} if view == 0 else {1: 0}
    k5.gen_k5(k=k, late_extra=k6_prefetch_b if with6 else None)
    if with6:
        k.smap = {4: 6} if view == 0 else {10: 1, 11: 2, 2: 3, 3: 4, 0: 5, 4: 6}
        gen_k6(k=k)
    else:
        code_prefetch(k, 'k6_kernel', 1, 20, 48, swave=3)
    k('''L_k4_end:
s_endpgm''')
    return k, f'; @launch kernel={k.name} grid=(256,1,1) block=(256,1,1) lds={4*SLOT+9216}'
```

```python
from dsl import K
from common import *
from k0 import tprep_lane, tprep_rdaddr, tprep_read, TP_RS, TP_WAVE


def job_win(k, sU, sL, tag, sync=None):
    srd_in(k, 20, 6, 576 * 4608 * 2)
    srd_ws(k, 24, 16, 'WIN')
    srd_ws(k, 28, 16, 'MODB')
    RS = 80
    R0 = 40
    NR = 18
    k(f'''v_lshlrev_b32 v2, 4, v1
buffer_load_dwordx4 v[8:11], v2, s[28:31], 0 offen
buffer_load_dwordx4 v[12:15], v2, s[28:31], 0 offen offset:1024
buffer_load_dwordx4 v[16:19], v2, s[28:31], 0 offen offset:2048
v_lshrrev_b32 v3, 2, v1
v_mul_u32_u24 v36, 9216, v3
v_and_b32 v5, 3, v1
v_lshl_add_u32 v36, v5, 4, v36
s_lshr_b32 s34, s{sU}, 1
s_and_b32 s35, s{sU}, 1
s_lshl_b32 s33, s34, 6
s_mul_i32 s36, s35, {18*16*9216}
s_add_u32 s33, s33, s36''')
    log = ['m', 'm', 'm']

    def ld(st):
        r = R0 + 4 * (st % NR)
        k(f'''buffer_load_dwordx4 v[{r}:{r+3}], v36, s[20:23], s33 offen
s_add_u32 s33, s33, {16*9216}''')
        log.append(f'L{st}')
    for st in range(NR): ld(st)
    if sync: sync(NR + 3)
    k(f'''v_mul_u32_u24 v3, {RS}, v3
v_lshl_add_u32 v3, v5, 4, v3
v_add_u32 v3, s{sL}, v3
v_add_u32 v3, 3072, v3
v_lshrrev_b32 v4, 5, v1
v_lshlrev_b32 v4, 3, v4
v_bfe_u32 v6, v1, 2, 2
v_add_u32 v4, v4, v6
v_mul_u32_u24 v4, {RS}, v4
v_bfe_u32 v6, v1, 4, 1
v_lshl_add_u32 v4, v6, 5, v4
v_and_b32 v6, 1, v1
v_lshl_add_u32 v4, v6, 4, v4
v_bfe_u32 v7, v1, 1, 1
v_lshl_add_u32 v4, v7, 3, v4
v_add_u32 v4, s{sL}, v4
v_add_u32 v4, 3072, v4
v_mul_u32_u24 v5, 1152, v6
v_lshrrev_b32 v6, 5, v1
v_lshl_add_u32 v5, v6, 4, v5
s_mul_i32 s36, s35, {18*32}
s_add_u32 s36, s36, s{sL}
v_add_u32 v5, s36, v5
v_add_u32 v6, s{sL}, v2
s_mul_i32 s32, s34, {37*1024}
s_lshl_b32 s37, s35, 9
s_add_u32 s37, s37, s32
s_add_u32 s37, s37, {36*1024}
s_mul_i32 s36, s35, {18*1024}
s_add_u32 s32, s32, s36
s_waitcnt vmcnt({NR})
ds_write_b128 v6, v[8:11]
ds_write_b128 v6, v[12:15] offset:1024
ds_write_b128 v6, v[16:19] offset:2048''')
    ACC = 112

    def wr(st):
        r = R0 + 4 * (st % NR)
        k(f'''s_waitcnt vmcnt({len(log)-1-log.index(f"L{st}")})
ds_write_b128 v3, v[{r}:{r+3}] offset:{(st&1)*16*RS}''')
    wr(0)
    for st in range(18):
        b = st & 1
        f = 8 + 4 * b; m = 16 + 4 * b
        k(f'''s_waitcnt lgkmcnt(0)
ds_read_b64_tr_b16 v[{f}:{f+1}], v4 offset:{b*16*RS}
ds_read_b64_tr_b16 v[{f+2}:{f+3}], v4 offset:{b*16*RS+4*RS}
ds_read_b128 v[{m}:{m+3}], v5 offset:{st*32}''')
        if st + 1 < 18: wr(st + 1)
        k(f'''s_waitcnt lgkmcnt({1 if st+1<18 else 0})
v_mfma_f32_32x32x16_bf16 v[{ACC}:{ACC+15}], v[{m}:{m+3}], v[{f}:{f+3}], {'0' if st == 0 else f'v[{ACC}:{ACC+15}]'}
buffer_store_dwordx4 v[{f}:{f+3}], v2, s[24:27], s32 offen offset:{(st%4)*1024}''')
        log.append('S')
        if st % 4 == 3: k('s_add_u32 s32, s32, 4096')
    k(f'''v_cvt_pk_bf16_f32 v24, v{ACC}, v{ACC+1}
v_lshlrev_b32 v25, 16, v24
v_and_b32 v26, 0xffff0000, v24
v_sub_f32 v27, v{ACC}, v25
v_sub_f32 v28, v{ACC+1}, v26
v_cvt_pk_bf16_f32 v27, v27, v28
v_lshrrev_b32 v32, 16, v25
v_or_b32 v32, v32, v25
v_and_b32 v33, 0xffff, v27
v_or_b32 v33, v33, v26
v_lshrrev_b32 v34, 16, v26
v_and_b32 v28, 0xffff0000, v27
v_or_b32 v34, v34, v28
v_mov_b32 v35, 0
v_cmp_gt_u32 vcc, 32, v1
v_mov_b32 v28, {OOB}
v_cndmask_b32 v2, v28, v2, vcc
buffer_store_dwordx4 v[32:35], v2, s[24:27], s37 offen''')


def helpers(k, sync):
    k(f'''s_load_dwordx2 s[4:5], s[0:1], {A_WO}
s_load_dwordx2 s[8:9], s[0:1], {A_WSP}
s_load_dwordx2 s[6:7], s[0:1], {A_WIN}
s_load_dwordx2 s[12:13], s[0:1], {A_WOUT}
s_and_b32 s18, s3, 1
s_lshl_b32 s19, s2, 1
s_add_u32 s18, s18, s19
s_and_b32 s19, s3, 1
s_mul_i32 s19, s19, 6144
s_add_u32 s19, s19, {64*2368}
s_waitcnt lgkmcnt(0)
s_cmp_ge_u32 s3, 2
s_cbranch_scc1 L_h_lds''')
    job_wsp(k, 18, sync)
    k('''s_endpgm
L_h_lds:
s_cmp_ge_u32 s18, 288
s_cbranch_scc1 L_h_t''')
    job_win(k, 18, 19, 'h', sync)
    k('''s_endpgm
L_h_t:
s_sub_u32 s18, s18, 288
s_cmp_ge_u32 s18, 72
s_cbranch_scc1 L_h_wout
s_lshl_b32 s18, s18, 1''')
    job_t2(k, 18, 19, 'WO', sync)
    k('''s_endpgm
L_h_wout:
s_sub_u32 s18, s18, 72
s_cmp_ge_u32 s18, 144
s_cbranch_scc1 L_h_none
s_lshl_b32 s18, s18, 2''')
    job_t2(k, 18, 19, 'WOUT', sync, NU=4)
    k('''s_endpgm
L_h_none:''')
    sync(0)


def job_t2(k, sU, sL, which, sync=None, NU=2):
    ns = 18 if which == 'WO' else 72
    srd_in(k, 20, 4 if which == 'WO' else 12, ns * 32 * 576 * 2)
    srd_ws(k, 24, 16, which)
    if ns == 18: k(f's_mul_i32 s32, s{sU}, 57\ns_lshr_b32 s32, s32, 10')
    else: k(f's_mul_i32 s32, s{sU}, 911\ns_lshr_b32 s32, s32, 16')
    k(f'''s_mul_i32 s33, s32, {ns}
s_sub_u32 s33, s{sU}, s33
s_mul_i32 s32, s32, 144
v_lshrrev_b32 v4, 3, v1
v_and_b32 v5, 7, v1
v_and_b32 v6, 31, v1
v_mul_u32_u24 v8, {TP_RS}, v4
v_lshl_add_u32 v8, v5, 4, v8
v_add_u32 v8, s{sL}, v8
v_mul_u32_u24 v9, {TP_RS}, v6
v_lshrrev_b32 v7, 5, v1
v_lshl_add_u32 v9, v7, 4, v9
v_add_u32 v9, s{sL}, v9''')
    if which == 'WO':
        la = k.newlabel('L_wa'); lb = k.newlabel('L_wb')
        k(f'''s_cmp_ge_u32 s33, 16
s_cbranch_scc1 {la}
v_lshrrev_b32 v7, 4, v6
v_lshl_add_u32 v6, v7, 1, v6
s_mul_i32 s35, s33, {36*1152}
s_mov_b32 s34, {36*1152}
s_mov_b32 s36, {8*1152}
s_mov_b32 s37, {18*1152}
s_mov_b32 s38, {26*1152}
s_branch {lb}
{la}:
v_lshrrev_b32 v7, 1, v4
v_and_b32 v4, 1, v4
v_mad_u32_u24 v4, v7, 18, v4
v_add_u32 v4, 16, v4
v_lshrrev_b32 v7, 1, v6
v_and_b32 v6, 1, v6
v_mad_u32_u24 v6, v7, 18, v6
v_add_u32 v6, 16, v6
s_mov_b32 s35, 0
s_mov_b32 s34, {288*1152}
s_mov_b32 s36, {72*1152}
s_mov_b32 s37, {144*1152}
s_mov_b32 s38, {216*1152}
{lb}:''')
    else:
        k(f'''s_mul_i32 s35, s33, {32*1152}
s_mov_b32 s34, {32*1152}
s_mov_b32 s36, {8*1152}
s_mov_b32 s37, {16*1152}
s_mov_b32 s38, {24*1152}''')
    k(f'''v_mul_u32_u24 v2, 1152, v4
v_lshl_add_u32 v2, v5, 4, v2
v_mul_u32_u24 v3, 1152, v6
v_cmp_gt_u32 vcc, 32, v1
v_mov_b32 v7, {OOB}
s_add_u32 s35, s35, s32
v_cndmask_b32 v3, v7, v3, vcc''')
    for u in range(NU):
        r = 20 + 20 * u
        k(f'''s_add_u32 s40, s35, s36
s_add_u32 s41, s35, s37
s_add_u32 s42, s35, s38
buffer_load_dwordx4 v[{r}:{r+3}], v2, s[20:23], s35 offen
buffer_load_dwordx4 v[{r+4}:{r+7}], v2, s[20:23], s40 offen
buffer_load_dwordx4 v[{r+8}:{r+11}], v2, s[20:23], s41 offen
buffer_load_dwordx4 v[{r+12}:{r+15}], v2, s[20:23], s42 offen
buffer_load_dwordx4 v[{r+16}:{r+19}], v3, s[20:23], s35 offen offset:128
s_add_u32 s35, s35, s34''')
    tprep_rdaddr(k, 1, 16, 17, 18, sL)
    k(f'''v_lshlrev_b32 v2, 4, v1
v_lshrrev_b32 v3, 4, v1
v_lshlrev_b32 v3, 7, v3
v_and_b32 v4, 15, v1
v_lshl_add_u32 v3, v4, 4, v3
v_cmp_gt_u32 vcc, 8, v4
s_mul_i32 s34, s{sU}, 4608
v_cndmask_b32 v3, v7, v3, vcc''')
    if which == 'WOUT':
        k(f'''s_sub_u32 s34, s{sU}, s33
s_mul_i32 s34, s34, 4608
s_lshr_b32 s35, s33, 3
s_mul_i32 s35, s35, 9216
s_add_u32 s34, s34, s35
s_bfe_u32 s35, s33, 0x10002
s_mul_i32 s35, s35, {2*9*9216}
s_add_u32 s34, s34, s35''')
    if sync: sync(5 * NU)
    for u in range(NU):
        r = 20 + 20 * u
        k(f's_waitcnt vmcnt({5*(NU-1)})')
        for i in range(4): k(f'ds_write_b128 v8, v[{r+4*i}:{r+4*i+3}] offset:{i*8*TP_RS}')
        k(f'''ds_write_b128 v9, v[{r+16}:{r+19}] offset:128
s_add_u32 s35, s34, 4096
s_waitcnt lgkmcnt(0)''')
        tprep_read(k, 16, 17, 100 + 20 * (u & 1))
        k('s_waitcnt lgkmcnt(0)')
        d = 100 + 20 * (u & 1)
        for j in range(4):
            k(f'buffer_store_dwordx4 v[{d+4*j}:{d+4*j+3}], v2, s[24:27], s34 offen offset:{1024*j}')
        k(f'buffer_store_dwordx4 v[{d+16}:{d+19}], v3, s[24:27], s35 offen')
        if u < NU - 1: k(f's_add_u32 s34, s34, {9*9216-4608 if (which == "WOUT" and u == 1) else 4608}')


def job_wsp(k, sU, sync=None):
    srd_in(k, 20, 8, S * S * 2)
    srd_ws(k, 24, 16, 'WSP')
    k(f'''v_and_b32 v2, 15, v1
v_lshlrev_b32 v2, 12, v2
v_lshrrev_b32 v3, 4, v1
v_lshl_add_u32 v2, v3, 4, v2
v_lshlrev_b32 v3, 4, v1
s_lshr_b32 s32, s{sU}, 2
s_lshl_b32 s32, s32, 16
s_and_b32 s33, s{sU}, 3
s_lshl_b32 s33, s33, 10
s_add_u32 s32, s32, s33
s_lshr_b32 s33, s{sU}, 3
s_lshl_b32 s33, s33, 17
s_and_b32 s34, s{sU}, 3
s_lshl_b32 s34, s34, 15
s_add_u32 s33, s33, s34
s_bfe_u32 s34, s{sU}, 0x10002
s_lshl_b32 s34, s34, 10
s_add_u32 s33, s33, s34''')
    for st in range(16):
        k(f'buffer_load_dwordx4 v[{8+4*st}:{11+4*st}], v2, s[20:23], s32 offen offset:{st*64}')
    if sync: sync(16)
    for st in range(16):
        k(f'''s_waitcnt vmcnt(15)
buffer_store_dwordx4 v[{8+4*st}:{11+4*st}], v3, s[24:27], s33 offen offset:{(st%2)*2048}''')
        if st % 2 == 1: k('s_add_u32 s33, s33, 4096')
```

```python
import sys
sys.path.insert(0,'gen')
from build import build
import k0,k1,kp,k2,k3,k4,k5,k6
k4.SLP=12
base=lambda:[k0.gen_k0(),k1.gen_k1(),k2.gen_k2(kp.helpers)]
build(base()+[k3.gen_k34(),k5.gen_k5(),k6.gen_k6()],f'va_a.s')
build(base()+[k6.gen_fused(True,True,False),k6.gen_k6()],f'va_b.s')
build(base()+[k6.gen_fused(True,True,True,0)],f'va_c.s')
build(base()+[k6.gen_fused(True,True,True,1)],f'va_d.s')
```
